```python
import torch

def _softmax(x, axis=-1):
    return torch.softmax(x, dim=axis)
def _gelu(x):
    return torch.nn.functional.gelu(x, approximate="tanh")
def _silu(x):
    return torch.nn.functional.silu(x)
def _sigmoid(x):
    return torch.sigmoid(x)
def _layernorm(x, axis=-1, eps=1e-5):
    m = x.mean(dim=axis, keepdim=True)
    v = x.var(dim=axis, keepdim=True, unbiased=False)
    return (x - m) / torch.sqrt(v + eps)
def _scatter_add(tgt, idx, src, axis=0):
    return tgt.clone().index_add_(axis, idx, src)
def _segment_sum(src, seg, n):
    out = torch.zeros((n,) + src.shape[1:], dtype=src.dtype)
    return out.index_add_(0, seg, src)
def _pad(x, pw):
    flat = tuple(v for pair in reversed(pw) for v in pair)
    return torch.nn.functional.pad(x, flat)

kernel_name = 'interleave_layers__sliding_local_dilated__linear_kernel_hedgehog__prompt'

def setup_inputs():

    _w = (lambda a: (lambda t: t.to(torch.bfloat16) if t.is_floating_point() else t)(torch.as_tensor(a)))
    def _A_setup():
        B, S, D = 1, 2048, 640
        return {
            "x": _w((lambda *s: torch.randn(*s, dtype=torch.bfloat16) * 0.05)(B, S, D)),
            "wqkv": _w((lambda *s: torch.randn(*s, dtype=torch.bfloat16) * 0.05)(D, 3 * D)),
            "wo": _w((lambda *s: torch.randn(*s, dtype=torch.bfloat16) * 0.05)(D, D)),
        }
    _A_in = _A_setup()

    def _B_setup():
        B, S, D, H = 1, 2048, 640, 32
        Dh = D // H
        return {
            "x": _w((lambda *s: torch.randn(*s, dtype=torch.bfloat16) * 0.05)(B, S, D)),
            "wqkv": _w((lambda *s: torch.randn(*s, dtype=torch.bfloat16) * 0.4)(D, 3 * D)),
            "w_phi": _w((lambda *s: torch.randn(*s, dtype=torch.bfloat16) * 0.4)(H, Dh, Dh) * (Dh ** -0.5)),
            "wo": _w((lambda *s: torch.randn(*s, dtype=torch.bfloat16) * 0.1)(D, D)),
        }
    _B_in = _B_setup()

    return {
        "A_x": _A_in["x"],
        "A_wqkv": _A_in["wqkv"],
        "A_wo": _A_in["wo"],
        "B_x": _B_in["x"],
        "B_wqkv": _B_in["wqkv"],
        "B_w_phi": _B_in["w_phi"],
        "B_wo": _B_in["wo"],
    }

def reference(A_x, A_wqkv, A_wo, B_x, B_wqkv, B_w_phi, B_wo):
    def _A_ref(x, wqkv, wo):
        B, S, D = x.shape
        H = 32; Dh = D // H
        W, dil = 8, 2
        qkv = (lambda x, *d: x.permute(*d))((x @ wqkv).reshape(B, S, 3, H, Dh), 2, 0, 3, 1, 4)
        q, k, v = qkv[0], qkv[1], qkv[2]
        scale = Dh ** -0.5
        pos = torch.arange(S)
        off = torch.arange(W) * dil
        idx = pos[:, None] - off[None, :]
        mask = idx >= 0
        idx_c = torch.where(mask, idx, 0).reshape(-1)
        kg = k[:, :, idx_c, :].reshape(B, H, S, W, Dh)
        vg = v[:, :, idx_c, :].reshape(B, H, S, W, Dh)
        logits = torch.einsum("bhsd,bhswd->bhsw", q, kg) * scale
        logits = torch.where(mask[None, None, :, :], logits, -1e9)
        attn = _softmax(logits, axis=-1)
        o = torch.einsum("bhsw,bhswd->bhsd", attn, vg)
        return (lambda x, *d: x.permute(*d))(o, 0, 2, 1, 3).reshape(B, S, D) @ wo

    def _B_ref(x, wqkv, w_phi, wo):
        B, S, D = x.shape
        H = 32; Dh = D // H
        qkv = (lambda x, *d: x.permute(*d))((x @ wqkv).reshape(B, S, 3, H, Dh), 2, 0, 3, 1, 4)
        q, k, v = qkv[0], qkv[1], qkv[2]
        pq = torch.einsum("bhsd,hdf->bhsf", q, w_phi)
        pk = torch.einsum("bhsd,hdf->bhsf", k, w_phi)
        phi_q = torch.concatenate([_softmax(pq, axis=-1), _softmax(-pq, axis=-1)], axis=-1)
        phi_k = torch.concatenate([_softmax(pk, axis=-1), _softmax(-pk, axis=-1)], axis=-1)
        kv = torch.einsum("bhsf,bhsd->bhfd", phi_k, v)
        z  = torch.einsum("bhsf->bhf", phi_k)
        num = torch.einsum("bhqf,bhfd->bhqd", phi_q, kv)
        den = torch.einsum("bhqf,bhf->bhq", phi_q, z)[..., None] + 1e-6
        o = num / den
        return (lambda x, *d: x.permute(*d))(o, 0, 2, 1, 3).reshape(B, S, D) @ wo

    x = A_x
    x = x + _A_ref(_layernorm(x, axis=-1), A_wqkv, A_wo)
    x = x + _B_ref(_layernorm(x, axis=-1), B_wqkv, B_w_phi, B_wo)
    x = x + _A_ref(_layernorm(x, axis=-1), A_wqkv, A_wo)
    x = x + _B_ref(_layernorm(x, axis=-1), B_wqkv, B_w_phi, B_wo)
    return x
```

```python
import re
NAME = "interleave_layers__sliding_local_dilated__linear_kernel_hedgehog__prompt"

_REG = re.compile(r"^(-|abs\()?([vas])(\d+)\)?$")
_RNG = re.compile(r"^(-|abs\()?([vas])\[(\d+):(\d+)\]\)?$")

def regs_of(op):
    op = op.strip()
    m = _REG.match(op)
    if m:
        return {(m.group(2), int(m.group(3)))}
    m = _RNG.match(op)
    if m:
        return {(m.group(2), i) for i in range(int(m.group(3)), int(m.group(4)) + 1)}
    if op in ("vcc", "vcc_lo", "vcc_hi"):
        return {("s", "vcc")}
    if op in ("exec", "exec_lo", "exec_hi"):
        return {("s", "exec")}
    if op == "m0":
        return {("s", "m0")}
    return set()

TRANS = ("v_exp_f32", "v_log_f32", "v_rcp_f32", "v_rsq_f32", "v_sqrt_f32", "v_sin_f32", "v_cos_f32")
RMW = ("v_fmac_f32", "v_dot2c_f32_bf16", "v_pk_fmac", "v_mac")

class Ins:
    __slots__ = ("text", "name", "kind", "rd", "wr", "A", "B", "C", "passes", "states", "wide_store", "lds_dma")
    def __init__(self, text):
        self.text = text
        t = text.split(";")[0].strip()
        parts = t.split(None, 1)
        self.name = name = parts[0]
        rest = parts[1] if len(parts) > 1 else ""
        ops, cur, depth = [], "", 0
        for ch in rest:
            if ch in "[(": depth += 1
            if ch in "])": depth -= 1
            if ch == "," and depth == 0:
                ops.append(cur.strip()); cur = ""
            else:
                cur += ch
        if cur.strip(): ops.append(cur.strip())
        mods = ""
        if ops:
            sp = ops[-1].split(None, 1)
            ops[-1] = sp[0]
            mods = sp[1] if len(sp) > 1 else ""
        R = [regs_of(o) for o in ops]
        self.rd, self.wr = set(), set()
        self.A = self.B = self.C = set()
        self.passes = 0; self.states = 1; self.wide_store = False; self.lds_dma = False
        def U(l):
            s = set()
            for x in l: s |= x
            return s
        if name.startswith("v_mfma"):
            self.kind = "mfma"
            self.wr = R[0]; self.A, self.B, self.C = R[1], R[2], R[3]
            self.rd = R[1] | R[2] | R[3]
            self.passes = 8 if "32x32" in name else 4
        elif name.startswith("v_"):
            self.kind = "valu"
            if name.startswith("v_cmp"):
                self.wr = R[0]; self.rd = U(R[1:])
            elif name.startswith("v_permlane") and "swap" in name:
                self.wr = R[0] | R[1]; self.rd = R[0] | R[1]
            elif name.startswith("v_readfirstlane") or name.startswith("v_readlane"):
                self.wr = R[0]; self.rd = U(R[1:])
            elif "_co_" in name:
                self.wr = R[0] | R[1]; self.rd = U(R[2:])
            else:
                self.wr = R[0]; self.rd = U(R[1:])
                if name.startswith(RMW) or "dpp" in mods or "quad_perm" in mods or "row_" in mods:
                    self.rd |= R[0]
                if name.startswith("v_cndmask") and len(ops) == 3:
                    self.rd |= {("s", "vcc")}
        elif name.startswith("ds_"):
            self.kind = "ds"
            if "read" in name or "permute" in name or "swizzle" in name:
                self.wr = R[0]; self.rd = U(R[1:])
            else:
                self.rd = U(R)
        elif name.startswith("buffer_") or name.startswith("global_"):
            self.kind = "vmem"
            allm = (rest + " ")
            if " lds" in (" " + mods + " ").replace("lds", " lds ") and "load" in name and re.search(r"\blds\b", mods):
                self.lds_dma = True
                self.rd = U(R) | {("s", "m0")}
            elif "load" in name:
                self.wr = R[0]; self.rd = U(R[1:])
                if "d16" in name: self.rd |= R[0]
            elif "atomic" in name:
                self.rd = U(R)
                if "sc0" in mods: self.wr = R[0]
            else:
                self.rd = U(R)
                if "x4" in name or "x3" in name:
                    self.wide_store = True
                    self.A = R[0] if name.startswith("buffer") else R[1]
        elif name.startswith("s_"):
            self.kind = "salu"
            if name == "s_nop":
                self.states = int(ops[0], 0) + 1
            elif name.startswith(("s_cmp", "s_cbranch", "s_branch", "s_waitcnt", "s_barrier", "s_sleep", "s_endpgm", "s_setprio")):
                self.rd = U(R)
            else:
                self.wr = R[0] if R else set(); self.rd = U(R[1:])
                if "saveexec" in name: self.wr |= {("s", "exec")}
        else:
            raise ValueError("unknown instr: " + text)

def need(prod, cons):
    n = 0
    pk, ck = prod.kind, cons.kind
    if pk == "valu":
        vw = {r for r in prod.wr if r[0] in "va"}
        sw = {r for r in prod.wr if r[0] == "s"}
        if ck == "mfma" and vw & cons.rd: n = max(n, 2)
        if ck == "valu":
            if cons.name.startswith("v_permlane") and vw & cons.rd: n = max(n, 2)
            if ("dpp" in cons.text or "quad_perm" in cons.text or "row_" in cons.text) and vw & cons.rd: n = max(n, 2)
            if cons.name.startswith(("v_readfirstlane", "v_readlane")) and vw & cons.rd: n = max(n, 1)
            if prod.name.startswith(TRANS) and not cons.name.startswith(TRANS) and vw & cons.rd: n = max(n, 1)
            if prod.name.startswith(TRANS) and cons.name.startswith(TRANS) and vw & cons.rd: n = max(n, 1)
            if sw & cons.rd: n = max(n, 2)
            if prod.name.startswith("v_dot2") and vw & (cons.rd | cons.wr):
                same = prod.name == cons.name
                if not (same and not (vw & (cons.rd - cons.wr))): n = max(n, 3)
        if prod.name.startswith("v_dot2") and ck in ("mfma", "ds", "vmem") and vw & cons.rd: n = max(n, 3)
        if ck == "vmem" and sw & cons.rd: n = max(n, 5)
        if ck == "salu" and sw & cons.rd: n = max(n, 1)
        if ck == "mfma" and ("s", "exec") in sw: n = max(n, 4)
    elif pk == "mfma":
        big = 12 if prod.passes == 8 else 8
        if ck == "mfma":
            if prod.wr & (cons.A | cons.B): n = max(n, big)
            if prod.wr & cons.C and not (prod.wr == cons.C and prod.passes == cons.passes): n = max(n, big - 2)
            if prod.wr & cons.wr and not (prod.wr == cons.C and prod.passes == cons.passes): n = max(n, big - 2)
        else:
            if prod.wr & (cons.rd | cons.wr): n = max(n, big)
            if ck == "valu" and prod.C & cons.wr: n = max(n, 7 if prod.passes == 8 else 3)
            if ck in ("ds", "vmem") and prod.C & cons.wr: n = max(n, 7 if prod.passes == 8 else 3)
    elif pk == "vmem":
        if prod.wide_store and prod.A & cons.wr: n = max(n, 2)
    elif pk == "ds":
        if ("b128" in prod.name or "b96" in prod.name) and "write" in prod.name and ck == "valu" and {r for r in prod.rd if r[0] in "va"} & cons.wr: n = max(n, 2)
    elif pk == "salu":
        if ("s", "m0") in prod.wr and (cons.lds_dma): n = max(n, 1)
    return n

class Asm:
    def __init__(self):
        self.items = []
        self._lab = 0
        self.vm = []
        self.lg = []
    def __call__(self, s, *a, tag=None):
        if a: s = s % a
        for ln in s.split("\n"):
            ln = ln.strip()
            if not ln: continue
            ins = Ins(ln)
            self.items.append(ins)
            if ins.kind == "vmem": self.vm.append(tag)
            elif ins.kind == "ds": self.lg.append(tag)
            elif ins.name == "s_waitcnt":
                m = re.search(r"vmcnt\((\d+)\)", ln)
                if m:
                    n = int(m.group(1)); self.vm = self.vm[len(self.vm) - n:] if n and n < len(self.vm) else ([] if n == 0 else self.vm)
                m = re.search(r"lgkmcnt\((\d+)\)", ln)
                if m:
                    n = int(m.group(1)); self.lg = self.lg[len(self.lg) - n:] if n and n < len(self.lg) else ([] if n == 0 else self.lg)
    def _cnt(self, q, tag):
        idx = [i for i, t in enumerate(q) if t == tag or (isinstance(tag, (list, tuple, set)) and t in tag)]
        if not idx: return None
        return len(q) - 1 - idx[-1]
    def wait(self, vm=None, lg=None):
        parts = []
        if vm is not None:
            n = self._cnt(self.vm, vm)
            if n is not None: parts.append("vmcnt(%d)" % min(n, 63))
        if lg is not None:
            n = self._cnt(self.lg, lg)
            if n is not None: parts.append("lgkmcnt(%d)" % min(n, 15))
        if parts: self("s_waitcnt " + " ".join(parts))
    def label(self, name): self.items.append(("label", name))
    def raw(self, text): self.items.append(("raw", text))
    def newlabel(self, base="L"):
        self._lab += 1
        return "%s_%d" % (base, self._lab)
    def comment(self, s): self.items.append(("raw", "    ; " + s))
    def text(self):
        out, hist = [], []
        for it in self.items:
            if isinstance(it, tuple):
                out.append(it[1] + ":" if it[0] == "label" else it[1])
                continue
            req, dist = 0, 0
            for p in reversed(hist):
                if dist >= 20: break
                n = need(p, it)
                if n > dist: req = max(req, n - dist)
                dist += p.states
            while req > 0:
                k = min(req, 16)
                nop = Ins("s_nop %d" % (k - 1))
                out.append("    " + nop.text); hist.append(nop); req -= k
            out.append("    " + it.text)
            hist.append(it)
            if len(hist) > 40: hist = hist[-24:]
        return "\n".join(out) + "\n"

HEADER_COMMENT = """; Kernarg layout for this problem (80 bytes, ptrs only, base s[0:1]):
"""

def wrap(body, grid=256, block=256, lds=0, vgpr=256, sgpr=102, accum=256, kname=NAME + "_kernel", extra_comment=""):
    s = HEADER_COMMENT + extra_comment
    s += "; @launch grid=(%d,1,1) block=(%d,1,1) lds=%d\n" % (grid, block, lds)
    s += '.amdgcn_target "amdgcn-amd-amdhsa--gfx950"\n.text\n'
    s += ".globl %s\n.p2align 8\n.type %s,@function\n%s:\n" % (kname, kname, kname)
    s += body
    s += "    s_endpgm\n"
    s += '.section .rodata,"a"\n.p2align 6\n.amdhsa_kernel %s\n' % kname
    s += "  .amdhsa_next_free_vgpr %d\n  .amdhsa_next_free_sgpr %d\n  .amdhsa_accum_offset %d\n" % (vgpr, sgpr, accum)
    s += "  .amdhsa_group_segment_fixed_size 0\n  .amdhsa_kernarg_size 80\n  .amdhsa_user_sgpr_count 2\n"
    s += "  .amdhsa_user_sgpr_kernarg_segment_ptr 1\n  .amdhsa_system_sgpr_workgroup_id_x 1\n"
    s += "  .amdhsa_float_denorm_mode_32 3\n"
    s += ".end_amdhsa_kernel\n"
    return s
```

```python
from asmlib import *

XB = [0x000000, 0x280000, 0x500000]
OB = [0x780000 + i * 0x280000 for i in range(4)]
ST = [0x1180000 + i * 0x20000 for i in range(3)]
KVB = [0x11E0000, 0x12E0000]
PW = [0x1400000, 0x1660000]
PO = [0x1900000, 0x19D0000]
DBGWS = 0x1B00000
WS_BYTES = 0x2000000
KVM, QI, SP = 0, 112640, 153600
CS = [0, 512]
CSP = 2048
STG = SP + 2048
REC_K, REC_V = 0, 13824
WOI = 40960
HP = 83968
SQX = 40960
PHIR = 0
KVT = SP + 4096
S_WS, S_X, S_WA, S_WOA, S_WB, S_PHI, S_WOB, S_OUT, S_DBG = (8, 12, 16, 20, 24, 28, 32, 36, 40)
def srd(b): return "s[%d:%d]" % (b, b + 3)
sW, sR, sHP, sC, sH64 = "s44", "s45", "s46", "s47", "s48"
sT = "s49"
sU = "s50"
sRETRY = "s51"
vL16, vWkv0, vWkv1, vWm0, vWm1, vWq, vHkv, vHm, vWo0, vWo1 = range(1, 11)
vXst, vStSt, vStLd, vOst, vHx, vHSt, vKrec, vVrec, vCs, vHcs = range(11, 21)
vLane, vONES = 21, 22
HXF, HAC = 24, 44
AK, AV, AM, AQ = 64, 80, 96, 112
RING = 128
TMP = 164
PHIF = 176
RES = 200
PARKV = 212
def v(i, n=1): return "v%d" % i if n == 1 else "v[%d:%d]" % (i, i + n - 1)
def ag(i, n=1): return "a%d" % i if n == 1 else "a[%d:%d]" % (i, i + n - 1)

def build_srd(a, base, lo, nbytes):
    a("s_mov_b32 s%d, s%d\ns_and_b32 s%d, s%d, 0xffff\ns_mov_b32 s%d, %d\ns_mov_b32 s%d, 0x00020000" % (base, lo, base + 1, lo + 1, base + 2, nbytes, base + 3))

def prologue(a):
    a.label("L_start")
    a("s_getpc_b64 s[84:85]")
    a("s_and_b32 s84, s84, 0xffffff00")
    a("s_cmp_ge_u32 s2, 256")
    a("s_cbranch_scc1 L_end")
    a("s_load_dwordx16 s[64:79], s[0:1], 0")
    a("s_load_dwordx4 s[80:83], s[0:1], 64")
    a("v_lshrrev_b32 v1, 6, v0")
    a("v_and_b32 %s, 63, v0", v(vLane))
    a("v_readfirstlane_b32 %s, v1", sW)
    a("s_and_b32 s52, s2, 7\ns_lshr_b32 s53, s2, 3")
    a("s_and_b32 %s, s52, 1", sH64)
    a("s_lshr_b32 s52, s52, 1\ns_lshl_b32 s52, s52, 2\ns_lshr_b32 s54, s53, 3")
    a("s_add_u32 %s, s52, s54", sR)
    a("s_and_b32 %s, s53, 7", sC)
    a("s_lshl_b32 s52, %s, 3\ns_add_u32 %s, s52, %s", sH64, sHP, sC)
    a("s_lshl_b32 s52, %s, 2\ns_add_u32 %s, s52, %s", sR, sT, sW)
    a("s_lshl_b32 s52, %s, 1\ns_add_u32 s52, s52, %s\ns_lshl_b32 s52, s52, 2\ns_add_u32 %s, s52, %s", sR, sH64, sU, sW)
    a("s_mov_b32 %s, 0", sRETRY)
    a("v_lshlrev_b32 %s, 4, %s", v(vL16), v(vLane))
    a("v_mov_b32 %s, 0x3f803f80", v(vONES))
    a("s_waitcnt lgkmcnt(0)")
    build_srd(a, S_WS, 82, WS_BYTES)
    build_srd(a, S_X, 64, 2621440)
    build_srd(a, S_WA, 66, 2457600)
    build_srd(a, S_WOA, 68, 819200)
    build_srd(a, S_WB, 72, 2457600)
    build_srd(a, S_PHI, 74, 25600)
    build_srd(a, S_WOB, 76, 819200)
    build_srd(a, S_OUT, 78, 2621440)
    build_srd(a, S_DBG, 80, 256)

def pat_kvm(a, dst, sm, t):
    L = v(vLane)
    a("s_lshl_b32 s60, %s, 6", sm)
    a("v_add_u32 %s, s60, %s", v(t), L)
    a("v_mul_u32_u24 %s, 5958, %s\nv_lshrrev_b32 %s, 16, %s", v(t + 1), v(t), v(t + 1), v(t + 1))
    a("v_mul_u32_u24 %s, 11, %s\nv_sub_u32 %s, %s, %s", v(t + 2), v(t + 1), v(t), v(t), v(t + 2))
    a("v_and_b32 %s, 3, %s\nv_lshlrev_b32 %s, 2, %s", v(t + 2), v(t + 1), v(t + 2), v(t + 2))
    a("v_bfe_u32 %s, %s, 2, 2", v(t + 3), v(t + 1))
    a("v_and_b32 %s, -16, %s", v(t + 1), v(t + 1))
    a("v_or3_b32 %s, %s, %s, %s", v(t + 1), v(t + 1), v(t + 2), v(t + 3))
    a("v_mul_u32_u24 %s, 3840, %s", v(dst), v(t + 1))
    a("v_lshrrev_b32 %s, 2, %s\nv_add_u32 %s, 1, %s\nv_mul_u32_u24 %s, 80, %s", v(t + 1), v(t), v(t + 1), v(t + 1), v(t + 1), v(t + 1))
    a("v_and_b32 %s, 3, %s\nv_bfe_u32 %s, %s, 1, 1", v(t + 2), v(t), v(t + 3), v(t))
    a("v_add3_u32 %s, %s, %s, %s", v(t + 1), v(t + 1), v(t + 2), v(t + 3))
    a("v_mul_u32_u24 %s, 80, %s\nv_subrev_u32 %s, 638, %s", v(t + 2), v(t), v(t + 2), v(t + 2))
    a("v_cmp_gt_u32 vcc, 8, %s", v(t))
    a("v_cndmask_b32 %s, %s, %s, vcc", v(t + 1), v(t + 2), v(t + 1))
    a("v_lshl_add_u32 %s, %s, 4, %s", v(dst), v(t + 1), v(dst))

def pat_q(a, dst, t):
    L = v(vLane)
    a("v_lshrrev_b32 %s, 2, %s\nv_mul_u32_u24 %s, 3840, %s", v(t), L, v(dst), v(t))
    a("v_and_b32 %s, 3, %s\nv_bfe_u32 %s, %s, 1, 1\nv_add_u32 %s, %s, %s", v(t), L, v(t + 1), L, v(t), v(t), v(t + 1))
    a("v_lshl_add_u32 %s, %s, 4, %s", v(dst), v(t), v(dst))

def pat_wo(a, dst, sm, t):
    L = v(vLane)
    a("s_lshl_b32 s60, %s, 6", sm)
    a("v_add_u32 %s, s60, %s", v(t), L)
    a("v_mul_u32_u24 %s, 6554, %s\nv_lshrrev_b32 %s, 16, %s", v(t + 1), v(t), v(t + 1), v(t + 1))
    a("v_mul_u32_u24 %s, 10, %s\nv_sub_u32 %s, %s, %s", v(t + 2), v(t + 1), v(t), v(t), v(t + 2))
    a("v_lshlrev_b32 %s, 4, %s", v(dst), v(t))
    a("v_lshrrev_b32 %s, 5, %s", v(t), v(t + 1))
    a("v_bfe_u32 %s, %s, 2, 2", v(t + 2), v(t + 1))
    a("v_lshrrev_b32 %s, 1, %s\nv_add_u32 %s, %s, %s\nv_lshlrev_b32 %s, 3, %s", v(t + 3), v(t + 2), v(t + 3), v(t + 3), v(t + 2), v(t + 3), v(t + 3))
    a("v_mad_u32_u24 %s, %s, 40, %s", v(t + 3), v(t), v(t + 3))
    a("v_lshl_add_u32 %s, %s, 2, %s", v(t + 2), v(t), v(t + 2))
    a("v_mul_u32_u24 %s, 40, %s\nv_subrev_u32 %s, 2544, %s", v(t + 2), v(t + 2), v(t + 2), v(t + 2))
    a("v_cmp_gt_u32 vcc, 16, %s", v(t))
    a("v_cndmask_b32 %s, %s, %s, vcc", v(t + 2), v(t + 2), v(t + 3))
    a("v_bfe_u32 %s, %s, 4, 1\nv_and_b32 %s, 3, %s", v(t), v(t + 1), v(t + 1), v(t + 1))
    a("v_lshl_add_u32 %s, %s, 2, %s", v(t), v(t), v(t + 1))
    a("v_add_u32 %s, %s, %s", v(t), v(t), v(t + 2))
    a("v_mad_u32_u24 %s, %s, s61, %s", v(dst), v(t), v(dst))

def addr_regs(a):
    L = v(vLane); t = TMP
    A, B, C, D, E = v(t), v(t + 1), v(t + 2), v(t + 3), v(t + 4)
    a("v_bfe_u32 %s, %s, 2, 2", A, L)
    a("v_lshrrev_b32 %s, 5, %s", B, L)
    a("v_lshlrev_b32 %s, 2, %s\nv_lshl_add_u32 %s, %s, 1, %s", C, A, C, B, C)
    a("v_mul_u32_u24 %s, 176, %s", C, C)
    a("v_bfe_u32 %s, %s, 4, 1\nv_bfe_u32 %s, %s, 1, 1\nv_lshl_add_u32 %s, %s, 1, %s", D, L, E, L, D, D, E)
    a("v_and_b32 %s, 1, %s", E, L)
    a("v_lshl_add_u32 %s, %s, 3, %s\nv_lshl_add_u32 %s, %s, 5, %s", v(vWkv0), D, C, v(vWkv0), E, v(vWkv0))
    a("v_add_u32 %s, %d, %s", v(vWkv1), 20 * 2816, v(vWkv0))
    a("v_lshl_add_u32 %s, %s, 4, %s\nv_lshl_add_u32 %s, %s, 3, %s", v(vWm0), D, C, v(vWm0), E, v(vWm0))
    a("v_add_u32 %s, %d, %s", v(vWm1), 20 * 2816, v(vWm0))
    a("v_lshl_add_u32 %s, %s, 3, %s\nv_lshlrev_b32 %s, 6, %s", C, B, A, C, C)
    a("v_lshl_add_u32 %s, %s, 3, %s\nv_lshl_add_u32 %s, %s, 5, %s", C, D, C, C, E, C)
    a("v_add_u32 %s, %d, %s", v(vWq), QI, C)
    a("v_lshlrev_b32 %s, 4, %s\nv_lshl_add_u32 %s, %s, 2, %s", C, B, C, A, C)
    a("v_bfe_u32 %s, %s, 4, 1\nv_lshl_add_u32 %s, %s, 1, %s", D, L, C, D, C)
    a("v_mul_u32_u24 %s, 176, %s", C, C)
    a("s_mul_i32 s52, %s, 28160\nv_add_u32 %s, s52, %s", sW, C, C)
    a("v_bfe_u32 %s, %s, 1, 1", D, L)
    a("v_lshl_add_u32 %s, %s, 6, %s\nv_lshl_add_u32 %s, %s, 5, %s", v(vHkv), D, C, v(vHkv), E, v(vHkv))
    a("v_lshl_add_u32 %s, %s, 4, %s\nv_lshl_add_u32 %s, %s, 3, %s\nv_add_u32 %s, 144, %s", v(vHm), D, C, v(vHm), E, v(vHm), v(vHm), v(vHm))
    a("v_lshrrev_b32 %s, 2, %s\nv_mul_u32_u24 %s, 160, %s\nv_and_b32 %s, 3, %s", C, L, C, C, D, L)
    a("v_lshl_add_u32 %s, %s, 3, %s\nv_add_u32 %s, %d, %s", C, D, C, v(vWo0), WOI, C)
    a("v_add_u32 %s, %d, %s", v(vWo1), 10 * 5120, v(vWo0))
    a("v_bfe_u32 %s, %s, 4, 1\nv_lshrrev_b32 %s, 5, %s\nv_lshl_add_u32 %s, %s, 1, %s", C, L, D, L, C, C, D)
    a("v_and_b32 %s, 15, %s", D, L)
    a("v_lshlrev_b32 %s, 9, %s\nv_lshl_add_u32 %s, %s, 4, %s", E, C, E, D, E)
    a("s_and_b32 s52, %s, 1\ns_lshl_b32 s52, s52, 8\nv_add_u32 %s, s52, %s", sW, v(vXst), E)
    a("v_lshlrev_b32 %s, 3, %s", v(vStSt), D)
    a("v_bfe_u32 %s, %s, 4, 1", C, L)
    a("v_lshl_add_u32 %s, %s, 10, %s\nv_lshl_add_u32 %s, %s, 9, %s", E, C, v(vStSt), v(vStLd), B, E)
    a("v_mul_u32_u24 %s, 20480, %s\nv_lshl_add_u32 %s, %s, 9, %s\nv_lshl_add_u32 %s, %s, 4, %s", E, C, E, B, E, v(vOst), D, E)
    a("v_lshrrev_b32 %s, 4, %s", C, L)
    a("v_lshlrev_b32 %s, 9, %s\nv_lshl_add_u32 %s, %s, 4, %s\nv_add_u32 %s, 256, %s", E, C, E, D, E, v(vHx), E)
    a("v_lshl_add_u32 %s, %s, 8, %s", v(vHSt), C, v(vStSt))
    a("s_cmp_eq_u32 %s, 0\ns_cselect_b32 s52, 0x80000000, 0", sR)
    a("v_or_b32 %s, s52, %s\nv_or_b32 %s, s52, %s", v(vHx), v(vHx), v(vHSt), v(vHSt))
    a("v_and_b32 %s, 31, %s\nv_mul_u32_u24 %s, 144, %s\nv_add_u32 %s, %s, %s", C, L, E, B, C, C, E)
    a("s_lshl_b32 s52, %s, 5\ns_add_u32 s52, s52, 2\nv_add_u32 %s, s52, %s", sW, C, C)
    a("v_mul_u32_u24 %s, 48, %s\nv_mul_u32_u24 %s, 80, %s\nv_add_u32 %s, %d, %s", v(vKrec), C, C, C, v(vVrec), REC_V, C)
    a("v_lshlrev_b32 %s, 8, %s\nv_add_u32 %s, %d, %s", v(vCs), B, v(vCs), SP, v(vCs))
    a("v_bfe_u32 %s, %s, 4, 1\nv_lshlrev_b32 %s, 8, %s\nv_lshl_add_u32 %s, %s, 6, %s", C, L, C, C, v(vHcs), B, C)
    a("v_add_u32 %s, %d, %s", v(vHcs), SP, v(vHcs))
```

```python
from gen1 import *
PARKV = 240
XT = 212
M32 = "v_mfma_f32_32x32x16_bf16"
M16 = "v_mfma_f32_16x16x32_bf16"
_uid = [0]
def uid():
    _uid[0] += 1
    return _uid[0]

def gemm(a, slots, depth, hook=None, ring=RING, ringn=9):
    u = uid()
    rs = [i for i, s in enumerate(slots) if "rd" in s]
    pos = {i: k for k, i in enumerate(rs)}
    def issue(k):
        if k >= len(rs): return
        s = slots[rs[k]]; r = ring + 4 * (k % ringn)
        for h, (ad, off) in enumerate(s["rd"]):
            a("ds_read_b64_tr_b16 %s, %s offset:%d", v(r + 2 * h, 2), v(ad), off, tag=("g", u, k))
    for k in range(depth): issue(k)
    for i, s in enumerate(slots):
        if s.get("pre"): s["pre"]()
        if "rd" in s:
            k = pos[i]; A = v(ring + 4 * (k % ringn), 4)
            a.wait(vm=s.get("vm"), lg=("g", u, k))
        else:
            A = s["A"]; a.wait(vm=s.get("vm"), lg=s.get("lg"))
        D = s["acc"] if isinstance(s["acc"], str) else v(s["acc"], s["n"])
        a("%s %s, %s, %s, %s", s["op"], D, A, s["B"], s.get("c", D))
        if "rd" in s: issue(pos[i] + depth)
        if hook: hook(i)

def rd_kvm(s, win):
    hi = s >= 20; s2 = s - 20 * hi
    ad = (vWm1 if hi else vWm0) if win == 128 else (vWkv1 if hi else vWkv0)
    return [(ad, s2 * 2816 + u * 176 + win) for u in (0, 1)]
def rd_q(s): return [(vWq, s * 1024 + u * 256) for u in (0, 1)]

def fills(a, which):
    F = v(XT, 4)
    for kind, i in which:
        if kind == "o": o_store(a, i, F, F, F)
        elif kind == "x": x_store(a, i, F, F, F, v(XT, 2))
        elif kind == "kv": kv_store(a, i, F, F)

def o_store(a, i, d0, d1, d2):
    a("s_mul_i32 s52, %s, 40960\ns_lshl_b32 s53, %s, 10\ns_add_u32 s52, s52, %d\ns_add_u32 s53, s53, s52", sT, sHP, OB[i])
    a("s_lshl_b32 s54, %s, 8\ns_add_u32 s54, s54, s52\ns_add_u32 s54, s54, 16384", sHP)
    a("buffer_store_dwordx4 %s, %s, %s, s53 offen sc1", d0, v(vOst), srd(S_WS))
    a("buffer_store_dwordx4 %s, %s, %s, s53 offen offset:256 sc1", d1, v(vOst), srd(S_WS))
    a("s_mov_b64 exec, 0xffffffff")
    a("buffer_store_dwordx4 %s, %s, %s, s54 offen sc1", d2, v(vOst), srd(S_WS))
    a("s_mov_b64 exec, -1")

def x_store(a, i, d0, d1, d2, dst):
    a("s_lshr_b32 s52, %s, 1\ns_mul_i32 s52, s52, 40960\ns_mul_i32 s53, %s, 5120\ns_add_u32 s52, s52, s53\ns_add_u32 s52, s52, %d\ns_add_u32 s53, s52, 4096", sU, sC, XB[i])
    a("s_lshl_b32 s54, %s, 10\ns_lshl_b32 s55, %s, 7\ns_add_u32 s54, s54, s55\ns_add_u32 s54, s54, %d", sU, sC, ST[i])
    a("buffer_store_dwordx4 %s, %s, %s, s52 offen sc1", d0, v(vXst), srd(S_WS))
    a("buffer_store_dwordx4 %s, %s, %s, s52 offen offset:2048 sc1", d1, v(vXst), srd(S_WS))
    a("s_mov_b32 exec_lo, 0xffff\ns_mov_b32 exec_hi, 0xffff")
    a("buffer_store_dwordx4 %s, %s, %s, s53 offen sc1", d2, v(vXst), srd(S_WS))
    if dst is not None: st_store(a, dst)
    else: a("s_mov_b64 exec, -1")
def st_store(a, dst):
    a("s_mov_b64 exec, 0xffff")
    a("buffer_store_dwordx2 %s, %s, %s, s54 offen sc1", dst, v(vStSt), srd(S_WS))
    a("s_mov_b64 exec, -1")

def kv_store(a, i, d0, d1):
    t = TMP
    a("v_lshrrev_b32 %s, 4, %s\nv_mul_u32_u24 %s, 384, %s\nv_and_b32 %s, 15, %s\nv_lshl_add_u32 %s, %s, 4, %s", v(t), v(vLane), v(t), v(t), v(t + 1), v(vLane), v(t), v(t + 1), v(t))
    a("s_lshl_b32 s52, %s, 4\ns_add_u32 s52, s52, %s\ns_lshl_b32 s52, s52, 12\ns_add_u32 s52, s52, %d", sHP, sR, KVB[i])
    a("s_lshr_b32 s53, %s, 1\ns_mul_i32 s53, s53, 1920\ns_add_u32 s52, s52, s53\ns_and_b32 s53, %s, 1\ns_lshl_b32 s54, s53, 8\ns_add_u32 s52, s52, s54", sW, sW)
    a("s_cmp_eq_u32 s53, 0\ns_cselect_b32 s54, -1, 0x00ff00ff\ns_and_b32 s55, s54, 0xffff")
    a("s_mov_b32 exec_lo, s54\ns_mov_b32 exec_hi, s54")
    a("buffer_store_dwordx4 %s, %s, %s, s52 offen sc1", d0, v(t), srd(S_WS))
    a("s_mov_b32 exec_lo, s55\ns_mov_b32 exec_hi, 0")
    a("buffer_store_dwordx4 %s, %s, %s, s52 offen offset:1536 sc1", d1, v(t), srd(S_WS))
    a("s_mov_b64 exec, -1")

def l1_startup(a):
    PAT = RING
    RP = 24
    t = TMP
    a("s_movk_i32 s61, 1280")
    a("s_lshr_b32 s52, s2, 3\ns_lshl_b32 s52, s52, 2\ns_add_u32 s52, s52, %s\ns_lshl_b32 s52, s52, 10", sW)
    a("s_min_u32 s52, s52, (L_end-L_start-1024)&0xfffffff0")
    a("v_add_u32 %s, s52, %s", v(t + 8), v(vL16))
    a("global_load_dwordx4 %s, %s, s[84:85]", v(56, 4), v(t + 8), tag="pf")
    pat_q(a, PAT + 11, t)
    a("s_mul_i32 s62, %s, 80", sHP)
    for j in range(3):
        a("s_lshl_b32 s52, %s, 4\ns_add_u32 s52, s52, %s\ns_add_u32 s52, s52, %d", sW, sR, 64 * j)
        pat_kvm(a, PAT + 13 + j, "s52", t)
        a("s_sub_u32 s53, s52, 110\ns_mul_i32 s53, s53, %d", 16 * 3840)
        a("v_add_u32 %s, s53, %s", v(t), v(PAT + 11))
        a("s_cmp_lt_u32 s52, 110\ns_cselect_b64 vcc, -1, 0")
        a("v_cndmask_b32 %s, %s, %s, vcc", v(PAT + 13 + j), v(t), v(PAT + 13 + j))
        a("s_cmp_lt_u32 s52, 150\ns_cselect_b32 s53, 0, 0x80000000\ns_lshl_b32 s52, s52, 10\ns_or_b32 s52, s52, s53")
        a("v_or_b32 %s, s53, %s", v(PAT + 13 + j), v(PAT + 13 + j))
        a("v_add_u32 %s, s52, %s", v(PAT + 17 + j), v(vL16))
        a("buffer_load_dwordx4 %s, %s, %s, s62 offen", v(RP + 8 * j, 4), v(PAT + 13 + j), srd(S_WA), tag="rp")
        a("buffer_load_dwordx4 %s, %s, %s, s62 offen", v(RP + 8 * j + 4, 4), v(PAT + 13 + j), srd(S_WB), tag="rp")
    a("s_lshl_b32 s52, %s, 1\ns_add_u32 s52, s52, %s\ns_lshl_b32 s52, s52, 2\ns_add_u32 s52, s52, %s", sR, sH64, sW)
    pat_wo(a, PAT + 16, "s52", t)
    a("s_cmp_lt_u32 s52, 100\ns_cselect_b32 s53, 0, 0x80000000\ns_lshl_b32 s52, s52, 10\ns_or_b32 s52, s52, s53")
    a("v_or_b32 %s, s53, %s", v(PAT + 16), v(PAT + 16))
    a("v_add_u32 %s, s52, %s", v(PAT + 20), v(vL16))
    a("s_mul_i32 s63, %s, 160", sC)
    a("buffer_load_dwordx4 %s, %s, %s, s63 offen", v(RP + 24, 4), v(PAT + 16), srd(S_WOA), tag="rp")
    a("buffer_load_dwordx4 %s, %s, %s, s63 offen", v(RP + 28, 4), v(PAT + 16), srd(S_WOB), tag="rp")
    L = v(vLane)
    a("v_lshrrev_b32 %s, 2, %s\nv_mul_u32_u24 %s, 1280, %s", v(t), L, v(t), v(t))
    a("v_lshrrev_b32 %s, 4, %s\nv_xor_b32 %s, %s, %s\nv_and_b32 %s, 3, %s", v(t + 1), L, v(t + 1), v(t + 1), L, v(t + 1), v(t + 1))
    a("v_lshl_add_u32 %s, %s, 4, %s", v(PAT + 12), v(t + 1), v(t))
    a("s_mul_i32 s86, %s, 40960\ns_add_u32 s87, s86, 20480", sT)
    pats_done = set()
    def issue_period(p):
        lo = 0 if p == 0 else (11 * (p - 1) + 10) // 4 + 1
        hi = min((11 * p + 10) // 4, 27)
        for n in range(lo, hi + 1):
            if n < 11:
                a("s_add_u32 s52, %s, %d", sW, 4 * n)
                pat_kvm(a, PAT + n, "s52", t)
            a("s_lshl_b32 s52, %s, 10\ns_add_u32 s52, s52, %d", sW, 4096 * n)
            if n == 27:
                a("s_cmp_lt_u32 %s, 2\ns_cselect_b32 s52, s52, 0x30000", sW)
            a("s_mov_b32 m0, s52")
            a("s_add_u32 s53, s62, %d", (n // 11) * 256 * 3840)
            a("buffer_load_dwordx4 %s, %s, s53 offen lds", v(PAT + n % 11), srd(S_WA), tag=("p", p))
        a("s_lshl_b32 s52, %s, 10\ns_add_u32 s52, s52, %d\ns_mov_b32 m0, s52", sW, QI + 4096 * p)
        a("s_mul_i32 s53, %s, %d\ns_add_u32 s53, s53, s62\ns_add_u32 s53, s53, %d", sW, 16 * 3840, p * 64 * 3840)
        a("buffer_load_dwordx4 %s, %s, s53 offen lds", v(PAT + 11), srd(S_WA), tag=("p", p))
        for un in (2 * p, 2 * p + 1):
            a("buffer_load_dwordx4 %s, %s, %s, s86 offen offset:%d", ag(8 * un, 4), v(PAT + 12), srd(S_X), 64 * un, tag=("p", p))
            a("buffer_load_dwordx4 %s, %s, %s, s87 offen offset:%d", ag(8 * un + 4, 4), v(PAT + 12), srd(S_X), 64 * un, tag=("p", p))
    for p in range(7): issue_period(p)
    addr_regs(a)
    SW, SR0, SR1 = XT + 4, XT + 5, XT + 6
    a("s_lshl_b32 s52, %s, 11\ns_add_u32 s52, s52, %d", sW, STG)
    a("v_add_u32 %s, s52, %s", v(SW), v(vL16))
    a("v_and_b32 %s, 31, %s\nv_lshlrev_b32 %s, 6, %s\nv_add_u32 %s, s52, %s", v(t), L, v(t), v(t), v(t), v(t))
    a("v_bfe_u32 %s, %s, 2, 2\nv_lshrrev_b32 %s, 5, %s\nv_xor_b32 %s, %s, %s", v(t + 1), L, v(t + 2), L, v(t + 1), v(t + 1), v(t + 2))
    a("v_lshl_add_u32 %s, %s, 4, %s", v(SR0), v(t + 1), v(t))
    a("v_xor_b32 %s, 32, %s", v(SR1), v(SR0))
    for i in range(4): a("v_mov_b32 %s, -1", v(XT + i))
    for i in range(4): a("v_mov_b32 %s, 0x3f803f80", v(XT + 8 + i))
    ONES = v(XT + 8, 4)
    SUMA, SQA = PHIF - 0 + 0, XT + 12
    G1 = RING + 24
    for p in range(10):
        a.wait(vm=("p", p))
        for un in (2 * p, 2 * p + 1):
            a("ds_write_b128 %s, %s", v(SW), ag(8 * un, 4))
            a("ds_write_b128 %s, %s offset:1024", v(SW), ag(8 * un + 4, 4))
            a("ds_read_b128 %s, %s", ag(8 * un, 4), v(SR0), tag=("xf", un))
            a("ds_read_b128 %s, %s", ag(8 * un + 4, 4), v(SR1), tag=("xf", un))
        a("s_barrier")
        if p == 0:
            for j in range(3):
                a("s_mul_i32 s52, %s, 153600\ns_add_u32 s53, s52, %d\ns_add_u32 s52, s52, %d", sHP, PW[1], PW[0])
                a("buffer_store_dwordx4 %s, %s, %s, s52 offen sc1", v(RP + 8 * j, 4), v(PAT + 17 + j), srd(S_WS))
                a("buffer_store_dwordx4 %s, %s, %s, s53 offen sc1", v(RP + 8 * j + 4, 4), v(PAT + 17 + j), srd(S_WS))
            a("s_mul_i32 s52, %s, 102400\ns_add_u32 s53, s52, %d\ns_add_u32 s52, s52, %d", sC, PO[1], PO[0])
            a("buffer_store_dwordx4 %s, %s, %s, s52 offen sc1", v(RP + 24, 4), v(PAT + 20), srd(S_WS))
            a("buffer_store_dwordx4 %s, %s, %s, s53 offen sc1", v(RP + 28, 4), v(PAT + 20), srd(S_WS))
            fills(a, [("o", 0), ("x", 0), ("kv", 0)])
        if p + 7 < 10: issue_period(p + 7)
        if p == 3:
            a("v_and_b32 %s, 15, %s\nv_mul_u32_u24 %s, 1280, %s\nv_lshrrev_b32 %s, 4, %s\nv_lshl_add_u32 %s, %s, 4, %s", v(t), L, v(t), v(t), v(t + 1), L, v(t), v(t + 1), v(t))
            a("v_and_b32 %s, 0x80000000, %s\nv_or_b32 %s, %s, %s", v(t + 1), v(vHx), v(t), v(t), v(t + 1))
            a("s_mul_i32 s52, %s, %d\ns_mul_i32 s53, %s, 320\ns_add_u32 s52, s52, s53\ns_sub_u32 s52, s52, 20480\ns_max_i32 s52, s52, 0", sR, 128 * 1280, sW)
            for i in range(5):
                a("buffer_load_dwordx4 %s, %s, %s, s52 offen offset:%d", v(HXF + 4 * i, 4), v(t), srd(S_X), 64 * i, tag="hx")
            a("v_and_b32 %s, 15, %s\nv_mul_u32_u24 %s, 1280, %s\nv_lshrrev_b32 %s, 4, %s\nv_lshl_add_u32 %s, %s, 3, %s", v(t), L, v(t), v(t), v(t + 1), L, v(t), v(t + 1), v(t))
            a("s_mul_i32 s52, %s, 20480\ns_add_u32 s52, s52, s63", sU)
            for i in range(5):
                a("buffer_load_dwordx2 %s, %s, %s, s52 offen offset:%d", v(RES + 2 * i, 2), v(t), srd(S_X), 32 * i, tag="res")
        if p == 9:
            a("s_and_b32 s52, s2, 3\ns_lshl_b32 s52, s52, 6\ns_cmp_eq_u32 %s, 0\ns_cselect_b32 s53, 1, 0", sW)
            a("v_mov_b32 %s, s52\nv_mov_b32 %s, 1", v(t), v(t + 1))
            a("s_mov_b32 exec_lo, s53\ns_mov_b32 exec_hi, 0")
            lb = a.newlabel("L_na")
            a("s_cbranch_execz %s", lb)
            a("buffer_atomic_add %s, %s, %s, 0 offen sc1", v(t + 1), v(t), srd(S_DBG))
            a.vm.pop()
            a.label(lb)
            a("s_mov_b64 exec, -1")
        slots = []
        for s in range(4 * p, 4 * p + 4):
            B = ag(4 * s, 4); c = {"c": "0"} if s == 0 else {}
            first = {"pre": (lambda un=s // 2: a.wait(lg=("xf", un)))}
            slots += [dict(op=M32, acc=SUMA, n=16, A=ONES, B=B, **first, **c), dict(op=M32, acc=SQA, n=16, A=B, B=B, **c),
                      dict(op=M32, acc=AK, n=16, rd=rd_kvm(s, 0), B=B, **c), dict(op=M32, acc=AV, n=16, rd=rd_kvm(s, 64), B=B, **c),
                      dict(op=M32, acc=AM, n=16, rd=rd_kvm(s, 128), B=B, **c), dict(op=M32, acc=AQ, n=16, rd=rd_q(s), B=B, **c)]
        gemm(a, slots, 2, ring=G1, ringn=3)
    return SUMA, SQA, ONES

def cs_pass(a, which, ONES, acc=160):
    t = TMP
    a("s_mul_i32 s52, %s, 28160\ns_mul_i32 s53, %s, 10240", sW, sW)
    a("v_add_u32 %s, s52, %s\nv_add_u32 %s, s52, %s\nv_add_u32 %s, s53, %s", v(t), v(vWkv0), v(t + 1), v(vWm0), v(t + 2), v(vWq))
    slots = []
    for s in range(10):
        c = {"c": "0"} if s == 0 else {}
        for k, (ad, off) in enumerate([(t, 0), (t, 64), (t + 1, 128)]):
            slots.append(dict(op=M32, acc=ag(acc + 16 * k, 16), n=16, rd=[(ad, s * 2816 + u * 176 + off) for u in (0, 1)], B=ONES, **c))
        slots.append(dict(op=M32, acc=ag(acc + 48, 16), n=16, rd=[(t + 2, s * 1024 + u * 256) for u in (0, 1)], B=ONES, **c))
    gemm(a, slots, 5)
    a("s_lshl_b32 s52, %s, 9\ns_add_u32 s52, s52, %d\nv_add_u32 %s, s52, %s", sW, CSP, v(t), v(vCs))
    a("s_mov_b32 exec_lo, 1\ns_mov_b32 exec_hi, 1")
    for i in range(16): a("ds_write_b128 %s, %s offset:%d", v(t), ag(acc + 4 * i, 4), 16 * i)
    a("s_mov_b64 exec, -1")
    a("s_waitcnt lgkmcnt(0)\ns_barrier")
    a("s_lshl_b32 s52, %s, 7\ns_add_u32 s52, s52, 153600\nv_lshlrev_b32 %s, 2, %s\nv_add_u32 %s, s52, %s", sW, v(t), v(vLane), v(t), v(t))
    a("s_mov_b64 exec, 0xffffffff")
    for p in range(4): a("ds_read_b32 %s, %s offset:%d", v(t + 1 + p), v(t), CSP + 512 * p)
    a("s_waitcnt lgkmcnt(0)")
    a("v_add_f32 %s, %s, %s\nv_add_f32 %s, %s, %s\nv_add_f32 %s, %s, %s", v(t + 1), v(t + 1), v(t + 2), v(t + 3), v(t + 3), v(t + 4), v(t + 1), v(t + 1), v(t + 3))
    a("ds_write_b32 %s, %s offset:%d", v(t), v(t + 1), CS[which])
    a("s_mov_b64 exec, -1")
    a("s_waitcnt lgkmcnt(0)\ns_barrier")

def stats_fin(a, S, Q, NM, RS):
    a("s_mov_b32 s56, 0x%08x" % f32bits(1.0 / 640))
    a("v_mul_f32 %s, s56, %s\nv_mul_f32 %s, s56, %s", v(NM), v(S), v(RS), v(Q))
    a("v_fma_f32 %s, -%s, %s, %s", v(RS), v(NM), v(NM), v(RS))
    a("v_max_f32 %s, 0, %s\nv_add_f32 %s, 0x%08x, %s" % (v(RS), v(RS), v(RS), f32bits(1e-5), v(RS)))
    a("v_rsq_f32 %s, %s\nv_sub_f32 %s, 0, %s", v(RS), v(RS), v(NM), v(NM))

import struct
def f32bits(x): return struct.unpack("<I", struct.pack("<f", x))[0]

def halo_mfma(a, l1, ONES=None):
    slots = []
    for i in range(5):
        B = v(HXF + 4 * i, 4); c = {"c": "0"} if i == 0 else {}
        for t5 in range(5):
            rd = [(vHkv, i * 5632 + u * 176 + 8 * t5) for u in (0, 1)] if t5 < 4 else [(vHm, i * 5632 + u * 176) for u in (0, 1)]
            slots.append(dict(op=M16, acc=HAC + 4 * t5, n=4, rd=rd, B=B, vm="hx", **c))
        if l1:
            slots.append(dict(op=M16, acc=192, n=4, A=B, B=B, **c))
            slots.append(dict(op=M16, acc=196, n=4, A=ONES, B=B, **c))
    gemm(a, slots, 6)

def halo_dump(a, l1):
    n = 7 if l1 else 5
    a("s_mul_i32 s52, %s, 7168\ns_add_u32 s52, s52, %d\nv_add_u32 %s, s52, %s", sW, HP, v(TMP), v(vL16))
    for i in range(n):
        a("ds_write_b128 %s, %s offset:%d", v(TMP), v(HAC + 4 * i, 4) if i < 5 else v(192 + 4 * (i - 5), 4), 1024 * i)

def halo_fin(a, l1, which, HS=None):
    t = TMP; L = v(vLane); b = HXF
    a("s_lshl_b32 s52, %s, 10\ns_add_u32 s52, s52, %d\nv_add_u32 %s, s52, %s\nv_add_u32 %s, %d, %s", sW, HP, v(t), v(vL16), v(t + 1), HP, v(vL16))
    for p in range(4):
        a("ds_read_b128 %s, %s offset:%d", v(b + 4 * p, 4), v(t), 7168 * p, tag="hf")
        a("ds_read_b128 %s, %s offset:%d", v(b + 16 + 4 * p, 4), v(t + 1), 7168 * p + 4096, tag="hf")
    a("s_lshl_b32 s52, %s, 4\nv_add_u32 %s, s52, %s", sW, v(t + 2), v(vHcs))
    a("ds_read_b128 %s, %s offset:%d", v(b + 32, 4), v(t + 2), CS[which], tag="hf")
    a("v_lshrrev_b32 %s, 5, %s\nv_mul_u32_u24 %s, 48, %s\nv_sub_u32 %s, %s, %s", v(t + 2), L, v(t + 2), v(t + 2), v(t + 2), v(vHcs), v(t + 2))
    a("ds_read_b128 %s, %s offset:%d", v(b + 36, 4), v(t + 2), CS[which] + 144, tag="hf")
    if l1:
        a("v_and_b32 %s, 15, %s\nv_lshrrev_b32 %s, 2, %s\nv_lshl_add_u32 %s, %s, 4, %s\nv_lshlrev_b32 %s, 4, %s", v(t + 2), L, v(t + 3), v(t + 2), v(t + 3), v(t + 3), v(t + 2), v(t + 3), v(t + 3))
        a("v_and_b32 %s, 3, %s\nv_lshl_add_u32 %s, %s, 2, %s\nv_add_u32 %s, %d, %s", v(t + 2), L, v(t + 3), v(t + 2), v(t + 3), v(t + 3), HP, v(t + 3))
        for p in range(4):
            a("ds_read_b32 %s, %s offset:%d", v(t + 4 + p), v(t + 3), 7168 * p + 5120, tag="hf")
            a("ds_read_b32 %s, %s offset:%d", v(t + 8 + p), v(t + 1), 7168 * p + 6144, tag="hf")
        a("s_waitcnt lgkmcnt(0)")
        for o in (4, 8):
            a("v_add_f32 %s, %s, %s\nv_add_f32 %s, %s, %s\nv_add_f32 %s, %s, %s", v(t + o), v(t + o), v(t + o + 1), v(t + o + 2), v(t + o + 2), v(t + o + 3), v(t + o), v(t + o), v(t + o + 2))
        HS = (t + 8, t + 4)
    stats_fin(a, HS[0], HS[1], t + 6, t + 10)
    a.wait(lg="hf")
    for o, cs in ((b, b + 32), (b + 16, b + 36)):
        for hlf in (0, 2):
            a("v_pk_add_f32 %s, %s, %s", v(o + hlf, 2), v(o + hlf, 2), v(o + 4 + hlf, 2))
            a("v_pk_add_f32 %s, %s, %s", v(o + 8 + hlf, 2), v(o + 8 + hlf, 2), v(o + 12 + hlf, 2))
            a("v_pk_fma_f32 %s, %s, %s, %s op_sel_hi:[1,0,1]", v(o + hlf, 2), v(cs + hlf, 2), v(t + 6, 2), v(o + hlf, 2))
            a("v_pk_add_f32 %s, %s, %s", v(o + hlf, 2), v(o + hlf, 2), v(o + 8 + hlf, 2))
            a("v_pk_mul_f32 %s, %s, %s op_sel_hi:[1,0]", v(o + hlf, 2), v(o + hlf, 2), v(t + 10, 2))
        a("v_cvt_pk_bf16_f32 %s, %s, %s\nv_cvt_pk_bf16_f32 %s, %s, %s", v(o + 4), v(o), v(o + 1), v(o + 5), v(o + 2), v(o + 3))
    a("v_bfe_u32 %s, %s, 4, 1\nv_mul_u32_u24 %s, 144, %s\nv_and_b32 %s, 15, %s\nv_add_u32 %s, %s, %s", v(t), L, v(t), v(t), v(t + 1), L, v(t), v(t), v(t + 1))
    a("v_mul_u32_u24 %s, 48, %s\nv_mul_u32_u24 %s, 80, %s", v(t + 1), v(t), v(t), v(t))
    a("s_lshl_b32 s52, %s, 3\ns_lshl_b32 s53, %s, 4\nv_add_u32 %s, s52, %s\nv_add_u32 %s, s53, %s", sW, sW, v(t + 2), v(t + 1), v(t + 3), v(t))
    a("s_mov_b64 exec, 0xffffffff")
    a("ds_write_b64 %s, %s offset:%d\nds_write_b64 %s, %s offset:%d", v(t + 2), v(b + 4, 2), REC_K, v(t + 1), v(b + 20, 2), REC_K + 32)
    a("s_mov_b32 exec_lo, 0\ns_mov_b32 exec_hi, -1")
    a("ds_write_b128 %s, %s offset:%d\nds_write_b128 %s, %s offset:%d", v(t + 3), v(b, 4), REC_V, v(t), v(b + 16, 4), REC_V + 64)
    a("s_mov_b64 exec, -1")

def pairs(base_list):
    for b, n in base_list:
        for i in range(0, n, 2): yield b + i

def scale_regs(a, lst, RS):
    for r in pairs(lst): a("v_pk_mul_f32 %s, %s, %s op_sel_hi:[1,0]", v(r, 2), v(r, 2), v(RS, 2))
def pack20(a, dst, main, mix):
    src = [main + i for i in range(16)] + [mix + i for i in range(4)]
    for i in range(10): a("v_cvt_pk_bf16_f32 %s, %s, %s", v(dst + i), v(src[2 * i]), v(src[2 * i + 1]))

def write_records(a, RS):
    scale_regs(a, [(AK, 16), (AM + 4, 8), (AV, 16)], RS)
    pack20(a, AK, AK, AM + 4)
    o = 14 * 48
    a("ds_write_b128 %s, %s offset:%d\nds_write_b128 %s, %s offset:%d\nds_write_b64 %s, %s offset:%d", v(vKrec), v(AK, 4), o, v(vKrec), v(AK + 4, 4), o + 16, v(vKrec), v(AK + 8, 2), o + 32)
    o = 14 * 80
    for i in range(4): a("ds_write_b128 %s, %s offset:%d", v(vVrec), v(AV + 4 * i, 4), o + 16 * i)
    a("ds_write_b128 %s, %s offset:%d", v(vVrec), v(AM + 8, 4), o + 64)

def attention(a, RS, oidx):
    LG = TMP; t = TMP + 8
    KR = [RING, RING + 12, RING + 24]; VR = [24, 44, XT]
    def rdk(i):
        r = KR[i % 3]; o = (14 - 2 * i) * 48
        a("ds_read_b128 %s, %s offset:%d\nds_read_b128 %s, %s offset:%d\nds_read_b64 %s, %s offset:%d", v(r, 4), v(vKrec), o, v(r + 4, 4), v(vKrec), o + 16, v(r + 8, 2), v(vKrec), o + 32, tag=("k", i))
    def rdv(i):
        r = VR[i % 3]; o = (14 - 2 * i) * 80
        for j in range(5): a("ds_read_b128 %s, %s offset:%d", v(r + 4 * j, 4), v(vVrec), o + 16 * j, tag=("v", i))
    for i in (1, 2, 3): rdk(i)
    scale_regs(a, [(AQ, 16), (AM, 4)], RS)
    pack20(a, AQ, AQ, AM)
    for i in range(8): a("v_mov_b32 %s, 0", v(LG + i))
    for i in range(8):
        r = AK if i == 0 else KR[i % 3]
        if i: a.wait(lg=("k", i))
        for j in range(10): a("v_dot2c_f32_bf16 %s, %s, %s", v(LG + i), v(AQ + j), v(r + j))
        if 1 <= i <= 4: rdk(i + 3)
        if i in (5, 6, 7): rdv(i - 4)
    lb = a.newlabel("L_nomask")
    a("s_cmp_lg_u32 %s, 0\ns_cbranch_scc1 %s", sT, lb)
    a("v_and_b32 %s, 31, %s\nv_mov_b32 %s, 0xff800000", v(t), v(vLane), v(t + 1))
    for i in range(1, 8):
        a("v_cmp_le_u32 vcc, %d, %s\nv_cndmask_b32 %s, %s, %s, vcc", 2 * i, v(t), v(LG + i), v(t + 1), v(LG + i))
    a("s_nop 1")
    a.label(lb)
    a("v_max3_f32 %s, %s, %s, %s\nv_max3_f32 %s, %s, %s, %s", v(t), v(LG), v(LG + 1), v(LG + 2), v(t + 1), v(LG + 3), v(LG + 4), v(LG + 5))
    a("v_max3_f32 %s, %s, %s, %s\nv_max_f32 %s, %s, %s", v(t), v(t), v(LG + 6), v(LG + 7), v(t), v(t), v(t + 1))
    import math
    a("s_mov_b32 s56, 0x%08x" % f32bits(20 ** -0.5 * math.log2(math.e)))
    a("v_mul_f32 %s, s56, %s", v(t), v(t))
    for i in range(8): a("v_fma_f32 %s, %s, s56, -%s", v(LG + i), v(LG + i), v(t))
    for i in range(8): a("v_exp_f32 %s, %s", v(LG + i), v(LG + i))
    a("v_pk_add_f32 %s, %s, %s\nv_pk_add_f32 %s, %s, %s", v(t, 2), v(LG, 2), v(LG + 2, 2), v(t + 2, 2), v(LG + 4, 2), v(LG + 6, 2))
    a("v_pk_add_f32 %s, %s, %s\nv_add_f32 %s, %s, %s\nv_rcp_f32 %s, %s", v(t, 2), v(t, 2), v(t + 2, 2), v(t), v(t), v(t + 1), v(t), v(t))
    O = list(pairs([(AV, 16), (AM + 8, 4)]))
    for i in range(8):
        sel = "op_sel:[0,%d,0] op_sel_hi:[1,%d,1]" % (i % 2, i % 2)
        P = v(LG + i - i % 2, 2)
        if i == 0:
            for r in O: a("v_pk_mul_f32 %s, %s, %s op_sel_hi:[1,0]", v(r, 2), v(r, 2), P)
        else:
            a.wait(lg=("v", i))
            for j, r in enumerate(O): a("v_pk_fma_f32 %s, %s, %s, %s %s", v(r, 2), v(VR[i % 3] + 2 * j, 2), P, v(r, 2), sel)
            if i + 3 <= 7: rdv(i + 3)
    scale_regs(a, [(AV, 16), (AM + 8, 4)], t)
    publish_o(a, oidx)

def publish_o(a, oidx, mix=AM + 8):
    pack20(a, AV, AV, mix)
    a("v_permlane32_swap_b32 %s, %s\nv_permlane32_swap_b32 %s, %s", v(AV + 8), v(AV + 10), v(AV + 9), v(AV + 11))
    o_store(a, oidx, v(AV, 4), v(AV + 4, 4), v(AV + 8, 4))


NMR, RSR = 210, 0

def layer1_qkv(a, mid):
    SUMA, SQA, ONES = l1_startup(a)
    halo_mfma(a, True, ONES)
    cs_pass(a, 0, ONES)
    halo_dump(a, True)
    t = TMP; L = v(vLane)
    a("s_lshl_b32 s52, %s, 12\ns_add_u32 s52, s52, %d\nv_add_u32 %s, s52, %s", sW, SQX, v(t), v(vL16))
    for i in range(4): a("ds_write_b128 %s, %s offset:%d", v(t), v(SQA + 4 * i, 4), 1024 * i)
    a("v_and_b32 %s, 31, %s\nv_bfe_u32 %s, %s, 2, 1\nv_lshl_add_u32 %s, %s, 5, %s\nv_lshlrev_b32 %s, 4, %s", v(t), L, v(t + 1), L, v(t + 1), v(t + 1), v(t), v(t + 1), v(t + 1))
    a("v_lshrrev_b32 %s, 3, %s\nv_lshl_add_u32 %s, %s, 10, %s\nv_and_b32 %s, 3, %s\nv_lshl_add_u32 %s, %s, 2, %s", v(t), v(t), v(t + 1), v(t), v(t + 1), v(t), L, v(t + 1), v(t), v(t + 1))
    a("v_add_u32 %s, s52, %s", v(t + 1), v(t + 1))
    a("ds_read_b32 %s, %s", v(t + 2), v(t + 1), tag="sq")
    for k in range(2):
        for i in range(4): a("ds_read_b128 %s, %s offset:%d", v(RING + 16 * k + 4 * i, 4), v(vCs), CS[0] + 64 * k + 16 * i, tag=("cs", k))
    a.wait(lg="sq")
    stats_fin(a, SUMA, t + 2, NMR, RSR)
    for k in range(4):
        a.wait(lg=("cs", k))
        for i in range(0, 16, 2):
            a("v_pk_fma_f32 %s, %s, %s, %s op_sel_hi:[1,0,1]", v(AK + 16 * k + i, 2), v(RING + 16 * (k % 2) + i, 2), v(NMR, 2), v(AK + 16 * k + i, 2))
        if k < 2:
            for i in range(4): a("ds_read_b128 %s, %s offset:%d", v(RING + 16 * k + 4 * i, 4), v(vCs), CS[0] + 64 * (k + 2) + 16 * i, tag=("cs", k + 2))
    write_records(a, RSR)
    a("s_waitcnt lgkmcnt(0)\ns_barrier")
    halo_fin(a, True, 0)
    mid(a)
    attention(a, RSR, 0)
```

```python
from gen2 import *
import math
CFG = dict(d_o=6, d_x=6, d_kv=6)
MAXRETRY = 200000

def parkreg(n): return ag(160 + 4 * n, 4) if n < 24 else v(PARKV + 4 * (n - 24), 4)

def bounded_retry(a, label, sleep=2):
    ok = a.newlabel("L_ok")
    a("s_cbranch_vccz %s", ok)
    a("s_add_u32 %s, %s, 1\ns_cmp_gt_u32 %s, %d\ns_cbranch_scc1 %s", sRETRY, sRETRY, sRETRY, MAXRETRY, ok)
    vm, lg = list(a.vm), list(a.lg)
    a("s_waitcnt vmcnt(0) lgkmcnt(0)\ns_sleep %d\ns_branch %s" % (sleep, label))
    a.vm, a.lg = vm, lg
    a.label(ok)

def init_wait(a):
    sk, lp = a.newlabel("L_iw"), a.newlabel("L_iwp")
    a("s_cmp_lg_u32 %s, 0\ns_cbranch_scc1 %s", sW, sk)
    vm, lg = list(a.vm), list(a.lg)
    a("v_lshlrev_b32 %s, 6, %s\ns_mov_b64 exec, 15", v(TMP), v(vLane))
    a.label(lp)
    a("buffer_load_dword %s, %s, %s, 0 offen sc1\ns_waitcnt vmcnt(0)", v(TMP + 1), v(TMP), srd(S_DBG))
    a("v_cmp_ne_u32 vcc, 64, %s", v(TMP + 1))
    bounded_retry(a, lp, 4)
    a("s_mov_b64 exec, -1")
    a.vm, a.lg = vm, lg
    a.label(sk)

def wo_dma(a, which, lo=0, hi=25):
    a("s_mul_i32 s57, %s, 102400\ns_lshl_b32 s58, %s, 10\ns_add_u32 s57, s57, s58\ns_add_u32 s57, s57, %d", sC, sW, PO[which])
    for n in range(lo, hi):
        a("s_add_u32 s52, s58, %d\ns_mov_b32 m0, s52\ns_add_u32 s53, s57, %d", WOI + 4096 * n, 4096 * n)
        a("buffer_load_dwordx4 %s, %s, s53 offen lds", v(vL16), srd(S_WS), tag="wod")

def park_base(a, which):
    a("s_mul_i32 s88, %s, 153600\ns_lshl_b32 s89, %s, 10\ns_add_u32 s88, s88, s89\ns_add_u32 s88, s88, %d", sHP, sW, PW[which])
def park_load(a, n):
    a("s_add_u32 s53, s88, %d", 4096 * n)
    a("buffer_load_dwordx4 %s, %s, %s, s53 offen", parkreg(n), v(vL16), srd(S_WS), tag="park")
def park_write(a):
    a.wait(vm="park")
    a("v_add_u32 %s, s89, %s\nv_add_u32 %s, 0x10000, %s", v(TMP), v(vL16), v(TMP + 1), v(TMP))
    for n in range(28):
        a("ds_write_b128 %s, %s offset:%d", v(TMP + n // 16), parkreg(n), 4096 * (n % 16))
def q_dma(a):
    for n in range(28, 38):
        a("s_add_u32 s52, s89, %d", 4096 * n)
        if n == 37: a("s_cmp_lt_u32 %s, 2\ns_cselect_b32 s52, s52, 0x30000", sW)
        a("s_mov_b32 m0, s52\ns_add_u32 s53, s88, %d", 4096 * n)
        a("buffer_load_dwordx4 %s, %s, s53 offen lds", v(vL16), srd(S_WS), tag="qd")

def wo_phase(a, L, after_bulk=None):
    WAC, PR, D = 64, 24, 40
    a.wait(vm="wod")
    a("s_barrier")
    a("s_mul_i32 s59, %s, 20480\ns_add_u32 s59, s59, %d\ns_add_u32 s60, s59, 16384", sU, OB[L])
    if CFG["d_o"]: a("s_sleep %d", CFG["d_o"])
    if L == 0: a.wait(vm="res")
    top = a.newlabel("L_wo")
    a.label(top)
    for i in range(4): a("buffer_load_dwordx4 %s, %s, %s, s60 offen offset:%d sc1", v(PR + 4 * i, 4), v(vL16), srd(S_WS), 1024 * i, tag="pr")
    for i in range(10):
        a("v_lshlrev_b32 %s, 16, %s\nv_and_b32 %s, 0xffff0000, %s", v(WAC + 2 * i), v(RES + i), v(WAC + 2 * i + 1), v(RES + i))
    a.wait(vm="pr")
    a("v_max3_u32 %s, %s, %s, %s", v(TMP), v(PR), v(PR + 1), v(PR + 2))
    for i in range(3, 15, 2): a("v_max3_u32 %s, %s, %s, %s", v(TMP), v(TMP), v(PR + i), v(PR + i + 1))
    a("v_max_u32 %s, %s, %s", v(TMP), v(TMP), v(PR + 15))
    a("v_cmp_eq_u32 vcc, -1, %s", v(TMP))
    bounded_retry(a, top)
    for s in range(16):
        if s % 4 == 0: a("s_add_u32 s53, s59, %d", 1024 * s)
        a("buffer_load_dwordx4 %s, %s, %s, s53 offen offset:%d sc1", ag(4 * s, 4), v(vL16), srd(S_WS), 1024 * (s % 4), tag=("o", s))
    slots = []
    for s in [16, 17, 18, 19] + list(range(16)):
        for t5 in range(5):
            ad = vWo1 if s >= 10 else vWo0
            slots.append(dict(op=M16, acc=WAC + 4 * t5, n=4, rd=[(ad, (s % 10) * 5120 + u * 2560 + 32 * t5) for u in (0, 1)],
                              B=v(PR + 4 * (s - 16), 4) if s >= 16 else ag(4 * s, 4), vm=("o", s) if s < 16 else None))
    gemm(a, slots, 7, hook=after_bulk)
    a("v_cmp_u_f32 vcc, %s, %s", v(WAC + 16), v(WAC + 16))
    bounded_retry(a, top)
    for i in range(10): a("v_cvt_pk_bf16_f32 %s, %s, %s", v(D + i), v(WAC + 2 * i), v(WAC + 2 * i + 1))
    if L < 3:
        for i in range(10): a("v_mov_b32 %s, %s", v(RES + i), v(D + i))
    for q in (0, 4, 8):
        a("v_permlane16_swap_b32 %s, %s\nv_permlane16_swap_b32 %s, %s", v(D + q), v(D + q + 2), v(D + q + 1), v(D + q + 3))
    if L == 3:
        t = TMP; Ln = v(vLane)
        a("v_and_b32 %s, 15, %s\nv_mul_u32_u24 %s, 1280, %s\nv_lshrrev_b32 %s, 9, %s\nv_lshl_add_u32 %s, %s, 4, %s", v(t), Ln, v(t), v(t), v(t + 1), v(vXst), v(t), v(t + 1), v(t))
        a("s_mul_i32 s52, %s, 20480\ns_mul_i32 s53, %s, 160\ns_add_u32 s52, s52, s53", sU, sC)
        a("buffer_store_dwordx4 %s, %s, %s, s52 offen", v(D, 4), v(t), srd(S_OUT))
        a("buffer_store_dwordx4 %s, %s, %s, s52 offen offset:64", v(D + 4, 4), v(t), srd(S_OUT))
        a("s_mov_b32 exec_lo, 0xffff\ns_mov_b32 exec_hi, 0xffff")
        a("buffer_store_dwordx4 %s, %s, %s, s52 offen offset:128", v(D + 8, 4), v(t), srd(S_OUT))
        a("s_mov_b64 exec, -1")
        return
    x_store(a, L, v(D, 4), v(D + 4, 4), v(D + 8, 4), None)
    S, Q = TMP, TMP + 1
    a("v_mov_b32 %s, 0\nv_mov_b32 %s, 0", v(S), v(Q))
    for i in range(10): a("v_dot2c_f32_bf16 %s, %s, %s\nv_dot2c_f32_bf16 %s, %s, %s", v(S), v(RES + i), v(vONES), v(Q), v(RES + i), v(RES + i))
    for sw in ("v_permlane16_swap_b32", "v_permlane32_swap_b32"):
        a("v_mov_b32 %s, %s\nv_mov_b32 %s, %s", v(S + 2), v(S), v(S + 3), v(Q))
        a("%s %s, %s\n%s %s, %s", sw, v(S), v(S + 2), sw, v(Q), v(S + 3))
        a("v_pk_add_f32 %s, %s, %s", v(S, 2), v(S, 2), v(S + 2, 2))
    st_store(a, v(S, 2))

def transition(a):
    a("s_barrier")
    park_write(a)
    q_dma(a)
    a("s_waitcnt lgkmcnt(0)\ns_barrier")

def cs_init(a, which, tiles):
    for k in tiles:
        for i in range(4): a("ds_read_b128 %s, %s offset:%d", v(AK + 16 * k + 4 * i, 4), v(vCs), CS[which] + 64 * k + 16 * i, tag=("ci", k))
def cs_mul(a, tiles):
    for k in tiles:
        a.wait(lg=("ci", k))
        scale_regs(a, [(AK + 16 * k, 16)], NMR)

def qkv_front(a, L):
    isA = L % 2 == 0; xi = L - 1; which = L % 2; t = TMP
    HS = XT
    a("s_lshl_b32 s59, %s, 11\ns_add_u32 s59, s59, %d", sT, ST[xi])
    a("s_mul_i32 s60, %s, 40960\ns_add_u32 s60, s60, %d", sT, XB[xi])
    if isA:
        a("s_lshl_b32 s61, %s, 13\ns_add_u32 s61, s61, %d", sR, ST[xi] - 1024)
        a("s_mul_i32 s62, %s, 163840\ns_mul_i32 s52, %s, 10240\ns_add_u32 s62, s62, s52\ns_add_u32 s62, s62, %d", sR, sW, XB[xi] - 40960)
    if L < 3: park_base(a, (L + 1) % 2)
    top = a.newlabel("L_qkv")
    a.label(top)
    for i in range(4): a("buffer_load_dwordx2 %s, %s, %s, s59 offen offset:%d sc1", v(t + 2 * i, 2), v(vStLd), srd(S_WS), 128 * i, tag="st")
    if isA:
        for i in range(2): a("buffer_load_dwordx2 %s, %s, %s, s61 offen offset:%d sc1", v(HS + 2 * i, 2), v(vHSt), srd(S_WS), 128 * i, tag="st")
    cs_init(a, which, (0, 1, 2))
    a.wait(vm="st")
    a("v_pk_add_f32 %s, %s, %s\nv_pk_add_f32 %s, %s, %s\nv_pk_add_f32 %s, %s, %s", v(t, 2), v(t, 2), v(t + 2, 2), v(t + 4, 2), v(t + 4, 2), v(t + 6, 2), v(t, 2), v(t, 2), v(t + 4, 2))
    if isA:
        a("v_pk_add_f32 %s, %s, %s", v(HS, 2), v(HS, 2), v(HS + 2, 2))
        a("v_add_f32 %s, %s, %s\nv_cmp_u_f32 vcc, %s, %s", v(t + 2), v(t), v(HS), v(t + 2), v(t + 2))
    else:
        a("v_cmp_u_f32 vcc, %s, %s", v(t), v(t))
    bounded_retry(a, top)
    for s in range(40):
        if s % 4 == 0: a("s_add_u32 s53, s60, %d", 1024 * s)
        a("buffer_load_dwordx4 %s, %s, %s, s53 offen offset:%d sc1", ag(4 * s, 4), v(vL16), srd(S_WS), 1024 * (s % 4), tag=("x", s))
    if isA:
        for i in range(5):
            if i % 2 == 0: a("s_add_u32 s53, s62, %d", 2048 * i)
            a("buffer_load_dwordx4 %s, %s, %s, s53 offen offset:%d sc1", v(HXF + 4 * i, 4), v(vHx), srd(S_WS), 2048 * (i % 2), tag="hx")
    def red(R, sws):
        for sw in sws:
            a("v_mov_b32 %s, %s\nv_mov_b32 %s, %s", v(R + 2), v(R), v(R + 3), v(R + 1))
            a("%s %s, %s\n%s %s, %s", sw, v(R), v(R + 2), sw, v(R + 1), v(R + 3))
            a("v_pk_add_f32 %s, %s, %s", v(R, 2), v(R, 2), v(R + 2, 2))
    red(t, ["v_permlane32_swap_b32"])
    stats_fin(a, t, t + 1, NMR, RSR)
    cs_mul(a, (0, 1, 2))
    if isA: red(HS, ["v_permlane16_swap_b32", "v_permlane32_swap_b32"])
    slots = []
    for s in range(40):
        for acc, win in ((AK, 0), (AV, 64), (AM, 128)):
            slots.append(dict(op=M32, acc=acc, n=16, rd=rd_kvm(s, win), B=ag(4 * s, 4), vm=("x", s)))
    def hook(i):
        if L < 3 and i >= 30 and (i - 30) % 3 == 0 and (i - 30) // 3 < 28: park_load(a, (i - 30) // 3)
    gemm(a, slots, 6, hook=hook)
    if isA:
        halo_mfma(a, False)
        a("v_add_f32 %s, %s, %s\nv_cmp_u_f32 vcc, %s, %s", v(t), v(AM), v(HAC + 16), v(t), v(t))
    else:
        a("v_cmp_u_f32 vcc, %s, %s", v(AM), v(AM))
    bounded_retry(a, top)
    a.wait(vm="qd")
    a("s_barrier")

def pass2(a, which, hook=None):
    cs_init(a, which, (3,)); cs_mul(a, (3,))
    gemm(a, [dict(op=M32, acc=AQ, n=16, rd=rd_q(s), B=ag(4 * s, 4)) for s in range(40)], 5, hook=hook)

def qkv_A(a, L):
    qkv_front(a, L)
    halo_dump(a, False)
    write_records(a, RSR)
    a("s_waitcnt lgkmcnt(0)\ns_barrier")
    halo_fin(a, False, 0, HS=(XT, XT + 1))
    pass2(a, 0)
    a("s_waitcnt lgkmcnt(0)\ns_barrier")
    wo_dma(a, 0)
    attention(a, RSR, L)

def phi_frags(a):
    t = TMP; Ln = v(vLane)
    for i in range(24): a("v_mov_b32 %s, 0", v(PHIF + i))
    a("v_bfe_u32 %s, %s, 3, 2\nv_and_b32 %s, 3, %s\nv_lshl_add_u32 %s, %s, 2, %s", v(t), Ln, v(t + 1), Ln, v(t), v(t), v(t + 1))
    a("v_lshrrev_b32 %s, 5, %s\nv_bfe_u32 %s, %s, 2, 1", v(t + 1), Ln, v(t + 2), Ln)
    a("v_cmp_eq_u32 vcc, %s, %s\nv_mov_b32 %s, 0x80000000\nv_cndmask_b32 %s, %s, 0, vcc", v(t + 1), v(t + 2), v(t + 3), v(t + 2), v(t + 3))
    a("v_lshl_or_b32 %s, %s, 1, %s", v(t + 2), v(t), v(t + 2))
    a("v_mul_u32_u24 %s, 960, %s\nv_add_u32 %s, %s, %s", v(t + 4), v(t + 1), v(t + 4), v(t + 4), v(t + 2))
    a("v_mul_u32_u24 %s, 160, %s\nv_add_u32 %s, %s, %s", v(t + 5), v(t + 1), v(t + 5), v(t + 5), v(t + 2))
    a("v_cmp_gt_u32 vcc, 4, %s\nv_cndmask_b32 %s, %s, 0, vcc", v(t), v(t + 3), v(t + 3))
    a("v_or_b32 %s, %s, %s\nv_or_b32 %s, %s, %s", v(t + 6), v(t + 4), v(t + 3), v(t + 7), v(t + 5), v(t + 3))
    a("s_mul_i32 s52, %s, 1600", sHP)
    for ft in range(2):
        for rho in range(20):
            ad = t + 4 + 2 * ft + (rho >= 16)
            if rho % 2: a("buffer_load_ushort %s, %s, %s, s52 offen offset:%d", v(84 + 10 * ft + rho // 2), v(ad), srd(S_PHI), rho * 40 + 32 * ft, tag="phi")
            else: a("buffer_load_ushort %s, %s, %s, s52 offen offset:%d", v(PHIF + 12 * ft + rho // 2), v(ad), srd(S_PHI), rho * 40 + 32 * ft, tag="phi")
def phi_fin(a):
    a.wait(vm="phi")
    for ft in range(2):
        for i in range(10): a("v_lshl_or_b32 %s, %s, 16, %s", v(PHIF + 12 * ft + i), v(84 + 10 * ft + i), v(PHIF + 12 * ft + i))

def feature_map(a, main, mix, order, EP=RING, EN=40, D0=XT, D1=24, out=RING):
    t = TMP
    pack20(a, main, main, mix)
    a("v_mov_b32 %s, 0\nv_mov_b32 %s, 0", v(main + 10), v(main + 11))
    a.wait(vm="phi")
    slots = [dict(op=M32, acc=(D0, D1)[ft], n=16, A=v(PHIF + 12 * ft + 4 * k, 4), B=v(main + 4 * k, 4), **({"c": "0"} if k == 0 else {})) for k in range(3) for ft in range(2)]
    gemm(a, slots, 0)
    P = [D0 + i for i in range(16)] + [D1 + i for i in range(4)]
    for op, r in (("max", t), ("min", t + 2)):
        a("v_%s3_f32 %s, %s, %s, %s", op, v(r), v(P[0]), v(P[1]), v(P[2]))
        for i in range(3, 19, 2): a("v_%s3_f32 %s, %s, %s, %s", op, v(r), v(r), v(P[i]), v(P[i + 1]))
        a("v_%s_f32 %s, %s, %s", op, v(r), v(r), v(P[19]))
    a("s_mov_b32 s56, 0x%08x\ns_mov_b32 s57, 0x%08x" % (f32bits(math.log2(math.e)), f32bits(-math.log2(math.e))))
    a("v_mul_f32 %s, s57, %s\nv_mul_f32 %s, s56, %s\nv_mov_b32 %s, s56\nv_mov_b32 %s, s57", v(t), v(t), v(t + 2), v(t + 2), v(t + 4), v(t + 6))
    for E, c, m in ((EP, t + 4, t), (EN, t + 6, t + 2)):
        for i in range(0, 20, 2): a("v_pk_fma_f32 %s, %s, %s, %s op_sel_hi:[1,0,0]", v(E + i, 2), v(P[i], 2), v(c, 2), v(m, 2))
        for i in range(20): a("v_exp_f32 %s, %s", v(E + i), v(E + i))
    for E, s in ((EP, t), (EN, t + 2)):
        a("v_pk_add_f32 %s, %s, %s", v(s, 2), v(E, 2), v(E + 2, 2))
        for i in range(4, 20, 2): a("v_pk_add_f32 %s, %s, %s", v(s, 2), v(s, 2), v(E + i, 2))
        a("v_add_f32 %s, %s, %s\nv_rcp_f32 %s, %s", v(s), v(s), v(s + 1), v(s), v(s))
    scale_regs(a, [(EP, 20)], t); scale_regs(a, [(EN, 20)], t + 2)
    F = [EP + i for i in range(20)] + [EN + i for i in range(20)]
    for i in range(20): a("v_cvt_pk_bf16_f32 %s, %s, %s", v(out + i), v(F[order[2 * i]]), v(F[order[2 * i + 1]]))

def qkv_B(a, L):
    t = TMP; Ln = v(vLane); ki = L // 2
    qkv_front(a, L)
    scale_regs(a, [(AK, 16), (AM + 4, 8), (AV, 16)], RSR)
    pack20(a, AV, AV, AM + 8)
    a("v_mov_b32 %s, 0x3f80\nv_mov_b32 %s, 0", v(AV + 10), v(AV + 11))
    feature_map(a, AK, AM + 4, list(range(40)))
    a("v_lshrrev_b32 %s, 5, %s\nv_lshlrev_b32 %s, 7, %s\nv_and_b32 %s, 31, %s\nv_add_u32 %s, %s, %s", v(t), Ln, v(t), v(t), v(t + 1), Ln, v(t), v(t), v(t + 1))
    a("s_lshl_b32 s52, %s, 5\nv_add_u32 %s, s52, %s\nv_mul_u32_u24 %s, 160, %s", sW, v(t), v(t), v(t), v(t))
    for i in range(5): a("ds_write_b128 %s, %s offset:%d", v(t), v(RING + 4 * i, 4), PHIR + 16 * i)
    for i in range(3): a("ds_write_b128 %s, %s offset:%d", v(t), v(AV + 4 * i, 4), PHIR + 80 + 16 * i)
    a("s_lshr_b32 s52, %s, 1\ns_mul_i32 s52, s52, 20480\ns_sub_u32 s52, s52, %d\ns_and_b32 s53, %s, 1\ns_lshl_b32 s53, s53, 5", sW, WOI, sW)
    a("v_add_u32 %s, s52, %s\nv_add_u32 %s, s53, %s", v(t + 2), v(vWo0), v(t + 3), v(t + 2))
    a("s_waitcnt lgkmcnt(0)\ns_barrier")
    VB, KA = 24, 40
    for ks in range(4):
        for u in (0, 1): a("ds_read_b64_tr_b16 %s, %s offset:%d", v(VB + 4 * ks + 2 * u, 2), v(t + 3), ks * 5120 + u * 2560 + 80, tag="vb")
    slots = [dict(op=M16, acc=KA + 4 * ft, n=4, rd=[(t + 2, ks * 5120 + u * 2560 + 32 * ft) for u in (0, 1)], B=v(VB + 4 * ks, 4), **({"c": "0"} if ks == 0 else {})) for ks in range(4) for ft in range(3)]
    gemm(a, slots, 3)
    for i in range(6): a("v_cvt_pk_bf16_f32 %s, %s, %s", v(KA + 12 + i), v(KA + 2 * i), v(KA + 2 * i + 1))
    a("v_permlane16_swap_b32 %s, %s\nv_permlane16_swap_b32 %s, %s", v(KA + 16), v(KA + 18), v(KA + 17), v(KA + 19))
    kv_store(a, ki, v(KA + 12, 4), v(KA + 16, 4))
    pass2(a, 1)
    a("s_barrier")
    wo_dma(a, 1)
    scale_regs(a, [(AQ, 16), (AM, 4)], RSR)
    order = []
    for g in range(4): order += [4 * g + i for i in range(4)] + [16 + 4 * g + i for i in range(4)]
    order += list(range(32, 40))
    FQ = AQ - 8
    feature_map(a, AQ, AM, order, out=FQ)
    G = [24 + 4 * i for i in range(10)] + [RING + 4 * i for i in range(6)]
    SA = XT
    a("s_lshl_b32 s59, %s, 16\ns_lshl_b32 s52, %s, 10\ns_add_u32 s59, s59, s52\ns_add_u32 s59, s59, %d", sHP, sW, KVB[ki])
    a("s_cmp_eq_u32 %s, 3\ns_cselect_b32 s61, 0xffff, -1", sW)
    a("v_mov_b32 %s, 0x3f80\nv_mov_b32 %s, 1.0", v(t), v(t + 1))
    top = a.newlabel("L_kv")
    a.label(top)
    a("s_mov_b32 exec_hi, s61")
    for p in range(16):
        a("s_add_u32 s53, s59, %d", 4096 * p)
        a("buffer_load_dwordx4 %s, %s, %s, s53 offen sc1", v(G[p], 4), v(vL16), srd(S_WS), tag=("kv", p))
    for i in range(8): a("v_mov_b32 %s, 0", v(SA + i))
    for p in range(16):
        a.wait(vm=("kv", p))
        for i in range(4): a("v_dot2c_f32_bf16 %s, %s, %s\nv_dot2c_f32_bf16 %s, %s, %s", v(SA + 2 * i), v(G[p] + i), v(t), v(SA + 2 * i + 1), v(G[p] + i), v(t + 1))
    a("s_lshl_b32 s52, %s, 6\nv_add_u32 %s, s52, %s\nv_mul_u32_u24 %s, 2731, %s\nv_lshrrev_b32 %s, 16, %s", sW, v(t + 2), Ln, v(t + 3), v(t + 2), v(t + 3), v(t + 3))
    a("v_mul_u32_u24 %s, 24, %s\nv_sub_u32 %s, %s, %s", v(t + 3), v(t + 3), v(t + 3), v(t + 2), v(t + 3))
    a("v_add_f32 %s, %s, %s\nv_add_f32 %s, %s, %s\nv_add_f32 %s, %s, %s\nv_add_f32 %s, %s, %s", v(t + 4), v(SA), v(SA + 2), v(t + 5), v(SA + 4), v(SA + 6), v(t + 4), v(t + 4), v(t + 5), v(t + 4), v(t + 4), v(t + 4))
    a("v_cmp_gt_u32 s[90:91], 21, %s\nv_cmp_u_f32 vcc, %s, %s\ns_and_b64 vcc, vcc, s[90:91]\ns_mov_b64 exec, -1", v(t + 3), v(t + 4), v(t + 4))
    bounded_retry(a, top)
    for i in range(4): a("v_cvt_pk_bf16_f32 %s, %s, %s", v(SA + 8 + i), v(SA + 2 * i), v(SA + 2 * i + 1))
    a("v_lshlrev_b32 %s, 4, %s\nv_add_u32 %s, %d, %s", v(t + 2), v(t + 2), v(t + 2), KVT, v(t + 2))
    a("ds_write_b128 %s, %s", v(t + 2), v(SA + 8, 4))
    AF = 24
    for i in range(40): a("v_mov_b32 %s, 0", v(AF + i))
    a("v_bfe_u32 %s, %s, 3, 2\nv_and_b32 %s, 3, %s\nv_lshl_add_u32 %s, %s, 2, %s\nv_lshlrev_b32 %s, 4, %s", v(t), Ln, v(t + 1), Ln, v(t), v(t), v(t + 1), v(t), v(t))
    a("v_lshrrev_b32 %s, 5, %s\nv_mul_u32_u24 %s, 1920, %s\nv_add3_u32 %s, %s, %s, %s", v(t + 1), Ln, v(t + 1), v(t + 1), v(t), v(t), v(t + 1), v(t + 1))
    a("v_sub_u32 %s, %s, %s\nv_add_u32 %s, %d, %s", v(t), v(t), v(t + 1), v(t), KVT, v(t))
    a("s_waitcnt lgkmcnt(0)\ns_barrier")
    a("s_mov_b32 exec_lo, 0x0f0f0f0f\ns_mov_b32 exec_hi, 0xf0f0f0f0")
    for k in range(5):
        for tl in range(2): a("ds_read_b128 %s, %s offset:%d", v(AF + 8 * k + 4 * tl, 4), v(t), 384 * k + 256 * tl, tag=("af", k))
    a("s_mov_b64 exec, -1")
    N1 = AK
    slots = [dict(op=M32, acc=(AV, N1)[tl], n=16, A=v(AF + 8 * k + 4 * tl, 4), B=v(FQ + 4 * k, 4), lg=("af", k), **({"c": "0"} if k == 0 else {})) for k in range(5) for tl in range(2)]
    gemm(a, slots, 0)
    a("v_add_f32 %s, 0x%08x, %s\nv_rcp_f32 %s, %s" % (v(t), f32bits(1e-6), v(N1 + 4), v(t), v(t)))
    scale_regs(a, [(AV, 16), (N1, 4)], t)
    publish_o(a, L, N1)
```

```python
import sys
from gen3 import *
def build(stage=99):
    a = Asm()
    prologue(a)
    def mid(a):
        init_wait(a)
        a("s_waitcnt lgkmcnt(0)\ns_barrier")
        wo_dma(a, 0)
    layer1_qkv(a, mid)
    def setfill():
        for i in range(4): a("v_mov_b32 %s, -1", v(XT + i))
    setfill(); fills(a, [("o", 1), ("x", 1), ("kv", 1)])
    phi_frags(a)
    park_base(a, 1)
    def hook(i):
        if i % 3 == 0 and i // 3 < 28: park_load(a, i // 3)
    wo_phase(a, 0, hook)
    transition(a)
    phi_fin(a)
    for i in range(4): a("v_mov_b32 %s, 0x3f803f80", v(XT + 8 + i))
    a.wait(vm="qd"); a("s_barrier")
    cs_pass(a, 1, v(XT + 8, 4))
    for L in (1, 2, 3):
        if L > 1 and CFG["d_x"]: a("s_sleep %d", CFG["d_x"])
        (qkv_B if L % 2 else qkv_A)(a, L)
        if L == 1:
            setfill(); fills(a, [("o", 2), ("x", 2), ("o", 3)])
        wo_phase(a, L)
        if L < 3: transition(a)
    a("s_waitcnt vmcnt(0)")
    a.label("L_end")
    return wrap(a.text(), grid=256, block=256, lds=163840, vgpr=512, accum=256)
if __name__ == "__main__":
    open(sys.argv[1] if len(sys.argv) > 1 else "k.s", "w").write(build())
```

```python
import re
NAME = "interleave_layers__sliding_local_dilated__linear_kernel_hedgehog__prompt"

_REG = re.compile(r"^(-|abs\()?([vas])(\d+)\)?$")
_RNG = re.compile(r"^(-|abs\()?([vas])\[(\d+):(\d+)\]\)?$")

def regs_of(op):
    op = op.strip()
    m = _REG.match(op)
    if m:
        return {(m.group(2), int(m.group(3)))}
    m = _RNG.match(op)
    if m:
        return {(m.group(2), i) for i in range(int(m.group(3)), int(m.group(4)) + 1)}
    if op in ("vcc", "vcc_lo", "vcc_hi"):
        return {("s", "vcc")}
    if op in ("exec", "exec_lo", "exec_hi"):
        return {("s", "exec")}
    if op == "m0":
        return {("s", "m0")}
    return set()

TRANS = ("v_exp_f32", "v_log_f32", "v_rcp_f32", "v_rsq_f32", "v_sqrt_f32", "v_sin_f32", "v_cos_f32")
RMW = ("v_fmac_f32", "v_dot2c_f32_bf16", "v_pk_fmac", "v_mac")

class Ins:
    __slots__ = ("text", "name", "kind", "rd", "wr", "A", "B", "C", "passes", "states", "wide_store", "lds_dma")
    def __init__(self, text):
        self.text = text
        t = text.split(";")[0].strip()
        parts = t.split(None, 1)
        self.name = name = parts[0]
        rest = parts[1] if len(parts) > 1 else ""
        ops, cur, depth = [], "", 0
        for ch in rest:
            if ch in "[(": depth += 1
            if ch in "])": depth -= 1
            if ch == "," and depth == 0:
                ops.append(cur.strip()); cur = ""
            else:
                cur += ch
        if cur.strip(): ops.append(cur.strip())
        mods = ""
        if ops:
            sp = ops[-1].split(None, 1)
            ops[-1] = sp[0]
            mods = sp[1] if len(sp) > 1 else ""
        R = [regs_of(o) for o in ops]
        self.rd, self.wr = set(), set()
        self.A = self.B = self.C = set()
        self.passes = 0; self.states = 1; self.wide_store = False; self.lds_dma = False
        def U(l):
            s = set()
            for x in l: s |= x
            return s
        if name.startswith("v_mfma"):
            self.kind = "mfma"
            self.wr = R[0]; self.A, self.B, self.C = R[1], R[2], R[3]
            self.rd = R[1] | R[2] | R[3]
            self.passes = 8 if "32x32" in name else 4
        elif name.startswith("v_"):
            self.kind = "valu"
            if name.startswith("v_cmp"):
                self.wr = R[0]; self.rd = U(R[1:])
            elif name.startswith("v_permlane") and "swap" in name:
                self.wr = R[0] | R[1]; self.rd = R[0] | R[1]
            elif name.startswith("v_readfirstlane") or name.startswith("v_readlane"):
                self.wr = R[0]; self.rd = U(R[1:])
            elif "_co_" in name:
                self.wr = R[0] | R[1]; self.rd = U(R[2:])
            else:
                self.wr = R[0]; self.rd = U(R[1:])
                if name.startswith(RMW) or "dpp" in mods or "quad_perm" in mods or "row_" in mods:
                    self.rd |= R[0]
                if name.startswith("v_cndmask") and len(ops) == 3:
                    self.rd |= {("s", "vcc")}
        elif name.startswith("ds_"):
            self.kind = "ds"
            if "read" in name or "permute" in name or "swizzle" in name:
                self.wr = R[0]; self.rd = U(R[1:])
            else:
                self.rd = U(R)
        elif name.startswith("buffer_") or name.startswith("global_"):
            self.kind = "vmem"
            allm = (rest + " ")
            if " lds" in (" " + mods + " ").replace("lds", " lds ") and "load" in name and re.search(r"\blds\b", mods):
                self.lds_dma = True
                self.rd = U(R) | {("s", "m0")}
            elif "load" in name:
                self.wr = R[0]; self.rd = U(R[1:])
                if "d16" in name: self.rd |= R[0]
            elif "atomic" in name:
                self.rd = U(R)
                if "sc0" in mods: self.wr = R[0]
            else:
                self.rd = U(R)
                if "x4" in name or "x3" in name:
                    self.wide_store = True
                    self.A = R[0] if name.startswith("buffer") else R[1]
        elif name.startswith("s_"):
            self.kind = "salu"
            if name == "s_nop":
                self.states = int(ops[0], 0) + 1
            elif name.startswith(("s_cmp", "s_cbranch", "s_branch", "s_waitcnt", "s_barrier", "s_sleep", "s_endpgm", "s_setprio")):
                self.rd = U(R)
            else:
                self.wr = R[0] if R else set(); self.rd = U(R[1:])
                if "saveexec" in name: self.wr |= {("s", "exec")}
        else:
            raise ValueError("unknown instr: " + text)

def need(prod, cons):
    n = 0
    pk, ck = prod.kind, cons.kind
    if pk == "valu":
        vw = {r for r in prod.wr if r[0] in "va"}
        sw = {r for r in prod.wr if r[0] == "s"}
        if ck == "mfma" and vw & cons.rd: n = max(n, 2)
        if ck == "valu":
            if cons.name.startswith("v_permlane") and vw & cons.rd: n = max(n, 2)
            if ("dpp" in cons.text or "quad_perm" in cons.text or "row_" in cons.text) and vw & cons.rd: n = max(n, 2)
            if cons.name.startswith(("v_readfirstlane", "v_readlane")) and vw & cons.rd: n = max(n, 1)
            if prod.name.startswith(TRANS) and not cons.name.startswith(TRANS) and vw & cons.rd: n = max(n, 1)
            if prod.name.startswith(TRANS) and cons.name.startswith(TRANS) and vw & cons.rd: n = max(n, 1)
            if sw & cons.rd: n = max(n, 2)
            if prod.name.startswith("v_dot2") and vw & (cons.rd | cons.wr):
                same = prod.name == cons.name
                if not (same and not (vw & (cons.rd - cons.wr))): n = max(n, 3)
        if prod.name.startswith("v_dot2") and ck in ("mfma", "ds", "vmem") and vw & cons.rd: n = max(n, 3)
        if ck == "vmem" and sw & cons.rd: n = max(n, 5)
        if ck == "salu" and sw & cons.rd: n = max(n, 1)
        if ck == "mfma" and ("s", "exec") in sw: n = max(n, 4)
    elif pk == "mfma":
        big = 12 if prod.passes == 8 else 8
        if ck == "mfma":
            if prod.wr & (cons.A | cons.B): n = max(n, big)
            if prod.wr & cons.C and not (prod.wr == cons.C and prod.passes == cons.passes): n = max(n, big - 2)
            if prod.wr & cons.wr and not (prod.wr == cons.C and prod.passes == cons.passes): n = max(n, big - 2)
        else:
            if prod.wr & (cons.rd | cons.wr): n = max(n, big)
            if ck == "valu" and prod.C & cons.wr: n = max(n, 7 if prod.passes == 8 else 3)
            if ck in ("ds", "vmem") and prod.C & cons.wr: n = max(n, 7 if prod.passes == 8 else 3)
    elif pk == "vmem":
        if prod.wide_store and prod.A & cons.wr: n = max(n, 2)
    elif pk == "ds":
        if ("b128" in prod.name or "b96" in prod.name) and "write" in prod.name and ck == "valu" and {r for r in prod.rd if r[0] in "va"} & cons.wr: n = max(n, 2)
    elif pk == "salu":
        if ("s", "m0") in prod.wr and (cons.lds_dma): n = max(n, 1)
    return n

class Asm:
    def __init__(self):
        self.items = []
        self._lab = 0
        self.vm = []
        self.lg = []
    def __call__(self, s, *a, tag=None):
        if a: s = s % a
        for ln in s.split("\n"):
            ln = ln.strip()
            if not ln: continue
            ins = Ins(ln)
            self.items.append(ins)
            if tag == "nocount": pass
            elif ins.kind == "vmem": self.vm.append(tag)
            elif ins.kind == "ds": self.lg.append(tag)
            elif ins.name == "s_waitcnt":
                m = re.search(r"vmcnt\((\d+)\)", ln)
                if m:
                    n = int(m.group(1)); self.vm = self.vm[len(self.vm) - n:] if n and n < len(self.vm) else ([] if n == 0 else self.vm)
                m = re.search(r"lgkmcnt\((\d+)\)", ln)
                if m:
                    n = int(m.group(1)); self.lg = self.lg[len(self.lg) - n:] if n and n < len(self.lg) else ([] if n == 0 else self.lg)
    def _cnt(self, q, tag):
        idx = [i for i, t in enumerate(q) if t == tag or (isinstance(tag, (list, tuple, set)) and t in tag)]
        if not idx: return None
        return len(q) - 1 - idx[-1]
    def wait(self, vm=None, lg=None):
        parts = []
        if vm is not None:
            n = self._cnt(self.vm, vm)
            if n is not None: parts.append("vmcnt(%d)" % min(n, 63))
        if lg is not None:
            n = self._cnt(self.lg, lg)
            if n is not None: parts.append("lgkmcnt(%d)" % min(n, 15))
        if parts: self("s_waitcnt " + " ".join(parts))
    def label(self, name): self.items.append(("label", name))
    def raw(self, text): self.items.append(("raw", text))
    def newlabel(self, base="L"):
        self._lab += 1
        return "%s_%d" % (base, self._lab)
    def comment(self, s): self.items.append(("raw", "    ; " + s))
    def text(self):
        out, hist = [], []
        for it in self.items:
            if isinstance(it, tuple):
                out.append(it[1] + ":" if it[0] == "label" else it[1])
                continue
            req, dist = 0, 0
            for p in reversed(hist):
                if dist >= 20: break
                n = need(p, it)
                if n > dist: req = max(req, n - dist)
                dist += p.states
            while req > 0:
                k = min(req, 16)
                nop = Ins("s_nop %d" % (k - 1))
                out.append("    " + nop.text); hist.append(nop); req -= k
            out.append("    " + it.text)
            hist.append(it)
            if len(hist) > 40: hist = hist[-24:]
        return "\n".join(out) + "\n"

HEADER_COMMENT = """; Kernarg layout for this problem (80 bytes, ptrs only, base s[0:1]):
"""

def wrap(body, grid=256, block=256, lds=0, vgpr=256, sgpr=102, accum=256, kname=NAME + "_kernel", extra_comment=""):
    s = HEADER_COMMENT + extra_comment
    s += "; @launch grid=(%d,1,1) block=(%d,1,1) lds=%d\n" % (grid, block, lds)
    s += '.amdgcn_target "amdgcn-amd-amdhsa--gfx950"\n.text\n'
    s += ".globl %s\n.p2align 8\n.type %s,@function\n%s:\n" % (kname, kname, kname)
    s += body
    s += "    s_endpgm\n"
    s += '.section .rodata,"a"\n.p2align 6\n.amdhsa_kernel %s\n' % kname
    s += "  .amdhsa_next_free_vgpr %d\n  .amdhsa_next_free_sgpr %d\n  .amdhsa_accum_offset %d\n" % (vgpr, sgpr, accum)
    s += "  .amdhsa_group_segment_fixed_size 0\n  .amdhsa_kernarg_size 80\n  .amdhsa_user_sgpr_count 2\n"
    s += "  .amdhsa_user_sgpr_kernarg_segment_ptr 1\n  .amdhsa_system_sgpr_workgroup_id_x 1\n"
    s += "  .amdhsa_float_denorm_mode_32 3\n"
    s += ".end_amdhsa_kernel\n"
    return s

class Rec:
    def __init__(self, real):
        self.real = real; self.items = []
    def __call__(self, s, *a, tag=None):
        if a: s = s % a
        for ln in s.split("\n"):
            ln = ln.strip()
            if ln: self.items.append(("i", ln, tag))
    def wait(self, vm=None, lg=None): self.items.append(("w", vm, lg))
    def label(self, n): self.items.append(("l", n, None))
    def newlabel(self, b="L"): return self.real.newlabel(b)
    def thunks(self):
        out, cur, masked = [], [], False
        for it in self.items:
            cur.append(it)
            if it[0] == "i":
                ln = it[1]
                if ln.startswith(("s_mov_b64 exec", "s_mov_b32 exec")):
                    masked = not ln.endswith("exec, -1")
                    if ln.startswith("s_mov_b32 exec"): masked = True
                    if not masked: out.append(cur); cur = []
                    continue
                if masked or (ln.startswith("s_") and not ln.startswith("s_barrier")) or ln.startswith("v_cmp"): continue
                out.append(cur); cur = []
        if cur: out.append(cur)
        return out

class Stream:
    def __init__(self, a, fn=None):
        self.a = a; self.q = []
        if fn: self.add(fn)
    def add(self, fn):
        r = Rec(self.a); fn(r); self.q += r.thunks(); return self
    def play(self, k=1):
        for _ in range(k):
            if not self.q: return
            for it in self.q.pop(0):
                if it[0] == "i": self.a(it[1], tag=it[2])
                elif it[0] == "w": self.a.wait(vm=it[1], lg=it[2])
                elif not it[1].startswith("@"): self.a.label(it[1])
    def flush(self): self.play(len(self.q))
    def front(self, fn):
        r = Rec(self.a); fn(r); self.q = r.thunks() + self.q; return self
    def _isvm(self, th): return any(it[0] == "i" and it[1].startswith(("buffer_", "global_")) for it in th)
    def play_vm(self, nvm, nother):
        while self.q:
            if self._isvm(self.q[0]):
                if nvm == 0: return
                nvm -= 1
            else:
                if nother == 0: return
                nother -= 1
            self.play(1)
    def upto(self, mark):
        idx = [i for i, th in enumerate(self.q) if any(it[0] == "l" and it[1] == mark for it in th)]
        if idx: self.play(idx[0])
    def has(self, tag): return any(it[0] == "i" and it[2] == tag for th in self.q for it in th)
    def __len__(self): return len(self.q)

class Mix:
    def __init__(self, a, bg, every):
        self.a, self.bg, self.every, self.n, self.masked = a, bg, every, 0, False
    def __call__(self, s, *args, tag=None):
        if args: s = s % args
        for ln in s.split("\n"):
            ln = ln.strip()
            if not ln: continue
            self.a(ln, tag=tag)
            if ln.startswith(("s_mov_b64 exec", "s_mov_b32 exec")):
                self.masked = not ln.endswith("exec, -1") or ln.startswith("s_mov_b32")
            if ln.startswith("s_") or ln.startswith("v_cmp") or self.masked: continue
            self.n += 2 if ln.startswith(("v_exp", "v_rcp")) else (6 if "32x32" in ln else 1)
            if self.n >= self.every:
                self.n = 0; self.bg.play(1)
    def __getattr__(self, k): return getattr(self.a, k)
    def __setattr__(self, k, val):
        if k in ("vm", "lg"): setattr(self.a, k, val)
        else: object.__setattr__(self, k, val)
```

```python
from asmlib import *

XB = [0x000000, 0x280000, 0x500000]
OB = [0x780000 + i * 0x280000 for i in range(4)]
ST = [0x1180000 + i * 0x20000 for i in range(3)]
KVB = [0x11E0000, 0x12E0000]
PW = [0x1400000, 0x1660000]
PO = [0x1900000, 0x19D0000]
DBGWS = 0x1B00000
WS_BYTES = 0x2000000
KVM, QI, SP = 0, 112640, 153600
CS = [0, 512]
CSP = 2048
STG = SP + 2048
REC_K, REC_V = 0, 13824
WOI = 51200
HP = 36864
SQX = 69632
PHIR = 0
KVT = SP + 4096
S_WS, S_X, S_WA, S_WOA, S_WB, S_PHI, S_WOB, S_OUT, S_DBG = (8, 12, 16, 20, 24, 28, 32, 36, 40)
def srd(b): return "s[%d:%d]" % (b, b + 3)
sW, sR, sHP, sC, sH64 = "s44", "s45", "s46", "s47", "s48"
sT = "s49"
sU = "s50"
sRETRY = "s51"
vL16, vWkv0, vWkv1, vWm0, vWm1, vWq, vHkv, vHm, vWo0, vWo1 = range(1, 11)
vXst, vStSt, vStLd, vOst, vHx, vHSt, vKrec, vVrec, vCs, vHcs = range(11, 21)
vLane, vONES = 21, 22
HXF, HAC = 24, 44
AK, AV, AM, AQ = 64, 80, 96, 112
RING = 128
TMP = 164
PHIF = 176
RES = 200
PARKV = 212
def v(i, n=1): return "v%d" % i if n == 1 else "v[%d:%d]" % (i, i + n - 1)
def ag(i, n=1): return "a%d" % i if n == 1 else "a[%d:%d]" % (i, i + n - 1)

def build_srd(a, base, lo, nbytes):
    a("s_mov_b32 s%d, s%d\ns_and_b32 s%d, s%d, 0xffff\ns_mov_b32 s%d, %d\ns_mov_b32 s%d, 0x00020000" % (base, lo, base + 1, lo + 1, base + 2, nbytes, base + 3))

def prologue(a):
    a.label("L_start")
    a("s_getpc_b64 s[84:85]")
    a("s_and_b32 s84, s84, 0xffffff00")
    a("s_cmp_ge_u32 s2, 256")
    a("s_cbranch_scc1 L_end")
    a("s_load_dwordx16 s[64:79], s[0:1], 0")
    a("s_load_dwordx4 s[80:83], s[0:1], 64")
    a("v_lshrrev_b32 v1, 6, v0")
    a("v_and_b32 %s, 63, v0", v(vLane))
    a("v_readfirstlane_b32 %s, v1", sW)
    a("s_and_b32 s52, s2, 7\ns_lshr_b32 s53, s2, 3")
    a("s_and_b32 %s, s52, 1", sH64)
    a("s_lshr_b32 s52, s52, 1\ns_lshl_b32 s52, s52, 2\ns_lshr_b32 s54, s53, 3")
    a("s_add_u32 %s, s52, s54", sR)
    a("s_and_b32 %s, s53, 7", sC)
    a("s_lshl_b32 s52, %s, 3\ns_add_u32 %s, s52, %s", sH64, sHP, sC)
    a("s_lshl_b32 s52, %s, 2\ns_add_u32 %s, s52, %s", sR, sT, sW)
    a("s_lshl_b32 s52, %s, 1\ns_add_u32 s52, s52, %s\ns_lshl_b32 s52, s52, 2\ns_add_u32 %s, s52, %s", sR, sH64, sU, sW)
    a("s_mov_b32 %s, 0", sRETRY)
    a("v_lshlrev_b32 %s, 4, %s", v(vL16), v(vLane))
    a("v_mov_b32 %s, 0x3f803f80", v(vONES))
    a("s_waitcnt lgkmcnt(0)")
    build_srd(a, S_WS, 82, WS_BYTES)
    build_srd(a, S_X, 64, 2621440)
    build_srd(a, S_WA, 66, 2457600)
    build_srd(a, S_WOA, 68, 819200)
    build_srd(a, S_WB, 72, 2457600)
    build_srd(a, S_PHI, 74, 25600)
    build_srd(a, S_WOB, 76, 819200)
    build_srd(a, S_OUT, 78, 2621440)
    build_srd(a, S_DBG, 80, 256)

def pat_kvm(a, dst, sm, t):
    L = v(vLane)
    a("s_lshl_b32 s94, %s, 6", sm)
    a("v_add_u32 %s, s94, %s", v(t), L)
    a("v_mul_u32_u24 %s, 5958, %s\nv_lshrrev_b32 %s, 16, %s", v(t + 1), v(t), v(t + 1), v(t + 1))
    a("v_mul_u32_u24 %s, 11, %s\nv_sub_u32 %s, %s, %s", v(t + 2), v(t + 1), v(t), v(t), v(t + 2))
    a("v_and_b32 %s, 3, %s\nv_lshlrev_b32 %s, 2, %s", v(t + 2), v(t + 1), v(t + 2), v(t + 2))
    a("v_bfe_u32 %s, %s, 2, 2", v(t + 3), v(t + 1))
    a("v_and_b32 %s, -16, %s", v(t + 1), v(t + 1))
    a("v_or3_b32 %s, %s, %s, %s", v(t + 1), v(t + 1), v(t + 2), v(t + 3))
    a("v_mul_u32_u24 %s, 3840, %s", v(dst), v(t + 1))
    a("v_lshrrev_b32 %s, 2, %s\nv_add_u32 %s, 1, %s\nv_mul_u32_u24 %s, 80, %s", v(t + 1), v(t), v(t + 1), v(t + 1), v(t + 1), v(t + 1))
    a("v_and_b32 %s, 3, %s\nv_bfe_u32 %s, %s, 1, 1", v(t + 2), v(t), v(t + 3), v(t))
    a("v_add3_u32 %s, %s, %s, %s", v(t + 1), v(t + 1), v(t + 2), v(t + 3))
    a("v_mul_u32_u24 %s, 80, %s\nv_subrev_u32 %s, 638, %s", v(t + 2), v(t), v(t + 2), v(t + 2))
    a("v_cmp_gt_u32 vcc, 8, %s", v(t))
    a("v_cndmask_b32 %s, %s, %s, vcc", v(t + 1), v(t + 2), v(t + 1))
    a("v_lshl_add_u32 %s, %s, 4, %s", v(dst), v(t + 1), v(dst))

def pat_q(a, dst, t):
    L = v(vLane)
    a("v_lshrrev_b32 %s, 2, %s\nv_mul_u32_u24 %s, 3840, %s", v(t), L, v(dst), v(t))
    a("v_and_b32 %s, 3, %s\nv_bfe_u32 %s, %s, 1, 1\nv_add_u32 %s, %s, %s", v(t), L, v(t + 1), L, v(t), v(t), v(t + 1))
    a("v_lshl_add_u32 %s, %s, 4, %s", v(dst), v(t), v(dst))

def pat_wo(a, dst, sm, t):
    L = v(vLane)
    a("s_lshl_b32 s60, %s, 6", sm)
    a("v_add_u32 %s, s60, %s", v(t), L)
    a("v_mul_u32_u24 %s, 6554, %s\nv_lshrrev_b32 %s, 16, %s", v(t + 1), v(t), v(t + 1), v(t + 1))
    a("v_mul_u32_u24 %s, 10, %s\nv_sub_u32 %s, %s, %s", v(t + 2), v(t + 1), v(t), v(t), v(t + 2))
    a("v_lshlrev_b32 %s, 4, %s", v(dst), v(t))
    a("v_lshrrev_b32 %s, 5, %s", v(t), v(t + 1))
    a("v_bfe_u32 %s, %s, 2, 2", v(t + 2), v(t + 1))
    a("v_lshrrev_b32 %s, 1, %s\nv_add_u32 %s, %s, %s\nv_lshlrev_b32 %s, 3, %s", v(t + 3), v(t + 2), v(t + 3), v(t + 3), v(t + 2), v(t + 3), v(t + 3))
    a("v_mad_u32_u24 %s, %s, 40, %s", v(t + 3), v(t), v(t + 3))
    a("v_lshl_add_u32 %s, %s, 2, %s", v(t + 2), v(t), v(t + 2))
    a("v_mul_u32_u24 %s, 40, %s\nv_subrev_u32 %s, 2544, %s", v(t + 2), v(t + 2), v(t + 2), v(t + 2))
    a("v_cmp_gt_u32 vcc, 16, %s", v(t))
    a("v_cndmask_b32 %s, %s, %s, vcc", v(t + 2), v(t + 2), v(t + 3))
    a("v_bfe_u32 %s, %s, 4, 1\nv_and_b32 %s, 3, %s", v(t), v(t + 1), v(t + 1), v(t + 1))
    a("v_lshl_add_u32 %s, %s, 2, %s", v(t), v(t), v(t + 1))
    a("v_add_u32 %s, %s, %s", v(t), v(t), v(t + 2))
    a("v_mad_u32_u24 %s, %s, s61, %s", v(dst), v(t), v(dst))

def addr_regs(a):
    L = v(vLane); t = TMP
    A, B, C, D, E = v(t), v(t + 1), v(t + 2), v(t + 3), v(t + 4)
    a("v_bfe_u32 %s, %s, 2, 2", A, L)
    a("v_lshrrev_b32 %s, 5, %s", B, L)
    a("v_lshlrev_b32 %s, 2, %s\nv_lshl_add_u32 %s, %s, 1, %s", C, A, C, B, C)
    a("v_mul_u32_u24 %s, 176, %s", C, C)
    a("v_bfe_u32 %s, %s, 4, 1\nv_bfe_u32 %s, %s, 1, 1\nv_lshl_add_u32 %s, %s, 1, %s", D, L, E, L, D, D, E)
    a("v_and_b32 %s, 1, %s", E, L)
    a("v_lshl_add_u32 %s, %s, 3, %s\nv_lshl_add_u32 %s, %s, 5, %s", v(vWkv0), D, C, v(vWkv0), E, v(vWkv0))
    a("v_add_u32 %s, %d, %s", v(vWkv1), 20 * 2816, v(vWkv0))
    a("v_lshl_add_u32 %s, %s, 4, %s\nv_lshl_add_u32 %s, %s, 3, %s", v(vWm0), D, C, v(vWm0), E, v(vWm0))
    a("v_add_u32 %s, %d, %s", v(vWm1), 20 * 2816, v(vWm0))
    a("v_lshl_add_u32 %s, %s, 3, %s\nv_lshlrev_b32 %s, 6, %s", C, B, A, C, C)
    a("v_lshl_add_u32 %s, %s, 3, %s\nv_lshl_add_u32 %s, %s, 5, %s", C, D, C, C, E, C)
    a("v_add_u32 %s, %d, %s", v(vWq), QI, C)
    a("v_lshlrev_b32 %s, 4, %s\nv_lshl_add_u32 %s, %s, 2, %s", C, B, C, A, C)
    a("v_bfe_u32 %s, %s, 4, 1\nv_lshl_add_u32 %s, %s, 1, %s", D, L, C, D, C)
    a("v_mul_u32_u24 %s, 176, %s", C, C)
    a("s_mul_i32 s52, %s, 28160\nv_add_u32 %s, s52, %s", sW, C, C)
    a("v_and_b32 %s, 3, %s\nv_lshl_add_u32 %s, %s, 3, %s", D, L, v(vHkv), D, C)
    a("v_lshrrev_b32 %s, 2, %s\nv_mul_u32_u24 %s, 160, %s\nv_and_b32 %s, 3, %s", C, L, C, C, D, L)
    a("v_lshl_add_u32 %s, %s, 3, %s\nv_add_u32 %s, %d, %s", C, D, C, v(vWo0), WOI, C)
    a("v_add_u32 %s, %d, %s", v(vWo1), 10 * 5120, v(vWo0))
    a("v_bfe_u32 %s, %s, 4, 1\nv_lshrrev_b32 %s, 5, %s\nv_lshl_add_u32 %s, %s, 1, %s", C, L, D, L, C, C, D)
    a("v_and_b32 %s, 15, %s", D, L)
    a("v_lshlrev_b32 %s, 9, %s\nv_lshl_add_u32 %s, %s, 4, %s", E, C, E, D, E)
    a("s_and_b32 s52, %s, 1\ns_lshl_b32 s52, s52, 8\nv_add_u32 %s, s52, %s", sW, v(vXst), E)
    a("v_lshlrev_b32 %s, 3, %s", v(vStSt), D)
    a("v_bfe_u32 %s, %s, 4, 1", C, L)
    a("v_lshl_add_u32 %s, %s, 10, %s\nv_lshl_add_u32 %s, %s, 9, %s", E, C, v(vStSt), v(vStLd), B, E)
    a("v_mul_u32_u24 %s, 20480, %s\nv_lshl_add_u32 %s, %s, 9, %s\nv_lshl_add_u32 %s, %s, 4, %s", E, C, E, B, E, v(vOst), D, E)
    a("v_lshrrev_b32 %s, 4, %s", C, L)
    a("v_lshlrev_b32 %s, 9, %s\nv_lshl_add_u32 %s, %s, 4, %s\nv_add_u32 %s, 256, %s", E, C, E, D, E, v(vHx), E)
    a("v_lshl_add_u32 %s, %s, 8, %s", v(vHSt), C, v(vStSt))
    a("s_cmp_eq_u32 %s, 0\ns_cselect_b32 s52, 0x80000000, 0", sR)
    a("v_or_b32 %s, s52, %s\nv_or_b32 %s, s52, %s", v(vHx), v(vHx), v(vHSt), v(vHSt))
    a("v_and_b32 %s, 31, %s\nv_mul_u32_u24 %s, 144, %s\nv_add_u32 %s, %s, %s", C, L, E, B, C, C, E)
    a("s_lshl_b32 s52, %s, 5\ns_add_u32 s52, s52, 2\nv_add_u32 %s, s52, %s", sW, C, C)
    a("v_mul_u32_u24 %s, 48, %s\nv_mul_u32_u24 %s, 80, %s\nv_add_u32 %s, %d, %s", v(vKrec), C, C, C, v(vVrec), REC_V, C)
    a("v_lshlrev_b32 %s, 8, %s\nv_add_u32 %s, %d, %s", v(vCs), B, v(vCs), SP, v(vCs))
    a("v_bfe_u32 %s, %s, 4, 1\nv_lshlrev_b32 %s, 8, %s\nv_lshl_add_u32 %s, %s, 6, %s", C, L, C, C, v(vHcs), B, C)
    a("v_add_u32 %s, %d, %s", v(vHcs), SP, v(vHcs))

STAMPS = []
PROF = [False]
CYC = {"p1 slot30": 59, "p1 slot90": 60, "start": 61, "end": 62}
def stamp(a, name):
    if not PROF[0]: return
    if len(STAMPS) >= 56: return
    i = len(STAMPS); STAMPS.append(name)
    a("s_memrealtime s[92:93]\ns_waitcnt lgkmcnt(0)\nv_writelane_b32 v23, s92, %d" % i)
    if name in CYC:
        a("s_memtime s[92:93]\ns_waitcnt lgkmcnt(0)\nv_writelane_b32 v23, s92, %d" % CYC[name])
def stamp_dump(a):
    if not PROF[0]: return
    a("s_lshl_b32 s52, s2, 2\ns_add_u32 s52, s52, %s\ns_lshl_b32 s52, s52, 8\ns_add_u32 s52, s52, %d", sW, DBGWS)
    a("v_writelane_b32 v23, %s, 63", sRETRY)
    a("s_getreg_b32 s53, hwreg(HW_REG_XCC_ID)\nv_writelane_b32 v23, s53, 58")
    a("s_getreg_b32 s53, hwreg(HW_REG_HW_ID)\nv_writelane_b32 v23, s53, 57")
    a("v_lshlrev_b32 v1, 2, %s", v(vLane))
    a("buffer_store_dword v23, v1, %s, s52 offen", srd(S_WS))
```

```python
from gen1 import *
import re
PARKV = 240
NMR, RSR = 210, 0
XT = 212
M32 = "v_mfma_f32_32x32x16_bf16"
M16 = "v_mfma_f32_16x16x32_bf16"
_uid = [0]
def uid():
    _uid[0] += 1
    return _uid[0]

def gemm(a, slots, depth, hook=None, ring=RING, ringn=9):
    u = uid()
    rl = ring if isinstance(ring, list) else [ring + 4 * i for i in range(ringn)]
    ringn = len(rl)
    rs = [i for i, s in enumerate(slots) if "rd" in s]
    pos = {i: k for k, i in enumerate(rs)}
    def issue(k):
        if k >= len(rs): return
        s = slots[rs[k]]; r = rl[k % ringn]
        for h, (ad, off) in enumerate(s["rd"]):
            a("ds_read_b64_tr_b16 %s, %s offset:%d", v(r + 2 * h, 2), v(ad), off, tag=("g", u, k))
    for k in range(depth): issue(k)
    for i, s in enumerate(slots):
        if s.get("pre"): s["pre"]()
        if "rd" in s:
            k = pos[i]; A = v(rl[k % ringn], 4)
            a.wait(vm=s.get("vm"), lg=("g", u, k))
        else:
            A = s["A"]; a.wait(vm=s.get("vm"), lg=s.get("lg"))
        D = s["acc"] if isinstance(s["acc"], str) else v(s["acc"], s["n"])
        a("%s %s, %s, %s, %s", s["op"], D, A, s["B"], s.get("c", D))
        if "rd" in s: issue(pos[i] + depth)
        if hook: hook(i)

def rd_kvm(s, win):
    hi = s >= 20; s2 = s - 20 * hi
    ad = (vWm1 if hi else vWm0) if win == 128 else (vWkv1 if hi else vWkv0)
    return [(ad, s2 * 2816 + u * 176 + win) for u in (0, 1)]
def rd_q(s): return [(vWq, s * 1024 + u * 256) for u in (0, 1)]

def re_sg(x, sg):
    for i in range(4): x = re.sub(r"\bs%d\b" % (52 + i), "s#%d" % i, x)
    for i in range(4): x = x.replace("s#%d" % i, "s%d" % sg[i])
    return x
def fills(a, which, F0=XT):
    F = v(F0, 4)
    _a = a
    def a(x, *ar, **k): _a(x % ar if ar else x, tag="fill")
    for kind, i in which:
        if kind == "o": o_store(a, i, F, F, F, (70, 71, 72, 73))
        elif kind == "x": x_store(a, i, F, F, F, v(F0, 2), (70, 71, 72, 73))
        elif kind == "kv": kv_store(a, i, F, F, (70, 71, 72, 73), TMP + 8)

def o_store(a, i, d0, d1, d2, sg=(52, 53, 54, 55)):
    _a = a
    def a(x, *ar, **k): _a(re_sg(x % ar if ar else x, sg), **k)
    a("s_mul_i32 s52, %s, 40960\ns_lshl_b32 s53, %s, 10\ns_add_u32 s52, s52, %d\ns_add_u32 s53, s53, s52", sT, sHP, OB[i])
    a("s_lshl_b32 s54, %s, 8\ns_add_u32 s54, s54, s52\ns_add_u32 s54, s54, 16384", sHP)
    a("buffer_store_dwordx4 %s, %s, %s, s53 offen sc1", d0, v(vOst), srd(S_WS))
    a("buffer_store_dwordx4 %s, %s, %s, s53 offen offset:256 sc1", d1, v(vOst), srd(S_WS))
    a("s_mov_b64 exec, 0xffffffff")
    a("buffer_store_dwordx4 %s, %s, %s, s54 offen sc1", d2, v(vOst), srd(S_WS))
    a("s_mov_b64 exec, -1")

def x_store(a, i, d0, d1, d2, dst, sg=(52, 53, 54, 55)):
    _a = a
    def a(x, *ar, **k): _a(re_sg(x % ar if ar else x, sg), **k)
    a("s_lshr_b32 s52, %s, 1\ns_mul_i32 s52, s52, 40960\ns_mul_i32 s53, %s, 5120\ns_add_u32 s52, s52, s53\ns_add_u32 s52, s52, %d\ns_add_u32 s53, s52, 4096", sU, sC, XB[i])
    a("s_lshl_b32 s54, %s, 10\ns_lshl_b32 s55, %s, 7\ns_add_u32 s54, s54, s55\ns_add_u32 s54, s54, %d", sU, sC, ST[i])
    a("buffer_store_dwordx4 %s, %s, %s, s52 offen sc1", d0, v(vXst), srd(S_WS))
    a("buffer_store_dwordx4 %s, %s, %s, s52 offen offset:2048 sc1", d1, v(vXst), srd(S_WS))
    a("s_mov_b32 exec_lo, 0xffff\ns_mov_b32 exec_hi, 0xffff")
    a("buffer_store_dwordx4 %s, %s, %s, s53 offen sc1", d2, v(vXst), srd(S_WS))
    if dst is not None: st_store(a, dst)
    else: a("s_mov_b64 exec, -1")
def st_store(a, dst):
    a("s_mov_b64 exec, 0xffff")
    a("buffer_store_dwordx2 %s, %s, %s, s54 offen sc1", dst, v(vStSt), srd(S_WS))
    a("s_mov_b64 exec, -1")

def kv_store(a, i, d0, d1, sg=(52, 53, 54, 55), t=TMP):
    _a = a
    def a(x, *ar, **k): _a(re_sg(x % ar if ar else x, sg), **k)
    a("v_lshrrev_b32 %s, 4, %s\nv_mul_u32_u24 %s, 384, %s\nv_and_b32 %s, 15, %s\nv_lshl_add_u32 %s, %s, 4, %s", v(t), v(vLane), v(t), v(t), v(t + 1), v(vLane), v(t), v(t + 1), v(t))
    a("s_lshl_b32 s52, %s, 4\ns_add_u32 s52, s52, %s\ns_lshl_b32 s52, s52, 12\ns_add_u32 s52, s52, %d", sHP, sR, KVB[i])
    a("s_lshr_b32 s53, %s, 1\ns_mul_i32 s53, s53, 1920\ns_add_u32 s52, s52, s53\ns_and_b32 s53, %s, 1\ns_lshl_b32 s54, s53, 8\ns_add_u32 s52, s52, s54", sW, sW)
    a("s_cmp_eq_u32 s53, 0\ns_cselect_b32 s54, -1, 0x00ff00ff\ns_and_b32 s55, s54, 0xffff")
    a("s_mov_b32 exec_lo, s54\ns_mov_b32 exec_hi, s54")
    a("buffer_store_dwordx4 %s, %s, %s, s52 offen sc1", d0, v(t), srd(S_WS))
    a("s_mov_b32 exec_lo, s55\ns_mov_b32 exec_hi, 0")
    a("buffer_store_dwordx4 %s, %s, %s, s52 offen offset:1536 sc1", d1, v(t), srd(S_WS))
    a("s_mov_b64 exec, -1")

def arrive(a, base):
    t = TMP
    a("s_and_b32 s56, s2, 3\ns_lshl_b32 s56, s56, 5\ns_add_u32 s56, s56, %d\ns_cmp_eq_u32 %s, 0\ns_cselect_b32 s57, 0, 0x80000000\ns_or_b32 s56, s56, s57", base, sW)
    a("v_mov_b32 %s, s56\nv_mov_b32 %s, 1", v(t + 10), v(t + 11))
    a("s_mov_b64 exec, 1")
    a("buffer_atomic_add %s, %s, %s, 0 offen sc1", v(t + 11), v(t + 10), srd(S_DBG))
    a("s_mov_b64 exec, -1")

def init_probe(r, base):
    r("s_lshl_b32 s94, %s, 12\nv_lshlrev_b32 %s, 5, %s\nv_add_u32 %s, s94, %s\ns_mov_b64 exec, 15", sW, v(TMP + 8), v(vLane), v(TMP + 8), v(TMP + 8))
    r("buffer_load_dword %s, %s, %s, 0 offen offset:%d\ns_mov_b64 exec, -1", v(XT + 24), v(TMP + 8), srd(S_DBG), base, tag="ip")
L1CFG = dict(every=2, pre=4, touch=0, st=(), accst=1, gates={'0': 3, '3': 6, '6': 9})
PK = list(range(176, 187)); PQ, PX = 187, 188
PKS = {'pk': PK, 'pq': PQ}
def raw_dma(r, n, srdw, tag, dst=None):
    r("s_add_u32 s95, s62, %d", (n // 11) * 256 * 3840)
    if dst is None:
        r("s_lshl_b32 s94, %s, 10\ns_add_u32 s94, s94, %d", sW, 4096 * n)
        if n == 27: r("s_cmp_lt_u32 %s, 2\ns_cselect_b32 s94, s94, 0x30000", sW)
        r("s_mov_b32 m0, s94")
        r("buffer_load_dwordx4 %s, %s, s95 offen lds", v(PKS['pk'][n % 11]), srd(srdw), tag=tag)
    else:
        r("buffer_load_dwordx4 %s, %s, %s, s95 offen", dst, v(PKS['pk'][n % 11]), srd(srdw), tag=tag)
def raw_q(r, p, srdw, tag):
    r("s_lshl_b32 s94, %s, 10\ns_add_u32 s94, s94, %d\ns_mov_b32 m0, s94", sW, QI + 4096 * p)
    r("s_mul_i32 s95, %s, %d\ns_add_u32 s95, s95, s62\ns_add_u32 s95, s95, %d", sW, 16 * 3840, p * 64 * 3840)
    r("buffer_load_dwordx4 %s, %s, s95 offen lds", v(PKS['pq']), srd(srdw), tag=tag)

def l1_startup(a):
    RS_, RD_ = [56, 57, 58, 59], [60, 61, 62, 63]
    XR = [224, 232, 240, 248, 192]
    ST4 = XT + 12
    SA_, QA_, SB_, QB_ = 189, 190, 191, XT + 7
    RP = 24
    t = TMP; L = v(vLane)
    a("s_movk_i32 s61, 1280")
    a("v_lshrrev_b32 %s, 2, %s\nv_mul_u32_u24 %s, 1280, %s", v(t), L, v(t), v(t))
    a("v_lshrrev_b32 %s, 4, %s\nv_xor_b32 %s, %s, %s\nv_and_b32 %s, 3, %s", v(t + 1), L, v(t + 1), v(t + 1), L, v(t + 1), v(t + 1))
    a("v_lshl_add_u32 %s, %s, 4, %s", v(PX), v(t + 1), v(t))
    a("s_mul_i32 s86, %s, 40960\ns_add_u32 s87, s86, 20480\ns_mul_i32 s62, %s, 80\ns_mul_i32 s63, %s, 160", sT, sHP, sC)
    stamp(a, "start")
    T3840, T1280 = 30, 31
    def wtouch(r, sj, srdw, dst):
        r("s_mul_i32 s94, %s, 4370\ns_lshr_b32 s94, s94, 16\ns_mul_i32 s95, s94, 15\ns_sub_u32 s95, %s, s95", sj, sj)
        r("s_mul_i32 s94, s94, %d\ns_mul_i32 s57, s95, 52\ns_lshr_b32 s57, s57, 8\ns_add_u32 s57, s57, %s\ns_mul_i32 s57, s57, 640", 64 * 3840, sH64)
        r("s_lshl_b32 s95, s95, 7\ns_add_u32 s95, s95, s94\ns_add_u32 s95, s95, s57")
        for o in range(0, 128, L1CFG.get("tg", 128)): r("buffer_load_dword %s, %s, %s, s95 offen offset:%d", v(dst), v(T3840), srd(srdw), o, tag="pf")
    if L1CFG["touch"]:
        a("s_lshr_b32 s98, s2, 3\ns_lshl_b32 s98, s98, 2\ns_add_u32 s98, s98, %s", sW)
        a("v_mul_u32_u24 %s, 3840, %s\nv_mul_u32_u24 %s, 1280, %s", v(T3840), L, v(T1280), L)
        if L1CFG["touch"] == 1: wtouch(a, "s98", S_WA, 32)
    if L1CFG["touch"] == 1:
        l2, l3, le = a.newlabel("L_t2"), a.newlabel("L_t3"), a.newlabel("L_te")
        a("s_cmp_lt_u32 s98, 80\ns_cbranch_scc0 %s", l2)
        a("s_lshr_b32 s94, %s, 2\ns_lshl_b32 s94, s94, 3\ns_and_b32 s95, s98, 7\ns_add_u32 s94, s94, s95\ns_mul_i32 s94, s94, %d\ns_lshr_b32 s95, s98, 3\ns_lshl_b32 s95, s95, 7\ns_add_u32 s95, s95, s94", sR, 64 * 1280)
        a("buffer_load_dword %s, %s, %s, s95 offen\ns_branch %s", v(33), v(T1280), srd(S_X), le)
        a.vm.pop()
        a.label(l2)
        a("s_add_u32 s58, s98, 48\ns_cmp_lt_u32 s98, 102\ns_cbranch_scc0 %s", l3)
        n0 = len(a.vm); wtouch(a, "s58", S_WA, 33); a.vm = a.vm[:n0]
        a("s_branch %s", le)
        a.label(l3)
        a("s_add_u32 s58, s98, 26\ns_min_u32 s58, s58, 149")
        wtouch(a, "s58", S_WB, 33)
        a.label(le)
    def xld(r, un):
        r("buffer_load_dwordx4 %s, %s, %s, s86 offen offset:%d", ag(8 * un, 4), v(PX), srd(S_X), 64 * un, tag=("u", un))
        r("buffer_load_dwordx4 %s, %s, %s, s87 offen offset:%d", ag(8 * un + 4, 4), v(PX), srd(S_X), 64 * un, tag=("u", un))
    def wld(r, p):
        lo = 0 if p == 0 else (11 * (p - 1) + 10) // 4 + 1
        hi = min((11 * p + 10) // 4, 27)
        for n in range(lo, hi + 1):
            if n < 11:
                r("s_add_u32 s58, %s, %d", sW, 4 * n)
                pat_kvm(r, PK[n], "s58", t)
            raw_dma(r, n, S_WA, ("p", p))
        raw_q(r, p, S_WA, ("p", p))
    xld(a, 0); xld(a, 1)
    pat_q(a, PQ, t)
    wld(a, 0)
    a("s_lshr_b32 s52, s2, 3\ns_lshl_b32 s52, s52, 2\ns_add_u32 s52, s52, %s\ns_lshl_b32 s52, s52, 10", sW)
    a("s_min_u32 s52, s52, (L_end-L_start-1024)&0xfffffff0")
    a("v_add_u32 %s, s52, %s", v(t + 8), v(vL16))
    a("global_load_dwordx4 %s, %s, s[84:85]", ag(252, 4), v(t + 8), tag="pf")
    xld(a, 2); xld(a, 3); wld(a, 1)
    a("s_lshl_b32 s58, %s, 1\ns_add_u32 s58, s58, %s\ns_lshl_b32 s58, s58, 2\ns_add_u32 s58, s58, %s", sR, sH64, sW)
    pat_wo(a, RS_[3], "s58", t)
    a("s_cmp_lt_u32 s58, 100\ns_cselect_b32 s53, 0, 0x80000000\ns_lshl_b32 s58, s58, 10\ns_or_b32 s58, s58, s53")
    a("v_or_b32 %s, s53, %s\nv_add_u32 %s, s58, %s", v(RS_[3]), v(RS_[3]), v(RD_[3]), v(vL16))
    a("buffer_load_dwordx4 %s, %s, %s, s63 offen", v(RP + 24, 4), v(RS_[3]), srd(S_WOA), tag="rp0")
    for p in range(2, L1CFG["pre"]): xld(a, 2 * p); xld(a, 2 * p + 1); wld(a, p)
    if L1CFG["touch"] == 1: wtouch(a, "s98", S_WB, 34)
    stamp(a, "l1 issued")
    addr_regs(a)
    SW, SR0, SR1 = XT + 4, XT + 5, XT + 6
    a("s_lshl_b32 s52, %s, 11\ns_add_u32 s52, s52, %d", sW, STG)
    a("v_add_u32 %s, s52, %s", v(SW), v(vL16))
    a("v_and_b32 %s, 31, %s\nv_lshlrev_b32 %s, 6, %s\nv_add_u32 %s, s52, %s", v(t), L, v(t), v(t), v(t), v(t))
    a("v_bfe_u32 %s, %s, 2, 2\nv_lshrrev_b32 %s, 5, %s\nv_xor_b32 %s, %s, %s", v(t + 1), L, v(t + 2), L, v(t + 1), v(t + 1), v(t + 2))
    a("v_lshl_add_u32 %s, %s, 4, %s", v(SR0), v(t + 1), v(t))
    a("v_xor_b32 %s, 32, %s", v(SR1), v(SR0))
    for i in range(4): a("v_mov_b32 %s, -1\nv_mov_b32 %s, 0x3f803f80", v(XT + i), v(XT + 8 + i))
    for r_ in (SA_, QA_, SB_, QB_): a("v_mov_b32 %s, 0", v(r_))
    for i in range(64): a("v_accvgpr_write_b32 %s, 0", ag(160 + i))
    ONES = v(XT + 8, 4)
    RPS, RPD, RDAT = [36, 37, 38], [39, 40, 41], [192, 196, 44]
    def rp_pat(r):
        for i in range(3):
            r("s_lshl_b32 s58, %s, 2\ns_add_u32 s58, s58, %s\ns_add_u32 s58, s58, %d\ns_lshl_b32 s57, s58, 10", sR, sW, 64 * i)
            r("v_add_u32 %s, s57, %s", v(RPD[i]), v(vL16))
            if i < 2: pat_kvm(r, RPS[i], "s58", t + 4)
            if i > 0:
                r("s_lshl_b32 s58, %s, 2\ns_add_u32 s58, s58, %s\ns_add_i32 s58, s58, %d\ns_mul_i32 s57, s58, %d", sR, sW, 64 * i - 110, 16 * 3840)
                r("v_add_u32 %s, s57, %s", v(t + 4), v(PQ))
            if i == 1:
                r("s_lshl_b32 s58, %s, 2\ns_add_u32 s58, s58, %s\ns_cmp_ge_u32 s58, 46\ns_cselect_b64 vcc, -1, 0", sR, sW)
                r("v_cndmask_b32 %s, %s, %s, vcc", v(RPS[1]), v(RPS[1]), v(t + 4))
            if i == 2:
                r("s_lshl_b32 s58, %s, 2\ns_add_u32 s58, s58, %s\ns_cmp_lt_u32 s58, 22\ns_cselect_b32 s57, 0, 0x80000000", sR, sW)
                r("v_or_b32 %s, s57, %s\nv_and_b32 %s, 0x80000000, %s\nv_or_b32 %s, %s, %s", v(RPS[2]), v(t + 4), v(t + 4), v(RPS[2]), v(RPD[2]), v(RPD[2]), v(t + 4))
    def rp_load(r, srdw, tag):
        for i in range(3): r("buffer_load_dwordx4 %s, %s, %s, s62 offen", v(RDAT[i], 4), v(RPS[i]), srd(srdw), tag=tag)
    def rp_store(r, which, tagw, tag):
        r.wait(vm=tagw)
        for i in range(3):
            r("s_mul_i32 s94, %s, 153600\ns_add_u32 s94, s94, %d", sHP, PW[which])
            r("buffer_store_dwordx4 %s, %s, %s, s94 offen sc1", v(RDAT[i], 4), v(RPD[i]), srd(S_WS), tag=tag)
    def early0(r):
        rp_pat(r); rp_load(r, S_WB, "rpb")
    def early2(r):
        rp_store(r, 1, "rpb", "early"); rp_load(r, S_WA, "rpa")
    def early(r):
        fills(r, [("o", 0)])
        r.wait(vm="rp0")
        r("s_mul_i32 s94, %s, 102400\ns_add_u32 s94, s94, %d", sC, PO[0])
        r("buffer_store_dwordx4 %s, %s, %s, s94 offen sc1", v(RP + 24, 4), v(RD_[3]), srd(S_WS), tag="early")
    def late1(r):
        r("v_and_b32 %s, 15, %s\nv_mul_u32_u24 %s, 1280, %s\nv_lshrrev_b32 %s, 4, %s\nv_lshl_add_u32 %s, %s, 3, %s", v(t), L, v(t), v(t), v(t + 1), L, v(t + 2), v(t + 1), v(t))
        r("s_mul_i32 s94, %s, 20480\ns_add_u32 s94, s94, s63", sU)
        for i in range(5): r("buffer_load_dwordx2 %s, %s, %s, s94 offen offset:%d", v(RES + 2 * i, 2), v(t + 2), srd(S_X), 32 * i, tag="res")
        r("v_lshl_add_u32 %s, %s, 4, %s", v(t), v(t + 1), v(t))
        r("v_and_b32 %s, 0x80000000, %s\nv_or_b32 %s, %s, %s", v(t + 1), v(vHx), v(t), v(t), v(t + 1))
        r("s_mul_i32 s94, %s, %d\ns_mul_i32 s95, %s, 320\ns_add_u32 s94, s94, s95\ns_sub_u32 s94, s94, 20480\ns_max_i32 s94, s94, 0", sR, 128 * 1280, sW)
        for i in range(5): r("buffer_load_dwordx4 %s, %s, %s, s94 offen offset:%d", ag(224 + 4 * i, 4), v(t), srd(S_X), 64 * i, tag="hx")
        r("buffer_load_dwordx4 %s, %s, %s, s63 offen", v(RP + 28, 4), v(RS_[3]), srd(S_WOB), tag="rp")
        fills(r, [("kv", 0), ("x", 0)])
    def late2(r):
        rp_store(r, 0, "rpa", "late")
        r.wait(vm="rp")
        r("s_mul_i32 s94, %s, 102400\ns_add_u32 s94, s94, %d", sC, PO[1])
        r("buffer_store_dwordx4 %s, %s, %s, s94 offen sc1", v(RP + 28, 4), v(RD_[3]), srd(S_WS), tag="late")
    vq = Stream(a)
    lq = Stream(a)
    def stage(un):
        b = XR[un % 4]
        if L1CFG["accst"]:
            for i in range(8): a("v_accvgpr_read_b32 %s, %s", v(b + i), ag(8 * un + i))
        a("ds_write_b128 %s, %s", v(SW), ag(8 * un, 4))
        a("ds_write_b128 %s, %s offset:1024", v(SW), ag(8 * un + 4, 4))
        a("ds_read_b128 %s, %s", ag(8 * un, 4), v(SR0), tag=("xf", un))
        a("ds_read_b128 %s, %s", ag(8 * un + 4, 4), v(SR1), tag=("xf", un))
        if L1CFG["accst"]:
            def st(r):
                for i in range(8):
                    S_, Q_ = (SA_, QA_) if i < 4 else (SB_, QB_)
                    r("v_dot2c_f32_bf16 %s, %s, %s\nv_dot2c_f32_bf16 %s, %s, %s", v(S_), v(b + i), v(vONES), v(Q_), v(b + i), v(b + i))
            vq.add(st)
            return
        a("ds_read_b128 %s, %s", v(b, 4), v(SR0), tag=("xs", un))
        a("ds_read_b128 %s, %s", v(b + 4, 4), v(SR1), tag=("xs", un))
        def st(r):
            r.wait(lg=("xs", un))
            for i in range(8):
                r("v_dot2c_f32_bf16 %s, %s, %s\nv_dot2c_f32_bf16 %s, %s, %s", v(SA_), v(b + i), v(vONES), v(QA_), v(b + i), v(b + i))
        vq.add(st)
    GATES = L1CFG["gates"]
    def force(p):
        while p in marks and marks[p] > done[0]: lq.play(1); done[0] += 1
    def gate(upto):
        force(upto)
        a.wait(vm=("p", upto))
        a("s_barrier")
        stamp(a, "l1 g%d" % upto) if L1CFG["st"] else None
        if upto == 9: arrive(a, 0)
    def stage_ops(un):
        b = XR[un % 4]
        def o0():
            force(un // 2); a.wait(vm=("u", un))
            for i in range(4): a("v_accvgpr_read_b32 %s, %s", v(b + i), ag(8 * un + i))
        def o1():
            for i in range(4, 8): a("v_accvgpr_read_b32 %s, %s", v(b + i), ag(8 * un + i))
            def st(r):
                for i in range(8):
                    S_, Q_ = (SA_, QA_) if i < 4 else (SB_, QB_)
                    r("v_dot2c_f32_bf16 %s, %s, %s\nv_dot2c_f32_bf16 %s, %s, %s", v(S_), v(b + i), v(vONES), v(Q_), v(b + i), v(b + i))
            vq.add(st)
        if L1CFG.get("nost"):
            def o0(): force(un // 2); a.wait(vm=("u", un))
            def o1(): pass
        if L1CFG.get("nost") == 2: return [o0]
        return [o0, o1, lambda: a("ds_write_b128 %s, %s", v(SW), ag(8 * un, 4)), lambda: a("ds_write_b128 %s, %s offset:1024", v(SW), ag(8 * un + 4, 4)),
                lambda: a("ds_read_b128 %s, %s", ag(8 * un, 4), v(SR0), tag=("xf", un)), lambda: a("ds_read_b128 %s, %s", ag(8 * un + 4, 4), v(SR1), tag=("xf", un))]
    marks = {}; done = [0]
    eq = Stream(a, early0)
    lq.add(early)
    for p in range(L1CFG["pre"], 10):
        if p == 9: lq.add(early2)
        lq.add(lambda r: (xld(r, 2 * p), xld(r, 2 * p + 1), wld(r, p))); marks[p] = len(lq)
    if L1CFG["touch"] == 2:
        lq.add(lambda r: (wtouch(r, "s98", S_WB, 34), r("s_add_u32 s58, s98, 128\ns_cmp_lt_u32 s58, 150\ns_cselect_b32 s58, s58, s98"), wtouch(r, "s58", S_WB, 35)))
    lq.add(late1)
    for un in (0, 1):
        for o in stage_ops(un): o()
    gate(0)
    slots = []; DEP = 5
    for s in range(40):
        B = ag(4 * s, 4); c = {"c": "0"} if s == 0 else {}
        first = {"pre": (lambda un=s // 2: a.wait(lg=("xf", un)))}
        slots += [dict(op=M32, acc=AK, n=16, rd=rd_kvm(s, 0), B=B, **first, **c), dict(op=M32, acc=AV, n=16, rd=rd_kvm(s, 64), B=B, **c),
                  dict(op=M32, acc=AM, n=16, rd=rd_kvm(s, 128), B=B, **c), dict(op=M32, acc=AQ, n=16, rd=rd_q(s), B=B, **c)]
    sops = []
    def hook(i):
        s, k = divmod(i, 4); p, j = divmod(i, 16)
        if k == 3 and not L1CFG.get("nocs"):
            lb = a.newlabel("L_cs")
            a("s_cmp_eq_u32 %s, %d\ns_cbranch_scc0 %s", sW, s % 4, lb)
            for q in range(4): a("%s %s, %s, %s, %s", M32, ag(160 + 16 * q, 16), v(RING + 4 * ((4 * s + q) % 9), 4), ONES, ag(160 + 16 * q, 16))
            a.label(lb)
        if j == 0 and p < 9: sops.extend(stage_ops(2 * p + 2) + stage_ops(2 * p + 3))
        if sops: sops.pop(0)()
        if j == 10 and str(p) in GATES: gate(GATES[str(p)])
        vq.play(3); eq.play(2)
        if i % L1CFG["every"] == 0 or done[0] >= marks[9]: lq.play(1); done[0] += 1
    gemm(a, slots, DEP, hook=hook)
    assert not len(eq)
    vq.flush(); lq.flush()
    late2(a)
    if L1CFG["accst"]:
        for r_ in (SA_, QA_, SB_, QB_):
            a("v_add_f32_dpp %s, %s, %s quad_perm:[1,0,3,2] row_mask:0xf bank_mask:0xf", v(r_), v(r_), v(r_))
        for r_ in (SA_, QA_, SB_, QB_):
            a("v_add_f32_dpp %s, %s, %s quad_perm:[2,3,0,1] row_mask:0xf bank_mask:0xf", v(r_), v(r_), v(r_))
        a("v_and_b32 %s, 15, %s\nv_lshlrev_b32 %s, 4, %s", v(t + 2), L, v(t + 2), v(t + 2))
        for k, r_ in enumerate((SA_, QA_, SB_, QB_)): a("ds_bpermute_b32 %s, %s, %s", v(t + 4 + k), v(t + 2), v(r_))
        a("v_and_b32 %s, 16, %s\nv_cmp_eq_u32 vcc, 0, %s\ns_waitcnt lgkmcnt(0)", v(t + 3), L, v(t + 3))
        a("v_cndmask_b32 %s, %s, %s, vcc\nv_cndmask_b32 %s, %s, %s, vcc", v(t), v(t + 6), v(t + 4), v(t + 1), v(t + 7), v(t + 5))
    else:
        a("v_mov_b32 %s, %s\nv_mov_b32 %s, %s", v(t), v(SA_), v(t + 1), v(QA_))
        a("v_permlane32_swap_b32 %s, %s\nv_permlane32_swap_b32 %s, %s", v(SA_), v(t), v(QA_), v(t + 1))
        a("v_add_f32 %s, %s, %s\nv_add_f32 %s, %s, %s", v(t), v(t), v(SA_), v(t + 1), v(t + 1), v(QA_))
    stats_fin(a, t, t + 1, NMR, RSR)
    return ONES

def cs_dump(a, acc=160, sh=9):
    t = TMP
    a("s_lshl_b32 s52, %s, " + str(sh) + "\ns_add_u32 s52, s52, %d\nv_add_u32 %s, s52, %s", sW, CSP, v(t), v(vCs))
    a("s_mov_b32 exec_lo, 1\ns_mov_b32 exec_hi, 1")
    for i in range(16): a("ds_write_b128 %s, %s offset:%d", v(t), ag(acc + 4 * i, 4), 16 * i)
    a("s_mov_b64 exec, -1")
def cs_reduce(a, which, sh=9):
    t = TMP
    a("s_lshl_b32 s52, %s, 7\ns_add_u32 s52, s52, 153600\nv_lshlrev_b32 %s, 2, %s\nv_add_u32 %s, s52, %s", sW, v(t), v(vLane), v(t), v(t))
    a("s_mov_b64 exec, 0xffffffff")
    for p in range(4): a("ds_read_b32 %s, %s offset:%d", v(t + 1 + p), v(t), CSP + (p << sh))
    a("s_waitcnt lgkmcnt(0)")
    a("v_add_f32 %s, %s, %s\nv_add_f32 %s, %s, %s\nv_add_f32 %s, %s, %s", v(t + 1), v(t + 1), v(t + 2), v(t + 3), v(t + 3), v(t + 4), v(t + 1), v(t + 1), v(t + 3))
    a("ds_write_b32 %s, %s offset:%d", v(t), v(t + 1), CS[which])
    a("s_mov_b64 exec, -1")

def cs_pass(a, which, ONES, acc=160):
    t = TMP
    a("s_mul_i32 s52, %s, 28160\ns_mul_i32 s53, %s, 10240", sW, sW)
    a("v_add_u32 %s, s52, %s\nv_add_u32 %s, s52, %s\nv_add_u32 %s, s53, %s", v(t), v(vWkv0), v(t + 1), v(vWm0), v(t + 2), v(vWq))
    slots = []
    for s in range(10):
        c = {"c": "0"} if s == 0 else {}
        for k, (ad, off) in enumerate([(t, 0), (t, 64), (t + 1, 128)]):
            slots.append(dict(op=M32, acc=ag(acc + 16 * k, 16), n=16, rd=[(ad, s * 2816 + u * 176 + off) for u in (0, 1)], B=ONES, **c))
        slots.append(dict(op=M32, acc=ag(acc + 48, 16), n=16, rd=[(t + 2, s * 1024 + u * 256) for u in (0, 1)], B=ONES, **c))
    gemm(a, slots, 5)
    cs_dump(a)
    a("s_waitcnt lgkmcnt(0)\ns_barrier")
    cs_reduce(a, which)
    a("s_waitcnt lgkmcnt(0)\ns_barrier")

def stats_fin(a, S, Q, NM, RS):
    a("s_mov_b32 s56, 0x%08x" % f32bits(1.0 / 640))
    a("v_mul_f32 %s, s56, %s\nv_mul_f32 %s, s56, %s", v(NM), v(S), v(RS), v(Q))
    a("v_fma_f32 %s, -%s, %s, %s", v(RS), v(NM), v(NM), v(RS))
    a("v_max_f32 %s, 0, %s\nv_add_f32 %s, 0x%08x, %s" % (v(RS), v(RS), v(RS), f32bits(1e-5), v(RS)))
    a("v_rsq_f32 %s, %s\nv_sub_f32 %s, 0, %s", v(RS), v(RS), v(NM), v(NM))

import struct
def f32bits(x): return struct.unpack("<I", struct.pack("<f", x))[0]

def halo_mfma(a, l1, ONES=None):
    slots = []
    for i in range(5):
        B = ag(224 + 4 * i, 4) if l1 else v(HXF + 4 * i, 4); c = {"c": "0"} if i == 0 else {}
        for t5 in range(5):
            rd = [(vHkv, i * 5632 + u * 176 + (32 * t5 if t5 < 4 else 144)) for u in (0, 1)]
            slots.append(dict(op=M16, acc=HAC + 4 * t5, n=4, rd=rd, B=B, vm="hx", **c))
        if l1:
            slots.append(dict(op=M16, acc=192, n=4, A=B, B=B, **c))
            slots.append(dict(op=M16, acc=196, n=4, A=ONES, B=B, **c))
    gemm(a, slots, 6)

def halo_dump(a, l1):
    n = 7 if l1 else 5
    a("s_mul_i32 s52, %s, %d" % (sW, 1024 * n))
    a("s_add_u32 s52, s52, %d\nv_add_u32 %s, s52, %s", HP, v(TMP), v(vL16))
    for i in range(n):
        a("ds_write_b128 %s, %s offset:%d", v(TMP), v(HAC + 4 * i, 4) if i < 5 else v(192 + 4 * (i - 5), 4), 1024 * i)

def halo_fin(a, l1, which, HS=None):
    t = TMP; L = v(vLane); b = HXF; BS = 7168 if l1 else 5120
    a("s_lshl_b32 s52, %s, 10\ns_add_u32 s52, s52, %d\nv_add_u32 %s, s52, %s\nv_add_u32 %s, %d, %s", sW, HP, v(t), v(vL16), v(t + 1), HP, v(vL16))
    for p in range(4):
        a("ds_read_b128 %s, %s offset:%d", v(b + 4 * p, 4), v(t), BS * p, tag="hf")
        a("ds_read_b128 %s, %s offset:%d", v(b + 16 + 4 * p, 4), v(t + 1), BS * p + 4096, tag="hf")
    a("s_and_b32 s52, %s, 1\ns_lshl_b32 s52, s52, 8\ns_lshr_b32 s53, %s, 1\ns_lshl_b32 s53, s53, 6\ns_add_u32 s52, s52, s53\ns_add_u32 s52, s52, %d", sW, sW, SP)
    a("v_and_b32 %s, 48, %s\nv_add_u32 %s, s52, %s", v(t + 2), L, v(t + 2), v(t + 2))
    a("ds_read_b128 %s, %s offset:%d", v(b + 32, 4), v(t + 2), CS[which], tag="hf")
    a("v_lshrrev_b32 %s, 5, %s\nv_mul_u32_u24 %s, 48, %s\nv_sub_u32 %s, %s, %s", v(t + 2), L, v(t + 2), v(t + 2), v(t + 2), v(vHcs), v(t + 2))
    a("ds_read_b128 %s, %s offset:%d", v(b + 36, 4), v(t + 2), CS[which] + 144, tag="hf")
    if l1:
        a("v_and_b32 %s, 15, %s\nv_lshrrev_b32 %s, 2, %s\nv_lshl_add_u32 %s, %s, 4, %s\nv_lshlrev_b32 %s, 4, %s", v(t + 2), L, v(t + 3), v(t + 2), v(t + 3), v(t + 3), v(t + 2), v(t + 3), v(t + 3))
        a("v_and_b32 %s, 3, %s\nv_lshl_add_u32 %s, %s, 2, %s\nv_add_u32 %s, %d, %s", v(t + 2), L, v(t + 3), v(t + 2), v(t + 3), v(t + 3), HP, v(t + 3))
        for p in range(4):
            a("ds_read_b32 %s, %s offset:%d", v(t + 4 + p), v(t + 3), 7168 * p + 5120, tag="hf")
            a("ds_read_b32 %s, %s offset:%d", v(t + 8 + p), v(t + 1), 7168 * p + 6144, tag="hf")
        a("s_waitcnt lgkmcnt(0)")
        for o in (4, 8):
            a("v_add_f32 %s, %s, %s\nv_add_f32 %s, %s, %s\nv_add_f32 %s, %s, %s", v(t + o), v(t + o), v(t + o + 1), v(t + o + 2), v(t + o + 2), v(t + o + 3), v(t + o), v(t + o), v(t + o + 2))
        HS = (t + 8, t + 4)
    stats_fin(a, HS[0], HS[1], t + 6, t + 10)
    a.wait(lg="hf")
    for o, cs in ((b, b + 32), (b + 16, b + 36)):
        for hlf in (0, 2):
            a("v_pk_add_f32 %s, %s, %s", v(o + hlf, 2), v(o + hlf, 2), v(o + 4 + hlf, 2))
            a("v_pk_add_f32 %s, %s, %s", v(o + 8 + hlf, 2), v(o + 8 + hlf, 2), v(o + 12 + hlf, 2))
            a("v_pk_fma_f32 %s, %s, %s, %s op_sel_hi:[1,0,1]", v(o + hlf, 2), v(cs + hlf, 2), v(t + 6, 2), v(o + hlf, 2))
            a("v_pk_add_f32 %s, %s, %s", v(o + hlf, 2), v(o + hlf, 2), v(o + 8 + hlf, 2))
            a("v_pk_mul_f32 %s, %s, %s op_sel_hi:[1,0]", v(o + hlf, 2), v(o + hlf, 2), v(t + 10, 2))
        a("v_cvt_pk_bf16_f32 %s, %s, %s\nv_cvt_pk_bf16_f32 %s, %s, %s", v(o + 4), v(o), v(o + 1), v(o + 5), v(o + 2), v(o + 3))
    a("v_and_b32 %s, 15, %s\nv_bfe_u32 %s, %s, 4, 1\nv_mul_u32_u24 %s, 144, %s\nv_add_u32 %s, %s, %s", v(t + 2), L, v(t), L, v(t), v(t), v(t), v(t), v(t + 2))
    a("v_mul_u32_u24 %s, 48, %s\nv_mul_u32_u24 %s, 80, %s", v(t + 1), v(t), v(t), v(t))
    a("s_and_b32 s52, %s, 1\ns_mul_i32 s52, s52, 144\nv_add_u32 %s, s52, %s\nv_and_b32 %s, 48, %s", sW, v(t + 2), v(t + 2), v(t + 4), L)
    a("v_mul_u32_u24 %s, 80, %s\nv_add_u32 %s, %s, %s", v(t + 3), v(t + 2), v(t + 3), v(t + 3), v(t + 4))
    a("v_mul_u32_u24 %s, 48, %s\nv_lshrrev_b32 %s, 1, %s\nv_add_u32 %s, %s, %s", v(t + 2), v(t + 2), v(t + 4), v(t + 4), v(t + 2), v(t + 2), v(t + 4))
    a("s_mov_b64 exec, 0xffffffff")
    a("ds_write_b64 %s, %s offset:%d", v(t + 1), v(b + 20, 2), REC_K + 32)
    a("s_mov_b32 exec_lo, 0\ns_mov_b32 exec_hi, -1")
    a("ds_write_b128 %s, %s offset:%d", v(t), v(b + 16, 4), REC_V + 64)
    a("s_cmp_lt_u32 %s, 2\ns_cselect_b64 exec, -1, 0", sW)
    a("ds_write_b64 %s, %s offset:%d", v(t + 2), v(b + 4, 2), REC_K)
    a("s_not_b64 exec, exec")
    a("ds_write_b128 %s, %s offset:%d", v(t + 3), v(b, 4), REC_V)
    a("s_mov_b64 exec, -1")

def pairs(base_list):
    for b, n in base_list:
        for i in range(0, n, 2): yield b + i

def scale_regs(a, lst, RS):
    for r in pairs(lst): a("v_pk_mul_f32 %s, %s, %s op_sel_hi:[1,0]", v(r, 2), v(r, 2), v(RS, 2))
def pack20(a, dst, main, mix):
    src = [main + i for i in range(16)] + [mix + i for i in range(4)]
    for i in range(10): a("v_cvt_pk_bf16_f32 %s, %s, %s", v(dst + i), v(src[2 * i]), v(src[2 * i + 1]))

def write_records(a, RS):
    scale_regs(a, [(AK, 16), (AM + 4, 8), (AV, 16)], RS)
    pack20(a, AK, AK, AM + 4)
    o = 14 * 48
    a("ds_write_b128 %s, %s offset:%d\nds_write_b128 %s, %s offset:%d\nds_write_b64 %s, %s offset:%d", v(vKrec), v(AK, 4), o, v(vKrec), v(AK + 4, 4), o + 16, v(vKrec), v(AK + 8, 2), o + 32)
    o = 14 * 80
    for i in range(4): a("ds_write_b128 %s, %s offset:%d", v(vVrec), v(AV + 4 * i, 4), o + 16 * i)
    a("ds_write_b128 %s, %s offset:%d", v(vVrec), v(AM + 8, 4), o + 64)

def attention(a, RS, oidx):
    LG = TMP; t = TMP + 8
    KR = [RING, RING + 12, RING + 24]; VR = [24, 44, XT]
    def rdk(i):
        r = KR[i % 3]; o = (14 - 2 * i) * 48
        a("ds_read_b128 %s, %s offset:%d\nds_read_b128 %s, %s offset:%d\nds_read_b64 %s, %s offset:%d", v(r, 4), v(vKrec), o, v(r + 4, 4), v(vKrec), o + 16, v(r + 8, 2), v(vKrec), o + 32, tag=("k", i))
    def rdv(i):
        r = VR[i % 3]; o = (14 - 2 * i) * 80
        for j in range(5): a("ds_read_b128 %s, %s offset:%d", v(r + 4 * j, 4), v(vVrec), o + 16 * j, tag=("v", i))
    for i in (1, 2, 3): rdk(i)
    scale_regs(a, [(AQ, 16), (AM, 4)], RS)
    pack20(a, AQ, AQ, AM)
    for i in range(8): a("v_mov_b32 %s, 0", v(LG + i))
    for i in range(8):
        r = AK if i == 0 else KR[i % 3]
        if i: a.wait(lg=("k", i))
        for j in range(10): a("v_dot2c_f32_bf16 %s, %s, %s", v(LG + i), v(AQ + j), v(r + j))
        if 1 <= i <= 4: rdk(i + 3)
        if i in (5, 6, 7): rdv(i - 4)
    lb = a.newlabel("L_nomask")
    z = a.a if isinstance(a, Mix) else a
    z("s_cmp_lg_u32 %s, 0\ns_cbranch_scc1 %s", sT, lb)
    z("v_and_b32 %s, 31, %s\nv_mov_b32 %s, 0xff800000", v(t), v(vLane), v(t + 1))
    for i in range(1, 8):
        z("v_cmp_le_u32 vcc, %d, %s\nv_cndmask_b32 %s, %s, %s, vcc", 2 * i, v(t), v(LG + i), v(t + 1), v(LG + i))
    z("s_nop 2")
    a.label(lb)
    a("v_max3_f32 %s, %s, %s, %s\nv_max3_f32 %s, %s, %s, %s", v(t), v(LG), v(LG + 1), v(LG + 2), v(t + 1), v(LG + 3), v(LG + 4), v(LG + 5))
    a("v_max3_f32 %s, %s, %s, %s\nv_max_f32 %s, %s, %s", v(t), v(t), v(LG + 6), v(LG + 7), v(t), v(t), v(t + 1))
    import math
    a("s_mov_b32 s56, 0x%08x" % f32bits(20 ** -0.5 * math.log2(math.e)))
    a("v_mul_f32 %s, s56, %s", v(t), v(t))
    for i in range(8): a("v_fma_f32 %s, %s, s56, -%s", v(LG + i), v(LG + i), v(t))
    for i in range(8): a("v_exp_f32 %s, %s", v(LG + i), v(LG + i))
    a("v_pk_add_f32 %s, %s, %s\nv_pk_add_f32 %s, %s, %s", v(t, 2), v(LG, 2), v(LG + 2, 2), v(t + 2, 2), v(LG + 4, 2), v(LG + 6, 2))
    a("v_pk_add_f32 %s, %s, %s\nv_add_f32 %s, %s, %s\nv_rcp_f32 %s, %s", v(t, 2), v(t, 2), v(t + 2, 2), v(t), v(t), v(t + 1), v(t), v(t))
    O = list(pairs([(AV, 16), (AM + 8, 4)]))
    for i in range(8):
        sel = "op_sel:[0,%d,0] op_sel_hi:[1,%d,1]" % (i % 2, i % 2)
        P = v(LG + i - i % 2, 2)
        if i == 0:
            for r in O: a("v_pk_mul_f32 %s, %s, %s op_sel_hi:[1,0]", v(r, 2), v(r, 2), P)
        else:
            a.wait(lg=("v", i))
            for j, r in enumerate(O): a("v_pk_fma_f32 %s, %s, %s, %s %s", v(r, 2), v(VR[i % 3] + 2 * j, 2), P, v(r, 2), sel)
            if i + 3 <= 7: rdv(i + 3)
    scale_regs(a, [(AV, 16), (AM + 8, 4)], t)
    publish_o(a, oidx)

def publish_o(a, oidx, mix=AM + 8):
    pack20(a, AV, AV, mix)
    a("v_permlane32_swap_b32 %s, %s\nv_permlane32_swap_b32 %s, %s", v(AV + 8), v(AV + 10), v(AV + 9), v(AV + 11))
    o_store(a, oidx, v(AV, 4), v(AV + 4, 4), v(AV + 8, 4))
    stamp(a, "o%d pub" % (oidx + 1))


def layer1_qkv(a, mid, parkreg, phid):
    ONES = l1_startup(a)
    stamp(a, "l1 gemm done")
    cs_dump(a, sh=11)
    halo_mfma(a, True, ONES)
    stamp(a, "l1 halo")
    a("s_waitcnt lgkmcnt(0)\ns_barrier")
    cs_reduce(a, 0, sh=11)
    halo_dump(a, True)
    init_probe(a, 0)
    a.wait(vm="late")
    a("s_waitcnt lgkmcnt(0)\ns_barrier")
    arrive(a, 128)
    phid(a)
    stamp(a, "l1 cs")
    for i in range(4): a("v_mov_b32 %s, -1", v(232 + i))
    pk = Stream(a, lambda r: fills(r, [("o", 1)], 232))
    m = Mix(a, pk, 12)
    for k in range(2):
        for i in range(4): a("ds_read_b128 %s, %s offset:%d", v(RING + 16 * k + 4 * i, 4), v(vCs), CS[0] + 64 * k + 16 * i, tag=("cs", k))
    for k in range(4):
        a.wait(lg=("cs", k))
        for i in range(0, 16, 2):
            m("v_pk_fma_f32 %s, %s, %s, %s op_sel_hi:[1,0,1]", v(AK + 16 * k + i, 2), v(RING + 16 * (k % 2) + i, 2), v(NMR, 2), v(AK + 16 * k + i, 2))
        if k < 2:
            for i in range(4): a("ds_read_b128 %s, %s offset:%d", v(RING + 16 * k + 4 * i, 4), v(vCs), CS[0] + 64 * (k + 2) + 16 * i, tag=("cs", k + 2))
    write_records(m, RSR)
    halo_fin(m, True, 0)
    stamp(a, "l1 recs")
    bg = mid(a)
    stamp(a, "l1 mid")
    pk.flush()
    attention(Mix(a, bg, 8), RSR, 0)
    return bg
```

```python
from gen2 import *
import math
CFG = dict(att_every=12, kv_probe=24, g_every=2, wo_pre=6, wo_every=3, x_pre=10, pk0=92, d_o=6, d_x=6, d_kv=6)
MAXRETRY = 200000

def parkreg(n): return ag(160 + 4 * n, 4) if n < 24 else v(PARKV + 4 * (n - 24), 4)

def bounded_retry(a, label, sleep=2):
    ok = a.newlabel("L_ok")
    a("s_cbranch_vccz %s", ok)
    a("s_add_u32 %s, %s, 1\ns_cmp_gt_u32 %s, %d\ns_cbranch_scc1 %s", sRETRY, sRETRY, sRETRY, MAXRETRY, ok)
    vm, lg = list(a.vm), list(a.lg)
    a("s_waitcnt vmcnt(0) lgkmcnt(0)\ns_sleep %d\ns_branch %s" % (sleep, label))
    a.vm, a.lg = vm, lg
    a.label(ok)

def init_check(a, reg, base, tag):
    ok, lp = a.newlabel("L_iok"), a.newlabel("L_iwp")
    a("s_cmp_lg_u32 %s, 0\ns_cbranch_scc1 %s", sW, ok)
    vm0, lg0 = list(a.vm), list(a.lg)
    a.wait(vm=tag)
    a("s_mov_b64 exec, 15\nv_cmp_gt_u32 vcc, 64, %s\ns_cbranch_vccz %s", v(reg), ok)
    vm, lg = list(a.vm), list(a.lg)
    a("v_lshlrev_b32 %s, 5, %s", v(TMP + 8), v(vLane))
    a.label(lp)
    a("buffer_load_dword %s, %s, %s, 0 offen offset:%d sc1\ns_waitcnt vmcnt(0)", v(reg), v(TMP + 8), srd(S_DBG), base)
    a("v_cmp_gt_u32 vcc, 64, %s", v(reg))
    bounded_retry(a, lp, 4)
    a.vm, a.lg = vm0, lg0
    a.label(ok)
    a("s_mov_b64 exec, -1")

def wo_base(a, which):
    a("s_mul_i32 s96, %s, 102400\ns_lshl_b32 s97, %s, 10\ns_add_u32 s96, s96, s97\ns_add_u32 s96, s96, %d", sC, sW, PO[which])
def wo_dma(a, ns):
    for n in ns:
        a("s_add_u32 s94, s97, %d\ns_mov_b32 m0, s94\ns_add_u32 s95, s96, %d", WOI + 4096 * n, 4096 * n)
        a("buffer_load_dwordx4 %s, %s, s95 offen lds", v(vL16), srd(S_WS), tag="wod")
WO1 = list(range(2, 15))
WO2 = [0, 1] + list(range(15, 25))

def park_base(a, which):
    a("s_mul_i32 s88, %s, 153600\ns_lshl_b32 s89, %s, 10\ns_add_u32 s88, s88, s89\ns_add_u32 s88, s88, %d", sHP, sW, PW[which])
def park_load(a, ns):
    for n in ns:
        a("s_add_u32 s95, s88, %d", 4096 * n)
        a("buffer_load_dwordx4 %s, %s, %s, s95 offen", parkreg(n), v(vL16), srd(S_WS), tag=("park", n))
def park_load27(a):
    a("s_add_u32 s95, s88, %d", 4096 * 27)
    a("buffer_load_dwordx4 %s, %s, %s, s95 offen", parkreg(27), v(vL16), srd(S_WS), tag=("park", 27))
def pack_store(a):
    for n in range(28):
        lb = a.newlabel("L_ps")
        a("s_cmp_eq_u32 %s, %d\ns_cbranch_scc0 %s\ns_add_u32 s95, s88, %d", sR, n % 16, lb, 4096 * n)
        a("buffer_store_dwordx4 %s, %s, %s, s95 offen sc1", parkreg(n), v(vL16), srd(S_WS))
        a.vm.pop()
        a.label(lb)
def park_write(a, ns, t, raw=False):
    a("v_add_u32 %s, s89, %s\nv_add_u32 %s, 0x10000, %s", v(t), v(vL16), v(t + 1), v(t))
    for n in ns:
        a.wait(vm=("park", n))
        if raw and n == 27: a("s_cmp_lt_u32 %s, 2\ns_cselect_b64 exec, -1, 0", sW)
        a("ds_write_b128 %s, %s offset:%d", v(t + n // 16), parkreg(n), 4096 * (n % 16))
        if raw and n == 27: a("s_mov_b64 exec, -1")
def q_base(a):
    a("s_mov_b32 s98, s88")
def q_dma(a):
    for n in range(28, 38):
        a("s_add_u32 s94, s89, %d", 4096 * n)
        if n == 37: a("s_cmp_lt_u32 %s, 2\ns_cselect_b32 s94, s94, 0x30000", sW)
        a("s_mov_b32 m0, s94\ns_add_u32 s95, s98, %d", 4096 * n)
        a("buffer_load_dwordx4 %s, %s, s95 offen lds", v(vL16), srd(S_WS), tag="qd")

def wo_phase(a, L, rest, after_bulk=None):
    WAC, PR, D = 64, 24, 40
    a.wait(vm="wod")
    a("s_barrier")
    a("s_mul_i32 s59, %s, 20480\ns_add_u32 s59, s59, %d\ns_add_u32 s60, s59, 16384", sU, OB[L])
    stamp(a, "wo%d bar" % (L + 1))
    if L == 0: a.wait(vm="res")
    early = [n for n in range(12) if L < 3 and not rest.has(("park", n))]
    if early: park_write(a, early, TMP + 2)
    if CFG["d_o"] and len(early) < 8: a("s_sleep %d", CFG["d_o"])
    top = a.newlabel("L_wo")
    a.label(top)
    for i in range(4): a("buffer_load_dwordx4 %s, %s, %s, s60 offen offset:%d sc1", v(PR + 4 * i, 4), v(vL16), srd(S_WS), 1024 * i, tag="pr")
    for i in range(10):
        a("v_lshlrev_b32 %s, 16, %s\nv_and_b32 %s, 0xffff0000, %s", v(WAC + 2 * i), v(RES + i), v(WAC + 2 * i + 1), v(RES + i))
    a.wait(vm="pr")
    a("v_max3_u32 %s, %s, %s, %s", v(TMP), v(PR), v(PR + 1), v(PR + 2))
    for i in range(3, 15, 2): a("v_max3_u32 %s, %s, %s, %s", v(TMP), v(TMP), v(PR + i), v(PR + i + 1))
    a("v_max_u32 %s, %s, %s", v(TMP), v(TMP), v(PR + 15))
    a("v_cmp_eq_u32 vcc, -1, %s", v(TMP))
    bounded_retry(a, top)
    stamp(a, "wo%d probe ok" % (L + 1))
    def bulk(r):
        for s in range(16):
            r("s_add_u32 s95, s59, %d", 1024 * (s - s % 4))
            r("buffer_load_dwordx4 %s, %s, %s, s95 offen offset:%d sc1", ag(4 * s, 4), v(vL16), srd(S_WS), 1024 * (s % 4), tag=("o", s))
    bg = Stream(a, bulk)
    bg.q += rest.q; rest.q = []
    if after_bulk: bg.add(after_bulk)
    bg.play(CFG["wo_pre"])
    def hk(i):
        if i % CFG["wo_every"] == 0: bg.play(1)
    slots = []
    for s in [16, 17, 18, 19] + list(range(16)):
        for t5 in range(5):
            ad = vWo1 if s >= 10 else vWo0
            slots.append(dict(op=M16, acc=WAC + 4 * t5, n=4, rd=[(ad, (s % 10) * 5120 + u * 2560 + 32 * t5) for u in (0, 1)],
                              B=v(PR + 4 * (s - 16), 4) if s >= 16 else ag(4 * s, 4), vm=("o", s) if s < 16 else None))
    gemm(a, slots, 7, hook=hk, ring=84)
    bg.flush()
    a("v_cmp_u_f32 vcc, %s, %s", v(WAC + 16), v(WAC + 16))
    bounded_retry(a, top)
    stamp(a, "wo%d gemm" % (L + 1))
    for i in range(10): a("v_cvt_pk_bf16_f32 %s, %s, %s", v(D + i), v(WAC + 2 * i), v(WAC + 2 * i + 1))
    if L < 3:
        for i in range(10): a("v_mov_b32 %s, %s", v(RES + i), v(D + i))
    for q in (0, 4, 8):
        a("v_permlane16_swap_b32 %s, %s\nv_permlane16_swap_b32 %s, %s", v(D + q), v(D + q + 2), v(D + q + 1), v(D + q + 3))
    if L == 3:
        t = TMP; Ln = v(vLane)
        a("v_and_b32 %s, 15, %s\nv_mul_u32_u24 %s, 1280, %s\nv_lshrrev_b32 %s, 9, %s\nv_lshl_add_u32 %s, %s, 4, %s", v(t), Ln, v(t), v(t), v(t + 1), v(vXst), v(t), v(t + 1), v(t))
        a("s_mul_i32 s52, %s, 20480\ns_mul_i32 s53, %s, 160\ns_add_u32 s52, s52, s53", sU, sC)
        a("buffer_store_dwordx4 %s, %s, %s, s52 offen", v(D, 4), v(t), srd(S_OUT))
        a("buffer_store_dwordx4 %s, %s, %s, s52 offen offset:64", v(D + 4, 4), v(t), srd(S_OUT))
        a("s_mov_b32 exec_lo, 0xffff\ns_mov_b32 exec_hi, 0xffff")
        a("buffer_store_dwordx4 %s, %s, %s, s52 offen offset:128", v(D + 8, 4), v(t), srd(S_OUT))
        a("s_mov_b64 exec, -1")
        return
    x_store(a, L, v(D, 4), v(D + 4, 4), v(D + 8, 4), None)
    S, Q = TMP, TMP + 1
    a("v_mov_b32 %s, 0\nv_mov_b32 %s, 0", v(S), v(Q))
    for i in range(10): a("v_dot2c_f32_bf16 %s, %s, %s\nv_dot2c_f32_bf16 %s, %s, %s", v(S), v(RES + i), v(vONES), v(Q), v(RES + i), v(RES + i))
    for sw in ("v_permlane16_swap_b32", "v_permlane32_swap_b32"):
        a("v_mov_b32 %s, %s\nv_mov_b32 %s, %s", v(S + 2), v(S), v(S + 3), v(Q))
        a("%s %s, %s\n%s %s, %s", sw, v(S), v(S + 2), sw, v(Q), v(S + 3))
        a("v_pk_add_f32 %s, %s, %s", v(S, 2), v(S, 2), v(S + 2, 2))
    st_store(a, v(S, 2))
    stamp(a, "x%d pub" % (L + 2))
    return len(early)

def transition(a, L, lo=12):
    a("s_barrier")
    park_write(a, range(lo, 28), TMP + 8)
    q_base(a)
    if L < 3: park_base(a, (L + 1) % 2)

def cs_init(a, which, tiles):
    for k in tiles:
        for i in range(4): a("ds_read_b128 %s, %s offset:%d", v(AK + 16 * k + 4 * i, 4), v(vCs), CS[which] + 64 * k + 16 * i, tag=("ci", k))
def cs_mul(a, tiles):
    for k in tiles:
        a.wait(lg=("ci", k))
        scale_regs(a, [(AK + 16 * k, 16)], NMR)

def qkv_front(a, L):
    isA = L % 2 == 0; xi = L - 1; which = L % 2; t = TMP
    HS = XT
    a("s_lshl_b32 s59, %s, 11\ns_add_u32 s59, s59, %d", sT, ST[xi])
    a("s_mul_i32 s60, %s, 40960\ns_add_u32 s60, s60, %d", sT, XB[xi])
    if isA:
        a("s_lshl_b32 s61, %s, 13\ns_add_u32 s61, s61, %d", sR, ST[xi] - 1024)
        a("s_mul_i32 s63, %s, 163840\ns_mul_i32 s52, %s, 10240\ns_add_u32 s63, s63, s52\ns_add_u32 s63, s63, %d", sR, sW, XB[xi] - 40960)
    a("s_mov_b32 s99, 0")
    stamp(a, "q%d begin" % (L + 1))
    top = a.newlabel("L_qkv")
    a.label(top)
    for i in range(4): a("buffer_load_dwordx2 %s, %s, %s, s59 offen offset:%d sc1", v(t + 2 * i, 2), v(vStLd), srd(S_WS), 128 * i, tag="st")
    if isA:
        for i in range(2): a("buffer_load_dwordx2 %s, %s, %s, s61 offen offset:%d sc1", v(HS + 2 * i, 2), v(vHSt), srd(S_WS), 128 * i, tag="st")
    cs_init(a, which, (0, 1, 2, 3))
    a.wait(vm="st")
    a("v_pk_add_f32 %s, %s, %s\nv_pk_add_f32 %s, %s, %s\nv_pk_add_f32 %s, %s, %s", v(t, 2), v(t, 2), v(t + 2, 2), v(t + 4, 2), v(t + 4, 2), v(t + 6, 2), v(t, 2), v(t, 2), v(t + 4, 2))
    if isA:
        a("v_pk_add_f32 %s, %s, %s", v(HS, 2), v(HS, 2), v(HS + 2, 2))
        a("v_add_f32 %s, %s, %s\nv_cmp_u_f32 vcc, %s, %s", v(t + 2), v(t), v(HS), v(t + 2), v(t + 2))
    else:
        a("v_cmp_u_f32 vcc, %s, %s", v(t), v(t))
    bounded_retry(a, top)
    stamp(a, "q%d probe ok" % (L + 1))
    def bulk(r):
        for s in range(40):
            r("s_add_u32 s95, s60, %d", 1024 * (s - s % 4))
            r("buffer_load_dwordx4 %s, %s, %s, s95 offen offset:%d sc1", ag(4 * s, 4), v(vL16), srd(S_WS), 1024 * (s % 4), tag=("x", s))
        if isA:
            for i in range(5):
                r("s_add_u32 s95, s63, %d", 2048 * (i - i % 2))
                r("buffer_load_dwordx4 %s, %s, %s, s95 offen offset:%d sc1", v(HXF + 4 * i, 4), v(vHx), srd(S_WS), 2048 * (i % 2), tag="hx")
        if L > 1: q_dma(r)
        r.label("@q")
        if L < 3:
            for i in range(4): r("v_mov_b32 %s, -1", v(XT + 16 + i))
            fills(r, [("x", 1), ("kv", 1), ("o", 2)] if L == 1 else [("x", 2), ("o", 3)], XT + 16)
        r.label("@f")
        if L < 3: park_load(r, range(28))
    bg = Stream(a, bulk)
    bg.play(CFG["x_pre"])
    def red(R, sws):
        for sw in sws:
            a("v_mov_b32 %s, %s\nv_mov_b32 %s, %s", v(R + 2), v(R), v(R + 3), v(R + 1))
            a("%s %s, %s\n%s %s, %s", sw, v(R), v(R + 2), sw, v(R + 1), v(R + 3))
            a("v_pk_add_f32 %s, %s, %s", v(R, 2), v(R, 2), v(R + 2, 2))
    red(t, ["v_permlane32_swap_b32"])
    stats_fin(a, t, t + 1, NMR, RSR)
    cs_mul(a, (0, 1, 2, 3))
    sk = a.newlabel("L_skb")
    a("s_waitcnt lgkmcnt(0)\ns_cmp_eq_u32 s99, 0\ns_cbranch_scc0 %s\ns_barrier\ns_mov_b32 s99, 1", sk)
    a.label(sk)
    if isA: red(HS, ["v_permlane16_swap_b32", "v_permlane32_swap_b32"])
    slots = []
    for s in range(40):
        for acc, win in ((AK, 0), (AV, 64), (AM, 128)):
            slots.append(dict(op=M32, acc=acc, n=16, rd=rd_kvm(s, win), B=ag(4 * s, 4), vm=("x", s)))
    def hook(i):
        bg.play_vm(1 if i % 2 == 1 else 0, 2)
    gemm(a, slots, 6, hook=hook, ringn=7)
    bg.upto("@f")
    if isA:
        halo_mfma(a, False)
        a("v_add_f32 %s, %s, %s\nv_cmp_u_f32 vcc, %s, %s", v(t), v(AM), v(HAC + 16), v(t), v(t))
    else:
        a("v_cmp_u_f32 vcc, %s, %s", v(AM), v(AM))
    bounded_retry(a, top)
    stamp(a, "q%d pass1" % (L + 1))
    a.wait(vm="qd")
    a("s_barrier")
    return bg

def pass2(a, which, hook=None):
    gemm(a, [dict(op=M32, acc=AQ, n=16, rd=rd_q(s), B=ag(4 * s, 4)) for s in range(40)], 5, hook=hook, ringn=7)

def qkv_A(a, L):
    bg = qkv_front(a, L)
    wo_base(a, 0)
    def side(r):
        halo_dump(r, False)
        write_records(r, RSR)
        r("s_waitcnt lgkmcnt(0)\ns_barrier")
        halo_fin(r, False, 0, HS=(XT, XT + 1))
    sd = Stream(a, side); bg.front(lambda r: wo_dma(r, WO1))
    sd.play(6)
    def hook(i):
        sd.play(3)
        if i % 2 == 0: bg.play_vm(1, 0)
    pass2(a, 0, hook)
    sd.flush()
    stamp(a, "pass2")
    a.wait(vm="fill")
    a("s_waitcnt lgkmcnt(0)\ns_barrier")
    bg.front(lambda r: (wo_dma(r, WO2), r.label("@w")))
    attention(Mix(a, bg, CFG["att_every"]), RSR, L)
    bg.upto("@w")
    return bg

PHL = SP + 8192; ZL = SP + 1024
def phi_dma(a):
    a("s_lshl_b32 s94, %s, 10\ns_mul_i32 s95, %s, 1600\ns_add_u32 s95, s95, s94\ns_add_u32 s94, s94, %d\ns_mov_b32 m0, s94", sW, sHP, PHL)
    a("buffer_load_dwordx4 %s, %s, s95 offen lds", v(vL16), srd(S_PHI), tag="phi")
    for i in range(4): a("v_mov_b32 %s, 0", v(TMP + i))
    a("v_add_u32 %s, %d, %s", v(TMP + 4), ZL, v(vL16))
    a("ds_write_b128 %s, %s", v(TMP + 4), v(TMP, 4))
def phi_frags(a):
    t = TMP; Ln = v(vLane)
    a("v_bfe_u32 %s, %s, 2, 2\nv_mul_u32_u24 %s, 40, %s", v(t), Ln, v(t), v(t))
    a("v_bfe_u32 %s, %s, 4, 1\nv_bfe_u32 %s, %s, 1, 1\nv_lshl_add_u32 %s, %s, 1, %s", v(t + 1), Ln, v(t + 2), Ln, v(t + 1), v(t + 1), v(t + 2))
    a("v_lshl_add_u32 %s, %s, 3, %s\nv_add_u32 %s, %d, %s", v(t), v(t + 1), v(t), v(t), PHL, v(t))
    a("v_lshrrev_b32 %s, 5, %s\nv_and_b32 %s, 1, %s\nv_mov_b32 %s, %d", v(t + 2), Ln, v(t + 3), Ln, v(t + 8), ZL)
    a("v_mad_u32_u24 %s, %s, s61, %s", v(t + 4), v(t + 2), v(t))
    a("v_mad_u32_u24 %s, %s, s60, %s\nv_add_u32 %s, 640, %s", v(t + 5), v(t + 2), v(t), v(t + 5), v(t + 5))
    a("v_cmp_eq_u32 vcc, %s, %s", v(t + 2), v(t + 3))
    a("v_cndmask_b32 %s, %s, %s, vcc\nv_cndmask_b32 %s, %s, %s, vcc", v(t + 4), v(t + 8), v(t + 4), v(t + 5), v(t + 8), v(t + 5))
    a("v_cmp_eq_u32 vcc, 0, %s", v(t + 1))
    a("v_cndmask_b32 %s, %s, %s, vcc\nv_cndmask_b32 %s, %s, %s, vcc", v(t + 6), v(t + 8), v(t + 4), v(t + 7), v(t + 8), v(t + 5))
    for ft in range(2):
        for k in range(2):
            for u in range(2): a("ds_read_b64_tr_b16 %s, %s offset:%d", v(PHIF + 12 * ft + 4 * k + 2 * u, 2), v(t + 4 + 2 * ft), 320 * k + 160 * u + 32 * ft)
        a("ds_read_b64_tr_b16 %s, %s offset:%d", v(PHIF + 12 * ft + 8, 2), v(t + 5 + 2 * ft), 32 * ft)
        a("v_mov_b32 %s, 0\nv_mov_b32 %s, 0", v(PHIF + 12 * ft + 10), v(PHIF + 12 * ft + 11))
    a("s_waitcnt lgkmcnt(0)")

def feature_map(a, main, mix, order, EP=RING, EN=40, D0=XT, D1=24, out=RING):
    t = TMP
    pack20(a, main, main, mix)
    a("v_mov_b32 %s, 0\nv_mov_b32 %s, 0", v(main + 10), v(main + 11))
    slots = [dict(op=M32, acc=(D0, D1)[ft], n=16, A=v(PHIF + 12 * ft + 4 * k, 4), B=v(main + 4 * k, 4), **({"c": "0"} if k == 0 else {})) for k in range(3) for ft in range(2)]
    gemm(a, slots, 0)
    P = [D0 + i for i in range(16)] + [D1 + i for i in range(4)]
    for op, r in (("max", t), ("min", t + 2)):
        a("v_%s3_f32 %s, %s, %s, %s", op, v(r), v(P[0]), v(P[1]), v(P[2]))
        for i in range(3, 19, 2): a("v_%s3_f32 %s, %s, %s, %s", op, v(r), v(r), v(P[i]), v(P[i + 1]))
        a("v_%s_f32 %s, %s, %s", op, v(r), v(r), v(P[19]))
    a("s_mov_b32 s56, 0x%08x\ns_mov_b32 s57, 0x%08x" % (f32bits(math.log2(math.e)), f32bits(-math.log2(math.e))))
    a("v_mul_f32 %s, s57, %s\nv_mul_f32 %s, s56, %s\nv_mov_b32 %s, s56\nv_mov_b32 %s, s57", v(t), v(t), v(t + 2), v(t + 2), v(t + 4), v(t + 6))
    for E, c, m in ((EP, t + 4, t), (EN, t + 6, t + 2)):
        for i in range(0, 20, 2): a("v_pk_fma_f32 %s, %s, %s, %s op_sel_hi:[1,0,0]", v(E + i, 2), v(P[i], 2), v(c, 2), v(m, 2))
        for i in range(20): a("v_exp_f32 %s, %s", v(E + i), v(E + i))
    for E, s in ((EP, t), (EN, t + 2)):
        a("v_pk_add_f32 %s, %s, %s", v(s, 2), v(E, 2), v(E + 2, 2))
        for i in range(4, 20, 2): a("v_pk_add_f32 %s, %s, %s", v(s, 2), v(s, 2), v(E + i, 2))
        a("v_add_f32 %s, %s, %s\nv_rcp_f32 %s, %s", v(s), v(s), v(s + 1), v(s), v(s))
    scale_regs(a, [(EP, 20)], t); scale_regs(a, [(EN, 20)], t + 2)
    F = [EP + i for i in range(20)] + [EN + i for i in range(20)]
    for i in range(20): a("v_cvt_pk_bf16_f32 %s, %s, %s", v(out + i), v(F[order[2 * i]]), v(F[order[2 * i + 1]]))

def qkv_B(a, L):
    t = TMP; Ln = v(vLane); ki = L // 2
    bg = qkv_front(a, L)
    wo_base(a, 1)
    bg.front(lambda r: (wo_dma(r, WO1), r.label('@w')))
    m = Mix(a, bg, 16)
    scale_regs(m, [(AK, 16), (AM + 4, 8), (AV, 16)], RSR)
    pack20(m, AV, AV, AM + 8)
    a("v_mov_b32 %s, 0x3f80\nv_mov_b32 %s, 0", v(AV + 10), v(AV + 11))
    a("v_lshrrev_b32 %s, 5, %s\nv_lshlrev_b32 %s, 7, %s\nv_and_b32 %s, 31, %s\nv_add_u32 %s, %s, %s", v(t + 8), Ln, v(t + 8), v(t + 8), v(t + 9), Ln, v(t + 8), v(t + 8), v(t + 9))
    a("s_lshl_b32 s52, %s, 5\nv_add_u32 %s, s52, %s\nv_mul_u32_u24 %s, 160, %s", sW, v(t + 8), v(t + 8), v(t + 8), v(t + 8))
    for i in range(3): a("ds_write_b128 %s, %s offset:%d", v(t + 8), v(AV + 4 * i, 4), PHIR + 80 + 16 * i)
    feature_map(m, AK, AM + 4, list(range(40)))
    for i in range(5): a("ds_write_b128 %s, %s offset:%d", v(t + 8), v(RING + 4 * i, 4), PHIR + 16 * i)
    a("s_lshr_b32 s52, %s, 1\ns_mul_i32 s52, s52, 20480\ns_sub_u32 s52, s52, %d\ns_and_b32 s53, %s, 1\ns_lshl_b32 s53, s53, 5", sW, WOI, sW)
    a("v_add_u32 %s, s52, %s\nv_add_u32 %s, s53, %s", v(t + 2), v(vWo0), v(t + 3), v(t + 2))
    a.wait(vm="fill")
    a("s_waitcnt lgkmcnt(0)\ns_barrier")
    stamp(a, "phi k")
    VB, KA = 24, 40
    for ks in range(4):
        for u in (0, 1): a("ds_read_b64_tr_b16 %s, %s offset:%d", v(VB + 4 * ks + 2 * u, 2), v(t + 3), ks * 5120 + u * 2560 + 80, tag="vb")
    slots = [dict(op=M16, acc=KA + 4 * ft, n=4, rd=[(t + 2, ks * 5120 + u * 2560 + 32 * ft) for u in (0, 1)], B=v(VB + 4 * ks, 4), **({"c": "0"} if ks == 0 else {})) for ks in range(4) for ft in range(3)]
    gemm(a, slots, 3, ringn=7)
    for i in range(6): a("v_cvt_pk_bf16_f32 %s, %s, %s", v(KA + 12 + i), v(KA + 2 * i), v(KA + 2 * i + 1))
    a("v_permlane16_swap_b32 %s, %s\nv_permlane16_swap_b32 %s, %s", v(KA + 16), v(KA + 18), v(KA + 17), v(KA + 19))
    kv_store(a, ki, v(KA + 12, 4), v(KA + 16, 4))
    stamp(a, "kv pub")
    PB, SA, C0 = XT + 24, XT + 16, XT + 26
    a("s_lshl_b32 s59, %s, 16\ns_lshl_b32 s52, %s, 10\ns_add_u32 s59, s59, s52\ns_add_u32 s59, s59, %d", sHP, sW, KVB[ki])
    a("v_lshlrev_b32 %s, 12, %s\nv_mov_b32 %s, 0x3f80\nv_mov_b32 %s, 1.0", v(PB), Ln, v(C0), v(C0 + 1))
    a("v_cmp_gt_u32 vcc, 16, %s\nv_mov_b32 %s, 0x80000000\nv_cndmask_b32 %s, %s, %s, vcc", Ln, v(PB + 1), v(PB), v(PB + 1), v(PB))
    a("s_lshl_b32 s52, %s, 6\nv_add_u32 %s, s52, %s\nv_cmp_gt_u32 vcc, 240, %s\nv_cndmask_b32 %s, %s, %s, vcc", sW, v(t + 10), Ln, v(t + 10), v(t + 11), v(PB + 1), v(vL16))
    GO = t + 11
    probe = lambda r: r("buffer_load_dword %s, %s, %s, s59 offen offset:752 sc1", v(PB + 1), v(PB), srd(S_WS), tag="kp")
    def hook(i):
        if i % 2 == 0 and i < CFG["kv_probe"] - 8: bg.play_vm(1, 2)
        if i == CFG["kv_probe"]: probe(a)
    pass2(a, 1, hook)
    bg.upto('@w')
    stamp(a, "pass2")
    a("s_barrier")
    lp = a.newlabel("L_kvp"); ok = a.newlabel("L_kvok")
    a.wait(vm="kp")
    a("v_cmp_eq_u32 vcc, -1, %s\ns_cbranch_vccz %s", v(PB + 1), ok)
    vm, lg = list(a.vm), list(a.lg)
    a.label(lp)
    probe(a); a("s_waitcnt vmcnt(0)\nv_cmp_eq_u32 vcc, -1, %s", v(PB + 1))
    bounded_retry(a, lp, 1)
    a.vm, a.lg = vm, lg
    a.label(ok)
    stamp(a, "kv probe")
    G = [AK + 4 * i for i in range(8)]
    def ld(r, p):
        r("s_add_u32 s95, s59, %d", 4096 * p)
        r("buffer_load_dwordx4 %s, %s, %s, s95 offen sc1", v(G[p % 8], 4), v(GO), srd(S_WS), tag=("kv", p))
    def gather(r, spread):
        for p in range(8): ld(r, p)
        for i in range(8): r("v_mov_b32 %s, 0", v(SA + i))
        if spread: wo_dma(r, WO2[:6])
        for p in range(16):
            r.wait(vm=("kv", p))
            for i in range(4): r("v_dot2c_f32_bf16 %s, %s, %s\nv_dot2c_f32_bf16 %s, %s, %s", v(SA + 2 * i), v(G[p % 8] + i), v(C0), v(SA + 2 * i + 1), v(G[p % 8] + i), v(C0 + 1))
            if p < 8: ld(r, p + 8)
        if spread: wo_dma(r, WO2[6:])
    gs = Stream(a, lambda r: (gather(r, True), r.label('@g')))
    gs.q += bg.q; bg = gs
    gs.play(4)
    m = Mix(a, gs, CFG["g_every"])
    scale_regs(m, [(AQ, 16), (AM, 4)], RSR)
    order = []
    for g in range(4): order += [4 * g + i for i in range(4)] + [16 + 4 * g + i for i in range(4)]
    order += list(range(32, 40))
    FQ = AQ - 8
    feature_map(m, AQ, AM, order, out=FQ)
    stamp(a, "phi q")
    gs.upto('@g')
    def check(lab):
        a("v_mul_u32_u24 %s, 2731, %s\nv_lshrrev_b32 %s, 16, %s", v(t + 3), v(t + 10), v(t + 3), v(t + 3))
        a("v_mul_u32_u24 %s, 24, %s\nv_sub_u32 %s, %s, %s", v(t + 3), v(t + 3), v(t + 3), v(t + 10), v(t + 3))
        a("v_add_f32 %s, %s, %s\nv_add_f32 %s, %s, %s\nv_add_f32 %s, %s, %s", v(t + 4), v(SA), v(SA + 2), v(t + 5), v(SA + 4), v(SA + 6), v(t + 4), v(t + 4), v(t + 5))
        a("v_cmp_gt_u32 s[90:91], 21, %s\nv_cmp_u_f32 vcc, %s, %s\ns_and_b64 vcc, vcc, s[90:91]", v(t + 3), v(t + 4), v(t + 4))
    check(None)
    ok = a.newlabel("L_gok"); lp = a.newlabel("L_glp")
    a("s_cbranch_vccz %s", ok)
    vm, lg = list(a.vm), list(a.lg)
    a.label(lp)
    a("s_waitcnt vmcnt(0)")
    gather(a, False); check(None)
    bounded_retry(a, lp, 1)
    a.vm, a.lg = vm, lg
    a.label(ok)
    stamp(a, "kv gathered")
    for i in range(4): a("v_cvt_pk_bf16_f32 %s, %s, %s", v(SA + 8 + i), v(SA + 2 * i), v(SA + 2 * i + 1))
    a("v_lshlrev_b32 %s, 4, %s\nv_add_u32 %s, %d, %s", v(t + 2), v(t + 10), v(t + 2), KVT, v(t + 2))
    a("ds_write_b128 %s, %s", v(t + 2), v(SA + 8, 4))
    AF = [24, 32, 40, 48, RING]
    m = Mix(a, bg, 12)
    for k in range(5):
        for i in range(8): m("v_mov_b32 %s, 0", v(AF[k] + i))
    a("v_bfe_u32 %s, %s, 3, 2\nv_and_b32 %s, 3, %s\nv_lshl_add_u32 %s, %s, 2, %s\nv_lshlrev_b32 %s, 4, %s", v(t), Ln, v(t + 1), Ln, v(t), v(t), v(t + 1), v(t), v(t))
    a("v_lshrrev_b32 %s, 5, %s\nv_mul_u32_u24 %s, 1920, %s\nv_add3_u32 %s, %s, %s, %s", v(t + 1), Ln, v(t + 1), v(t + 1), v(t), v(t), v(t + 1), v(t + 1))
    a("v_sub_u32 %s, %s, %s\nv_add_u32 %s, %d, %s", v(t), v(t), v(t + 1), v(t), KVT, v(t))
    a("s_waitcnt lgkmcnt(0)\ns_barrier")
    a("s_mov_b32 exec_lo, 0x0f0f0f0f\ns_mov_b32 exec_hi, 0xf0f0f0f0")
    for k in range(5):
        for tl in range(2): a("ds_read_b128 %s, %s offset:%d", v(AF[k] + 4 * tl, 4), v(t), 384 * k + 256 * tl, tag=("af", k))
    a("s_mov_b64 exec, -1")
    N1 = AK
    slots = [dict(op=M32, acc=(AV, N1)[tl], n=16, A=v(AF[k] + 4 * tl, 4), B=v(FQ + 4 * k, 4), lg=("af", k), **({"c": "0"} if k == 0 else {})) for k in range(5) for tl in range(2)]
    gemm(a, slots, 0)
    a("v_add_f32 %s, 0x%08x, %s\nv_rcp_f32 %s, %s" % (v(t), f32bits(1e-6), v(N1 + 4), v(t), v(t)))
    scale_regs(a, [(AV, 16), (N1, 4)], t)
    publish_o(a, L, N1)
    return bg
```

```python
import sys
from gen3 import *
def build(stage=99):
    a = Asm()
    PKS['pk'] = PK; PKS['pq'] = PQ
    prologue(a)
    def mid(a):
        init_check(a, XT + 24, 0, "ip")
        a("s_waitcnt lgkmcnt(0)\ns_barrier")
        wo_base(a, 0)
        return Stream(a, lambda r: (wo_dma(r, range(25)), r.label('@w'), park_load(r, range(28))))
    park_base(a, 1)
    bg = layer1_qkv(a, mid, parkreg, phi_dma)
    bg.upto('@w')
    def setfill():
        for i in range(4): a("v_mov_b32 %s, -1", v(XT + i))
    def after1(r): init_probe(r, 128)
    ne = wo_phase(a, 0, bg, after1)
    a("s_barrier")
    q_base(a); q_dma(a)
    park_write(a, range(ne, 28), TMP + 8)
    park_base(a, 0)
    for i in range(4): a("v_mov_b32 %s, 0x3f803f80", v(XT + 8 + i))
    init_check(a, XT + 24, 128, "ip")
    a.wait(vm="qd"); a("s_waitcnt lgkmcnt(0)\ns_barrier")
    a('s_movk_i32 s61, 960\ns_movk_i32 s60, 160')
    phi_frags(a)
    cs_pass(a, 1, v(XT + 8, 4))
    for L in (1, 2, 3):
        bg = (qkv_B if L % 2 else qkv_A)(a, L)
        ne = wo_phase(a, L, bg)
        if L < 3: transition(a, L + 1, ne)
    stamp(a, "end")
    stamp_dump(a)
    a("s_waitcnt vmcnt(0)")
    a.label("L_end")
    return wrap(a.text(), grid=256, block=256, lds=163840, vgpr=512, accum=256)
if __name__ == "__main__":
    open("k.s", "w").write(build())
    PROF[0] = True
    open("kp.s", "w").write(build())
    open("stamps.txt", "w").write("\n".join(STAMPS))
```

```python
from asmlib import *

XB = [0x000000, 0x280000, 0x500000]
OB = [0x780000 + i * 0x280000 for i in range(4)]
ST = [0x1180000 + i * 0x20000 for i in range(3)]
KVB = [0x11E0000, 0x12E0000]
PW = [0x1400000, 0x1660000]
PO = [0x1900000, 0x19D0000]
HB = [0x1AA0000, 0x1BA0000]
DBGWS = 0x1D00000
WS_BYTES = 0x2000000
KVM, QI, SP = 0, 112640, 153600
CS = [0, 512]
CSP = 2048
STG = SP + 2048
REC_K, REC_V = 0, 13824
WOI = 51200
HP = 36864
SQX = 69632
PHIR = 0
KVT = SP + 4096
S_WS, S_X, S_WA, S_WOA, S_WB, S_PHI, S_WOB, S_OUT, S_DBG = (8, 12, 16, 20, 24, 28, 32, 36, 40)
def srd(b): return "s[%d:%d]" % (b, b + 3)
sW, sR, sHP, sC, sH64 = "s44", "s45", "s46", "s47", "s48"
sT = "s49"
sU = "s50"
sRETRY = "s51"
vL16, vWkv0, vWkv1, vWm0, vWm1, vWq, vHkv, vHm, vWo0, vWo1 = range(1, 11)
vXst, vStSt, vStLd, vOst, vHx, vHSt, vKrec, vVrec, vCs, vHcs = range(11, 21)
vLane, vONES = 21, 22
vHD = [vHkv, vHm, vHSt, vHcs]
HXF, HAC = 24, 44
AK, AV, AM, AQ = 64, 80, 96, 112
RING = 128
TMP = 164
PHIF = 176
RES = 200
PARKV = 212
def v(i, n=1): return "v%d" % i if n == 1 else "v[%d:%d]" % (i, i + n - 1)
def ag(i, n=1): return "a%d" % i if n == 1 else "a[%d:%d]" % (i, i + n - 1)

def build_srd(a, base, lo, nbytes):
    a("s_mov_b32 s%d, s%d\ns_and_b32 s%d, s%d, 0xffff\ns_mov_b32 s%d, %d\ns_mov_b32 s%d, 0x00020000" % (base, lo, base + 1, lo + 1, base + 2, nbytes, base + 3))

def prologue(a):
    a.label("L_start")
    a("s_getpc_b64 s[84:85]")
    a("s_and_b32 s84, s84, 0xffffff00")
    a("s_cmp_ge_u32 s2, 256")
    a("s_cbranch_scc1 L_end")
    a("s_load_dwordx16 s[64:79], s[0:1], 0")
    a("s_load_dwordx4 s[80:83], s[0:1], 64")
    a("v_lshrrev_b32 v1, 6, v0")
    a("v_and_b32 %s, 63, v0", v(vLane))
    a("v_readfirstlane_b32 %s, v1", sW)
    a("s_and_b32 s52, s2, 7\ns_lshr_b32 s53, s2, 3")
    a("s_and_b32 %s, s52, 1", sH64)
    a("s_lshr_b32 s52, s52, 1\ns_lshl_b32 s52, s52, 2\ns_lshr_b32 s54, s53, 3")
    a("s_add_u32 %s, s52, s54", sR)
    a("s_and_b32 %s, s53, 7", sC)
    a("s_lshl_b32 s52, %s, 3\ns_add_u32 %s, s52, %s", sH64, sHP, sC)
    a("s_lshl_b32 s52, %s, 2\ns_add_u32 %s, s52, %s", sR, sT, sW)
    a("s_lshl_b32 s52, %s, 1\ns_add_u32 s52, s52, %s\ns_lshl_b32 s52, s52, 2\ns_add_u32 %s, s52, %s", sR, sH64, sU, sW)
    a("s_mov_b32 %s, 0", sRETRY)
    a("v_lshlrev_b32 %s, 4, %s", v(vL16), v(vLane))
    a("v_mov_b32 %s, 0x3f803f80", v(vONES))
    a("s_waitcnt lgkmcnt(0)")
    build_srd(a, S_WS, 82, WS_BYTES)
    build_srd(a, S_X, 64, 2621440)
    build_srd(a, S_WA, 66, 2457600)
    build_srd(a, S_WOA, 68, 819200)
    build_srd(a, S_WB, 72, 2457600)
    build_srd(a, S_PHI, 74, 25600)
    build_srd(a, S_WOB, 76, 819200)
    build_srd(a, S_OUT, 78, 2621440)
    build_srd(a, S_DBG, 80, 256)

def pat_kvm(a, dst, sm, t):
    L = v(vLane)
    a("s_lshl_b32 s94, %s, 6", sm)
    a("v_add_u32 %s, s94, %s", v(t), L)
    a("v_mul_u32_u24 %s, 5958, %s\nv_lshrrev_b32 %s, 16, %s", v(t + 1), v(t), v(t + 1), v(t + 1))
    a("v_mul_u32_u24 %s, 11, %s\nv_sub_u32 %s, %s, %s", v(t + 2), v(t + 1), v(t), v(t), v(t + 2))
    a("v_and_b32 %s, 3, %s\nv_lshlrev_b32 %s, 2, %s", v(t + 2), v(t + 1), v(t + 2), v(t + 2))
    a("v_bfe_u32 %s, %s, 2, 2", v(t + 3), v(t + 1))
    a("v_and_b32 %s, -16, %s", v(t + 1), v(t + 1))
    a("v_or3_b32 %s, %s, %s, %s", v(t + 1), v(t + 1), v(t + 2), v(t + 3))
    a("v_mul_u32_u24 %s, 3840, %s", v(dst), v(t + 1))
    a("v_lshrrev_b32 %s, 2, %s\nv_add_u32 %s, 1, %s\nv_mul_u32_u24 %s, 80, %s", v(t + 1), v(t), v(t + 1), v(t + 1), v(t + 1), v(t + 1))
    a("v_and_b32 %s, 3, %s\nv_bfe_u32 %s, %s, 1, 1", v(t + 2), v(t), v(t + 3), v(t))
    a("v_add3_u32 %s, %s, %s, %s", v(t + 1), v(t + 1), v(t + 2), v(t + 3))
    a("v_mul_u32_u24 %s, 80, %s\nv_subrev_u32 %s, 638, %s", v(t + 2), v(t), v(t + 2), v(t + 2))
    a("v_cmp_gt_u32 vcc, 8, %s", v(t))
    a("v_cndmask_b32 %s, %s, %s, vcc", v(t + 1), v(t + 2), v(t + 1))
    a("v_lshl_add_u32 %s, %s, 4, %s", v(dst), v(t + 1), v(dst))

def pat_q(a, dst, t):
    L = v(vLane)
    a("v_lshrrev_b32 %s, 2, %s\nv_mul_u32_u24 %s, 3840, %s", v(t), L, v(dst), v(t))
    a("v_and_b32 %s, 3, %s\nv_bfe_u32 %s, %s, 1, 1\nv_add_u32 %s, %s, %s", v(t), L, v(t + 1), L, v(t), v(t), v(t + 1))
    a("v_lshl_add_u32 %s, %s, 4, %s", v(dst), v(t), v(dst))

def pat_wo(a, dst, sm, t):
    L = v(vLane)
    a("s_lshl_b32 s60, %s, 6", sm)
    a("v_add_u32 %s, s60, %s", v(t), L)
    a("v_mul_u32_u24 %s, 6554, %s\nv_lshrrev_b32 %s, 16, %s", v(t + 1), v(t), v(t + 1), v(t + 1))
    a("v_mul_u32_u24 %s, 10, %s\nv_sub_u32 %s, %s, %s", v(t + 2), v(t + 1), v(t), v(t), v(t + 2))
    a("v_lshlrev_b32 %s, 4, %s", v(dst), v(t))
    a("v_lshrrev_b32 %s, 5, %s", v(t), v(t + 1))
    a("v_bfe_u32 %s, %s, 2, 2", v(t + 2), v(t + 1))
    a("v_lshrrev_b32 %s, 1, %s\nv_add_u32 %s, %s, %s\nv_lshlrev_b32 %s, 3, %s", v(t + 3), v(t + 2), v(t + 3), v(t + 3), v(t + 2), v(t + 3), v(t + 3))
    a("v_mad_u32_u24 %s, %s, 40, %s", v(t + 3), v(t), v(t + 3))
    a("v_lshl_add_u32 %s, %s, 2, %s", v(t + 2), v(t), v(t + 2))
    a("v_mul_u32_u24 %s, 40, %s\nv_subrev_u32 %s, 2544, %s", v(t + 2), v(t + 2), v(t + 2), v(t + 2))
    a("v_cmp_gt_u32 vcc, 16, %s", v(t))
    a("v_cndmask_b32 %s, %s, %s, vcc", v(t + 2), v(t + 2), v(t + 3))
    a("v_bfe_u32 %s, %s, 4, 1\nv_and_b32 %s, 3, %s", v(t), v(t + 1), v(t + 1), v(t + 1))
    a("v_lshl_add_u32 %s, %s, 2, %s", v(t), v(t), v(t + 1))
    a("v_add_u32 %s, %s, %s", v(t), v(t), v(t + 2))
    a("v_mad_u32_u24 %s, %s, s61, %s", v(dst), v(t), v(dst))

def addr_regs(a):
    L = v(vLane); t = TMP
    A, B, C, D, E = v(t), v(t + 1), v(t + 2), v(t + 3), v(t + 4)
    a("v_bfe_u32 %s, %s, 2, 2", A, L)
    a("v_lshrrev_b32 %s, 5, %s", B, L)
    a("v_lshlrev_b32 %s, 2, %s\nv_lshl_add_u32 %s, %s, 1, %s", C, A, C, B, C)
    a("v_mul_u32_u24 %s, 176, %s", C, C)
    a("v_bfe_u32 %s, %s, 4, 1\nv_bfe_u32 %s, %s, 1, 1\nv_lshl_add_u32 %s, %s, 1, %s", D, L, E, L, D, D, E)
    a("v_and_b32 %s, 1, %s", E, L)
    a("v_lshl_add_u32 %s, %s, 3, %s\nv_lshl_add_u32 %s, %s, 5, %s", v(vWkv0), D, C, v(vWkv0), E, v(vWkv0))
    a("v_add_u32 %s, %d, %s", v(vWkv1), 20 * 2816, v(vWkv0))
    a("v_lshl_add_u32 %s, %s, 4, %s\nv_lshl_add_u32 %s, %s, 3, %s", v(vWm0), D, C, v(vWm0), E, v(vWm0))
    a("v_add_u32 %s, %d, %s", v(vWm1), 20 * 2816, v(vWm0))
    a("v_lshl_add_u32 %s, %s, 3, %s\nv_lshlrev_b32 %s, 6, %s", C, B, A, C, C)
    a("v_lshl_add_u32 %s, %s, 3, %s\nv_lshl_add_u32 %s, %s, 5, %s", C, D, C, C, E, C)
    a("v_add_u32 %s, %d, %s", v(vWq), QI, C)
    a("v_lshrrev_b32 %s, 2, %s\nv_mul_u32_u24 %s, 160, %s\nv_and_b32 %s, 3, %s", C, L, C, C, D, L)
    a("v_lshl_add_u32 %s, %s, 3, %s\nv_add_u32 %s, %d, %s", C, D, C, v(vWo0), WOI, C)
    a("v_add_u32 %s, %d, %s", v(vWo1), 10 * 5120, v(vWo0))
    a("v_bfe_u32 %s, %s, 4, 1\nv_lshrrev_b32 %s, 5, %s\nv_lshl_add_u32 %s, %s, 1, %s", C, L, D, L, C, C, D)
    a("v_and_b32 %s, 15, %s", D, L)
    a("v_lshlrev_b32 %s, 9, %s\nv_lshl_add_u32 %s, %s, 4, %s", E, C, E, D, E)
    a("s_and_b32 s52, %s, 1\ns_lshl_b32 s52, s52, 8\nv_add_u32 %s, s52, %s", sW, v(vXst), E)
    a("v_lshlrev_b32 %s, 3, %s", v(vStSt), D)
    a("v_bfe_u32 %s, %s, 4, 1", C, L)
    a("v_lshl_add_u32 %s, %s, 10, %s\nv_lshl_add_u32 %s, %s, 9, %s", E, C, v(vStSt), v(vStLd), B, E)
    a("v_mul_u32_u24 %s, 20480, %s\nv_lshl_add_u32 %s, %s, 9, %s\nv_lshl_add_u32 %s, %s, 4, %s", E, C, E, B, E, v(vOst), D, E)
    a("s_cmp_eq_u32 %s, 0\ns_cselect_b32 s52, 0x80000000, 0\ns_cmp_lg_u32 %s, 0\ns_cselect_b32 s52, 0x80000000, s52", sR, sW)
    a("v_or_b32 %s, s52, %s", v(vHx), v(vL16))
    a("v_bfe_u32 %s, %s, 4, 1\nv_mul_u32_u24 %s, 144, %s\nv_add_u32 %s, %s, %s", C, L, C, C, C, C, D)
    a("v_mul_u32_u24 %s, 48, %s\nv_mul_u32_u24 %s, 80, %s\nv_lshl_add_u32 %s, %s, 4, %s\nv_lshl_add_u32 %s, %s, 4, %s", E, C, C, C, v(vHD[0]), B, E, C, B, C)
    a("v_add_u32 %s, %d, %s\nv_add_u32 %s, %d, %s\nv_add_u32 %s, %d, %s\nv_add_u32 %s, 32, %s", v(vHD[2]), REC_V + 16, C, v(vHD[3]), REC_V + 48, C, C, REC_V - 16, C, E, E)
    a("v_cmp_gt_u32 vcc, 32, %s\nv_cndmask_b32 %s, %s, %s, vcc", L, v(vHD[1]), C, E)
    a("v_and_b32 %s, 31, %s\nv_mul_u32_u24 %s, 144, %s\nv_add_u32 %s, %s, %s", C, L, E, B, C, C, E)
    a("s_lshl_b32 s52, %s, 5\ns_add_u32 s52, s52, 2\nv_add_u32 %s, s52, %s", sW, C, C)
    a("v_mul_u32_u24 %s, 48, %s\nv_mul_u32_u24 %s, 80, %s\nv_add_u32 %s, %d, %s", v(vKrec), C, C, C, v(vVrec), REC_V, C)
    a("v_lshlrev_b32 %s, 8, %s\nv_add_u32 %s, %d, %s", v(vCs), B, v(vCs), SP, v(vCs))

STAMPS = []
PROF = [False]
CYC = {"p1 slot30": 59, "p1 slot90": 60, "start": 61, "end": 62}
def stamp(a, name):
    if not PROF[0]: return
    if len(STAMPS) >= 56: return
    i = len(STAMPS); STAMPS.append(name)
    a("s_memrealtime s[92:93]\ns_waitcnt lgkmcnt(0)\nv_writelane_b32 v23, s92, %d" % i)
    if name in CYC:
        a("s_memtime s[92:93]\ns_waitcnt lgkmcnt(0)\nv_writelane_b32 v23, s92, %d" % CYC[name])
def stamp_dump(a):
    if not PROF[0]: return
    a("s_lshl_b32 s52, s2, 2\ns_add_u32 s52, s52, %s\ns_lshl_b32 s52, s52, 8\ns_add_u32 s52, s52, %d", sW, DBGWS)
    a("v_writelane_b32 v23, %s, 63", sRETRY)
    a("s_getreg_b32 s53, hwreg(HW_REG_XCC_ID)\nv_writelane_b32 v23, s53, 58")
    a("s_getreg_b32 s53, hwreg(HW_REG_HW_ID)\nv_writelane_b32 v23, s53, 57")
    a("v_lshlrev_b32 v1, 2, %s", v(vLane))
    a("buffer_store_dword v23, v1, %s, s52 offen", srd(S_WS))
```

```python
from gen1 import *
import re
PARKV = 240
NMR, RSR = 210, 0
XT = 212
M32 = "v_mfma_f32_32x32x16_bf16"
M16 = "v_mfma_f32_16x16x32_bf16"
_uid = [0]
def uid():
    _uid[0] += 1
    return _uid[0]

def gemm(a, slots, depth, hook=None, ring=RING, ringn=9):
    u = uid()
    rl = ring if isinstance(ring, list) else [ring + 4 * i for i in range(ringn)]
    ringn = len(rl)
    rs = [i for i, s in enumerate(slots) if "rd" in s]
    pos = {i: k for k, i in enumerate(rs)}
    def issue(k):
        if k >= len(rs): return
        s = slots[rs[k]]; r = rl[k % ringn]
        for h, (ad, off) in enumerate(s["rd"]):
            a("ds_read_b64_tr_b16 %s, %s offset:%d", v(r + 2 * h, 2), v(ad), off, tag=("g", u, k))
    for k in range(depth): issue(k)
    for i, s in enumerate(slots):
        if s.get("pre"): s["pre"]()
        if "rd" in s:
            k = pos[i]; A = v(rl[k % ringn], 4)
            a.wait(vm=s.get("vm"), lg=("g", u, k))
        else:
            A = s["A"]; a.wait(vm=s.get("vm"), lg=s.get("lg"))
        D = s["acc"] if isinstance(s["acc"], str) else v(s["acc"], s["n"])
        if s.get("swap"): a("%s %s, %s, %s, %s", s["op"], D, s["B"], A, s.get("c", D))
        else: a("%s %s, %s, %s, %s", s["op"], D, A, s["B"], s.get("c", D))
        if "rd" in s: issue(pos[i] + depth)
        if hook: hook(i)

def rd_kvm(s, win):
    hi = s >= 20; s2 = s - 20 * hi
    ad = (vWm1 if hi else vWm0) if win == 128 else (vWkv1 if hi else vWkv0)
    return [(ad, s2 * 2816 + u * 176 + win) for u in (0, 1)]
def rd_q(s): return [(vWq, s * 1024 + u * 256) for u in (0, 1)]

def re_sg(x, sg):
    for i in range(4): x = re.sub(r"\bs%d\b" % (52 + i), "s#%d" % i, x)
    for i in range(4): x = x.replace("s#%d" % i, "s%d" % sg[i])
    return x
def fills(a, which, F0=XT):
    F = v(F0, 4)
    _a = a
    def a(x, *ar, **k): _a(x % ar if ar else x, tag="fill")
    for kind, i in which:
        if kind == "o": o_store(a, i, F, F, F, (70, 71, 72, 73))
        elif kind == "x": x_store(a, i, F, F, F, v(F0, 2), (70, 71, 72, 73))
        elif kind == "kv": kv_store(a, i, F, F, (70, 71, 72, 73), TMP + 8)
        elif kind == "h": halo_store(_a, i, [F] * 8, (70, 71, 72, 73), TMP + 8)

def o_store(a, i, d0, d1, d2, sg=(52, 53, 54, 55)):
    _a = a
    def a(x, *ar, **k): _a(re_sg(x % ar if ar else x, sg), **k)
    a("s_mul_i32 s52, %s, 40960\ns_lshl_b32 s53, %s, 10\ns_add_u32 s52, s52, %d\ns_add_u32 s53, s53, s52", sT, sHP, OB[i])
    a("s_lshl_b32 s54, %s, 8\ns_add_u32 s54, s54, s52\ns_add_u32 s54, s54, 16384", sHP)
    a("buffer_store_dwordx4 %s, %s, %s, s53 offen sc1", d0, v(vOst), srd(S_WS))
    a("buffer_store_dwordx4 %s, %s, %s, s53 offen offset:256 sc1", d1, v(vOst), srd(S_WS))
    a("s_mov_b64 exec, 0xffffffff")
    a("buffer_store_dwordx4 %s, %s, %s, s54 offen sc1", d2, v(vOst), srd(S_WS))
    a("s_mov_b64 exec, -1")

def x_store(a, i, d0, d1, d2, dst, sg=(52, 53, 54, 55)):
    _a = a
    def a(x, *ar, **k): _a(re_sg(x % ar if ar else x, sg), **k)
    a("s_lshr_b32 s52, %s, 1\ns_mul_i32 s52, s52, 40960\ns_mul_i32 s53, %s, 5120\ns_add_u32 s52, s52, s53\ns_add_u32 s52, s52, %d\ns_add_u32 s53, s52, 4096", sU, sC, XB[i])
    a("s_lshl_b32 s54, %s, 10\ns_lshl_b32 s55, %s, 7\ns_add_u32 s54, s54, s55\ns_add_u32 s54, s54, %d", sU, sC, ST[i])
    a("buffer_store_dwordx4 %s, %s, %s, s52 offen sc1", d0, v(vXst), srd(S_WS))
    a("buffer_store_dwordx4 %s, %s, %s, s52 offen offset:2048 sc1", d1, v(vXst), srd(S_WS))
    a("s_mov_b32 exec_lo, 0xffff\ns_mov_b32 exec_hi, 0xffff")
    a("buffer_store_dwordx4 %s, %s, %s, s53 offen sc1", d2, v(vXst), srd(S_WS))
    if dst is not None: st_store(a, dst)
    else: a("s_mov_b64 exec, -1")
def st_store(a, dst):
    a("s_mov_b64 exec, 0xffff")
    a("buffer_store_dwordx2 %s, %s, %s, s54 offen sc1", dst, v(vStSt), srd(S_WS))
    a("s_mov_b64 exec, -1")

def kv_store(a, i, d0, d1, sg=(52, 53, 54, 55), t=TMP):
    _a = a
    def a(x, *ar, **k): _a(re_sg(x % ar if ar else x, sg), **k)
    a("v_lshrrev_b32 %s, 4, %s\nv_mul_u32_u24 %s, 384, %s\nv_and_b32 %s, 15, %s\nv_lshl_add_u32 %s, %s, 4, %s", v(t), v(vLane), v(t), v(t), v(t + 1), v(vLane), v(t), v(t + 1), v(t))
    a("s_lshl_b32 s52, %s, 4\ns_add_u32 s52, s52, %s\ns_lshl_b32 s52, s52, 12\ns_add_u32 s52, s52, %d", sHP, sR, KVB[i])
    a("s_lshr_b32 s53, %s, 1\ns_mul_i32 s53, s53, 1920\ns_add_u32 s52, s52, s53\ns_and_b32 s53, %s, 1\ns_lshl_b32 s54, s53, 8\ns_add_u32 s52, s52, s54", sW, sW)
    a("s_cmp_eq_u32 s53, 0\ns_cselect_b32 s54, -1, 0x00ff00ff\ns_and_b32 s55, s54, 0xffff")
    a("s_mov_b32 exec_lo, s54\ns_mov_b32 exec_hi, s54")
    a("buffer_store_dwordx4 %s, %s, %s, s52 offen sc1", d0, v(t), srd(S_WS))
    a("s_mov_b32 exec_lo, s55\ns_mov_b32 exec_hi, 0")
    a("buffer_store_dwordx4 %s, %s, %s, s52 offen offset:1536 sc1", d1, v(t), srd(S_WS))
    a("s_mov_b64 exec, -1")

def halo_store(a, i, d, sg=(52, 53, 54, 55), t=TMP):
    _a = a
    def a(x, *ar, **k): _a(re_sg(x % ar if ar else x, sg), tag="nocount")
    a("v_lshrrev_b32 %s, 5, %s\nv_lshlrev_b32 %s, 1, %s\nv_lshl_add_u32 %s, %s, 8, %s", v(t), v(vLane), v(t + 1), v(vStSt), v(t), v(t), v(t + 1))
    a("s_lshl_b32 s52, %s, 4\ns_add_u32 s52, s52, %s\ns_lshl_b32 s52, s52, 12\ns_add_u32 s52, s52, %d", sR, sHP, HB[i])
    a("s_cmp_eq_u32 %s, 3\ns_cselect_b32 s54, 0xffff0000, 0\ns_mov_b32 exec_lo, s54\ns_mov_b32 exec_hi, s54", sW)
    lb = _a.newlabel("L_hs")
    a("s_cbranch_scc0 %s", lb)
    for k in range(8): a("buffer_store_dwordx4 %s, %s, %s, s52 offen offset:%d sc1", d[k], v(t), srd(S_WS), 512 * k)
    _a.label(lb)
    a("s_mov_b64 exec, -1")
HLD = 24
def halo_load(a, i):
    a("s_lshl_b32 s94, %s, 4\ns_add_u32 s94, s94, %s\ns_lshl_b32 s94, s94, 12\ns_add_u32 s94, s94, %d", sR, sHP, HB[i] - 65536)
    for k in range(4): a("buffer_load_dwordx4 %s, %s, %s, s94 offen offset:%d sc1", v(HLD + 4 * k, 4), v(vHx), srd(S_WS), 1024 * k, tag="hl")
def halo_consume(a, i, retry, redo):
    t = HLD + 16
    sk, chk, lp = a.newlabel("L_hk"), a.newlabel("L_hc"), a.newlabel("L_hl")
    a("s_cmp_lg_u32 %s, 0\ns_cbranch_scc1 %s", sW, sk)
    vm, lg = list(a.vm), list(a.lg)
    a.wait(vm="hl")
    a("s_branch %s", chk)
    a.label(lp)
    halo_load(a, i)
    a("s_waitcnt vmcnt(0)")
    a.label(chk)
    a("v_max3_u32 %s, %s, %s, %s", v(t), v(HLD), v(HLD + 1), v(HLD + 2))
    for k in range(3, 15, 2): a("v_max3_u32 %s, %s, %s, %s", v(t), v(t), v(HLD + k), v(HLD + k + 1))
    a("v_max_u32 %s, %s, %s\nv_cmp_eq_u32 vcc, -1, %s", v(t), v(t), v(HLD + 15), v(t))
    retry(a, lp, 1)
    for k in range(4): a("ds_write_b128 %s, %s", v(vHD[k]), v(HLD + 4 * k, 4))
    a("s_waitcnt lgkmcnt(0)")
    redo()
    a("s_waitcnt lgkmcnt(0)")
    a.vm, a.lg = vm, lg
    a.label(sk)

def arrive(a, base):
    t = TMP
    a("s_and_b32 s56, s2, 3\ns_lshl_b32 s56, s56, 5\ns_add_u32 s56, s56, %d\ns_cmp_eq_u32 %s, 0\ns_cselect_b32 s57, 0, 0x80000000\ns_or_b32 s56, s56, s57", base, sW)
    a("v_mov_b32 %s, s56\nv_mov_b32 %s, 1", v(t + 10), v(t + 11))
    a("s_mov_b64 exec, 1")
    a("buffer_atomic_add %s, %s, %s, 0 offen sc1", v(t + 11), v(t + 10), srd(S_DBG))
    a("s_mov_b64 exec, -1")

def init_probe(r, base):
    r("s_lshl_b32 s94, %s, 12\nv_lshlrev_b32 %s, 5, %s\nv_add_u32 %s, s94, %s\ns_mov_b64 exec, 15", sW, v(TMP + 8), v(vLane), v(TMP + 8), v(TMP + 8))
    r("buffer_load_dword %s, %s, %s, 0 offen offset:%d\ns_mov_b64 exec, -1", v(XT + 24), v(TMP + 8), srd(S_DBG), base, tag="ip")
L1CFG = dict(rot=1, every=2, pre=4, touch=0, st=(), accst=1, gates={'0': 3, '3': 6, '6': 9})
PK = list(range(176, 187)); PQ, PX = 187, 188
PKS = {'pk': PK, 'pq': PQ}
def raw_dma(r, n, srdw, tag, dst=None):
    r("s_add_u32 s95, s62, %d", (n // 11) * 256 * 3840)
    if dst is None:
        r("s_lshl_b32 s94, %s, 10\ns_add_u32 s94, s94, %d", sW, 4096 * n)
        if n == 27: r("s_cmp_lt_u32 %s, 2\ns_cselect_b32 s94, s94, 0x30000", sW)
        r("s_mov_b32 m0, s94")
        r("buffer_load_dwordx4 %s, %s, s95 offen lds", v(PKS['pk'][n % 11]), srd(srdw), tag=tag)
    else:
        r("buffer_load_dwordx4 %s, %s, %s, s95 offen", dst, v(PKS['pk'][n % 11]), srd(srdw), tag=tag)
def raw_q(r, p, srdw, tag):
    r("s_lshl_b32 s94, %s, 10\ns_add_u32 s94, s94, %d\ns_mov_b32 m0, s94", sW, QI + 4096 * p)
    r("s_mul_i32 s95, %s, %d\ns_add_u32 s95, s95, s62\ns_add_u32 s95, s95, %d", sW, 16 * 3840, p * 64 * 3840)
    r("buffer_load_dwordx4 %s, %s, s95 offen lds", v(PKS['pq']), srd(srdw), tag=tag)

def l1_startup(a):
    RS_, RD_ = [56, 57, 58, 59], [60, 61, 62, 63]
    XR = [224, 232, 240, 248, 192]
    ST4 = XT + 12
    SA_, QA_, SB_, QB_ = 189, 190, 191, XT + 7
    RP = 24
    t = TMP; L = v(vLane)
    a("s_movk_i32 s61, 1280")
    a("v_lshrrev_b32 %s, 2, %s\nv_mul_u32_u24 %s, 1280, %s", v(t), L, v(t), v(t))
    a("v_lshrrev_b32 %s, 4, %s\nv_xor_b32 %s, %s, %s\nv_and_b32 %s, 3, %s", v(t + 1), L, v(t + 1), v(t + 1), L, v(t + 1), v(t + 1))
    a("v_lshl_add_u32 %s, %s, 4, %s", v(PX), v(t + 1), v(t))
    a("s_mul_i32 s86, %s, 40960\ns_add_u32 s87, s86, 20480\ns_mul_i32 s62, %s, 80\ns_mul_i32 s63, %s, 160", sT, sHP, sC)
    stamp(a, "start")
    T3840, T1280 = 30, 31
    def wtouch(r, sj, srdw, dst):
        r("s_mul_i32 s94, %s, 4370\ns_lshr_b32 s94, s94, 16\ns_mul_i32 s95, s94, 15\ns_sub_u32 s95, %s, s95", sj, sj)
        r("s_mul_i32 s94, s94, %d\ns_mul_i32 s57, s95, 52\ns_lshr_b32 s57, s57, 8\ns_add_u32 s57, s57, %s\ns_mul_i32 s57, s57, 640", 64 * 3840, sH64)
        r("s_lshl_b32 s95, s95, 7\ns_add_u32 s95, s95, s94\ns_add_u32 s95, s95, s57")
        for o in range(0, 128, L1CFG.get("tg", 128)): r("buffer_load_dword %s, %s, %s, s95 offen offset:%d", v(dst), v(T3840), srd(srdw), o, tag="pf")
    if L1CFG["touch"]:
        a("s_lshr_b32 s98, s2, 3\ns_lshl_b32 s98, s98, 2\ns_add_u32 s98, s98, %s", sW)
        a("v_mul_u32_u24 %s, 3840, %s\nv_mul_u32_u24 %s, 1280, %s", v(T3840), L, v(T1280), L)
        if L1CFG["touch"] == 1: wtouch(a, "s98", S_WA, 32)
    if L1CFG["touch"] == 1:
        l2, l3, le = a.newlabel("L_t2"), a.newlabel("L_t3"), a.newlabel("L_te")
        a("s_cmp_lt_u32 s98, 80\ns_cbranch_scc0 %s", l2)
        a("s_lshr_b32 s94, %s, 2\ns_lshl_b32 s94, s94, 3\ns_and_b32 s95, s98, 7\ns_add_u32 s94, s94, s95\ns_mul_i32 s94, s94, %d\ns_lshr_b32 s95, s98, 3\ns_lshl_b32 s95, s95, 7\ns_add_u32 s95, s95, s94", sR, 64 * 1280)
        a("buffer_load_dword %s, %s, %s, s95 offen\ns_branch %s", v(33), v(T1280), srd(S_X), le)
        a.vm.pop()
        a.label(l2)
        a("s_add_u32 s58, s98, 48\ns_cmp_lt_u32 s98, 102\ns_cbranch_scc0 %s", l3)
        n0 = len(a.vm); wtouch(a, "s58", S_WA, 33); a.vm = a.vm[:n0]
        a("s_branch %s", le)
        a.label(l3)
        a("s_add_u32 s58, s98, 26\ns_min_u32 s58, s58, 149")
        wtouch(a, "s58", S_WB, 33)
        a.label(le)
    NP = PK + [24, 25, 26, 27]
    a("s_and_b32 s96, %s, 3\ns_mul_i32 s96, s96, 3\ns_add_u32 s96, s96, %s\ns_cmp_ge_u32 s96, 10\ns_cselect_b32 s97, 10, 0\ns_sub_u32 s96, s96, s97", sR, sC)
    if not L1CFG["rot"]: a("s_mov_b32 s96, 0")
    def ptab(r, p):
        r("s_add_u32 s90, s96, %d\ns_cmp_ge_u32 s90, 10\ns_cselect_b32 s91, 10, 0\ns_sub_u32 s90, s90, s91\ns_mul_i32 s90, s90, %d\ns_add_u32 s%d, s90, s62", p, 64 * 3840, 74 + p)
    def xld(r, un):
        r("s_add_u32 s90, s96, %d\ns_cmp_ge_u32 s90, 10\ns_cselect_b32 s91, 10, 0\ns_sub_u32 s90, s90, s91\ns_lshl_b32 s90, s90, 7\ns_add_u32 s90, s90, s86", un // 2)
        r("buffer_load_dwordx4 %s, %s, %s, s90 offen offset:%d", ag(8 * un, 4), v(PX), srd(S_X), 64 * (un % 2), tag=("u", un))
        r("s_add_u32 s90, s96, %d\ns_cmp_ge_u32 s90, 10\ns_cselect_b32 s91, 10, 0\ns_sub_u32 s90, s90, s91\ns_lshl_b32 s90, s90, 7\ns_add_u32 s90, s90, s87", un // 2)
        r("buffer_load_dwordx4 %s, %s, %s, s90 offen offset:%d", ag(8 * un + 4, 4), v(PX), srd(S_X), 64 * (un % 2), tag=("u", un))
    def pat_nat(r, n):
        d = v(NP[n]); A_, B_, C_ = v(t), v(t + 1), v(t + 2)
        r("s_add_u32 s58, %s, %d\ns_cmp_ge_u32 s58, 15\ns_cselect_b32 s57, 15, 0\ns_sub_u32 s58, s58, s57\ns_lshl_b32 s58, s58, 6", sW, 4 * n % 15)
        r("v_add_u32 %s, s58, %s\nv_mul_u32_u24 %s, 4370, %s\nv_lshrrev_b32 %s, 16, %s", A_, L, B_, A_, B_, B_)
        r("v_mul_u32_u24 %s, 15, %s\nv_sub_u32 %s, %s, %s", C_, B_, A_, A_, C_)
        r("v_mul_u32_u24 %s, 52, %s\nv_lshrrev_b32 %s, 8, %s\nv_mul_u32_u24 %s, 1200, %s\nv_lshl_add_u32 %s, %s, 4, %s", C_, A_, C_, C_, C_, C_, d, A_, C_)
        r("v_and_b32 %s, 3, %s\nv_lshlrev_b32 %s, 2, %s\nv_bfe_u32 %s, %s, 2, 2\nv_and_b32 %s, 48, %s\nv_or3_b32 %s, %s, %s, %s", A_, B_, A_, A_, C_, B_, B_, B_, A_, A_, B_, C_)
        r("v_mul_u32_u24 %s, 3840, %s\nv_add_u32 %s, %s, %s", A_, A_, d, d, A_)
    def wld(r, p):
        lo = 0 if p == 0 else (15 * (p - 1) + 14) // 4 + 1
        hi = min((15 * p + 14) // 4, 37)
        for n in range(lo, hi + 1):
            if n < 15: pat_nat(r, n)
            p0, p1 = 4 * n // 15, min((4 * n + 3) // 15, 9)
            r("s_lshl_b32 s94, %s, 10\ns_add_u32 s94, s94, %d", sW, 4096 * n)
            if n == 37: r("s_cmp_lt_u32 %s, 2\ns_cselect_b32 s94, s94, 0x30000", sW)
            r("s_mov_b32 m0, s94")
            so = "s%d" % (74 + p0)
            if p1 != p0:
                r("s_cmp_ge_u32 %s, %d\ns_cselect_b32 s95, s%d, s%d", sW, 15 * p1 - 4 * n, 74 + p1, 74 + p0); so = "s95"
            r("buffer_load_dwordx4 %s, %s, %s offen lds", v(NP[n % 15]), srd(S_WA), so, tag=("p", p))
    ptab(a, 0); ptab(a, 1)
    xld(a, 0); xld(a, 1)
    wld(a, 0)
    for p in range(2, 10): ptab(a, p)
    a("s_lshr_b32 s52, s2, 3\ns_lshl_b32 s52, s52, 2\ns_add_u32 s52, s52, %s\ns_lshl_b32 s52, s52, 10", sW)
    a("s_min_u32 s52, s52, (L_end-L_start-1024)&0xfffffff0")
    a("v_add_u32 %s, s52, %s", v(t + 8), v(vL16))
    a("global_load_dwordx4 %s, %s, s[84:85]", ag(252, 4), v(t + 8), tag="pf")
    xld(a, 2); xld(a, 3); wld(a, 1)
    a("s_lshl_b32 s58, %s, 1\ns_add_u32 s58, s58, %s\ns_lshl_b32 s58, s58, 2\ns_add_u32 s58, s58, %s", sR, sH64, sW)
    pat_wo(a, RS_[3], "s58", t)
    a("s_cmp_lt_u32 s58, 100\ns_cselect_b32 s53, 0, 0x80000000\ns_lshl_b32 s58, s58, 10\ns_or_b32 s58, s58, s53")
    a("v_or_b32 %s, s53, %s\nv_add_u32 %s, s58, %s", v(RS_[3]), v(RS_[3]), v(RD_[3]), v(vL16))
    a("buffer_load_dwordx4 %s, %s, %s, s63 offen", v(RP + 24, 4), v(RS_[3]), srd(S_WOA), tag="rp0")
    for p in range(2, L1CFG["pre"]): xld(a, 2 * p); xld(a, 2 * p + 1); wld(a, p)
    if L1CFG["touch"] == 1: wtouch(a, "s98", S_WB, 34)
    stamp(a, "l1 issued")
    pat_q(a, PQ, t)
    addr_regs(a)
    NK, NM = [56, 57, 58], [60, 61, 62]
    a("v_bfe_u32 %s, %s, 2, 2\nv_lshrrev_b32 %s, 5, %s\nv_lshlrev_b32 %s, 2, %s\nv_lshl_add_u32 %s, %s, 1, %s\nv_mul_u32_u24 %s, 240, %s", v(t), L, v(t + 1), L, v(t), v(t), v(t), v(t + 1), v(t), v(t), v(t))
    a("v_bfe_u32 %s, %s, 4, 1\nv_bfe_u32 %s, %s, 1, 1\nv_lshl_add_u32 %s, %s, 1, %s\nv_and_b32 %s, 1, %s", v(t + 1), L, v(t + 2), L, v(t + 1), v(t + 1), v(t + 2), v(t + 2), L)
    a("v_mul_u32_u24 %s, 48, %s\nv_lshl_add_u32 %s, %s, 3, %s\nv_add_u32 %s, %s, %s", v(t + 3), v(t + 2), v(t + 3), v(t + 1), v(t + 3), v(NK[0]), v(t + 3), v(t))
    a("v_mul_u32_u24 %s, 80, %s\nv_lshl_add_u32 %s, %s, 3, %s\nv_add_u32 %s, %s, %s", v(t + 3), v(t + 1), v(t + 3), v(t + 2), v(t + 3), v(NM[0]), v(t + 3), v(t))
    for i in (1, 2): a("v_add_u32 %s, %d, %s\nv_add_u32 %s, %d, %s", v(NK[i]), 61440 * i, v(NK[0]), v(NM[i]), 61440 * i, v(NM[0]))
    def rd_nat(s, win): return [((NM if win == 32 else NK)[s // 16], (s % 16) * 3840 + u * 240 + win) for u in (0, 1)]
    SW, SR0, SR1 = XT + 4, XT + 5, XT + 6
    a("s_lshl_b32 s52, %s, 11\ns_add_u32 s52, s52, %d", sW, STG)
    a("v_add_u32 %s, s52, %s", v(SW), v(vL16))
    a("v_and_b32 %s, 31, %s\nv_lshlrev_b32 %s, 6, %s\nv_add_u32 %s, s52, %s", v(t), L, v(t), v(t), v(t), v(t))
    a("v_bfe_u32 %s, %s, 2, 2\nv_lshrrev_b32 %s, 5, %s\nv_xor_b32 %s, %s, %s", v(t + 1), L, v(t + 2), L, v(t + 1), v(t + 1), v(t + 2))
    a("v_lshl_add_u32 %s, %s, 4, %s", v(SR0), v(t + 1), v(t))
    a("v_xor_b32 %s, 32, %s", v(SR1), v(SR0))
    for i in range(4): a("v_mov_b32 %s, -1\nv_mov_b32 %s, 0x3f803f80", v(XT + i), v(XT + 8 + i))
    for r_ in (SA_, QA_, SB_, QB_): a("v_mov_b32 %s, 0", v(r_))
    a("v_add_u32 %s, %d, %s", v(t), SP, v(vL16))
    for i in range(4): a("v_mov_b32 %s, 0", v(t + 4 + i))
    a("ds_write_b128 %s, %s", v(t), v(t + 4, 4))
    ONES = v(XT + 8, 4)
    RPS, RPD, RDAT = [36, 37, 38], [39, 40, 41], [192, 196, 44]
    def rp_pat(r):
        for i in range(3):
            r("s_lshl_b32 s58, %s, 2\ns_add_u32 s58, s58, %s\ns_add_u32 s58, s58, %d\ns_lshl_b32 s57, s58, 10", sR, sW, 64 * i)
            r("v_add_u32 %s, s57, %s", v(RPD[i]), v(vL16))
            if i < 2: pat_kvm(r, RPS[i], "s58", t + 4)
            if i > 0:
                r("s_lshl_b32 s58, %s, 2\ns_add_u32 s58, s58, %s\ns_add_i32 s58, s58, %d\ns_mul_i32 s57, s58, %d", sR, sW, 64 * i - 110, 16 * 3840)
                r("v_add_u32 %s, s57, %s", v(t + 4), v(PQ))
            if i == 1:
                r("s_lshl_b32 s58, %s, 2\ns_add_u32 s58, s58, %s\ns_cmp_ge_u32 s58, 46\ns_cselect_b64 vcc, -1, 0", sR, sW)
                r("v_cndmask_b32 %s, %s, %s, vcc", v(RPS[1]), v(RPS[1]), v(t + 4))
            if i == 2:
                r("s_lshl_b32 s58, %s, 2\ns_add_u32 s58, s58, %s\ns_cmp_lt_u32 s58, 22\ns_cselect_b32 s57, 0, 0x80000000", sR, sW)
                r("v_or_b32 %s, s57, %s\nv_and_b32 %s, 0x80000000, %s\nv_or_b32 %s, %s, %s", v(RPS[2]), v(t + 4), v(t + 4), v(RPS[2]), v(RPD[2]), v(RPD[2]), v(t + 4))
    def rp_load(r, srdw, tag):
        for i in range(3): r("buffer_load_dwordx4 %s, %s, %s, s62 offen", v(RDAT[i], 4), v(RPS[i]), srd(srdw), tag=tag)
    def rp_store(r, which, tagw, tag):
        r.wait(vm=tagw)
        for i in range(3):
            r("s_mul_i32 s94, %s, 153600\ns_add_u32 s94, s94, %d", sHP, PW[which])
            r("buffer_store_dwordx4 %s, %s, %s, s94 offen sc1", v(RDAT[i], 4), v(RPD[i]), srd(S_WS), tag=tag)
    def early0(r):
        rp_pat(r); rp_load(r, S_WB, "rpb")
    def early2(r):
        rp_store(r, 1, "rpb", "early"); rp_load(r, S_WA, "rpa")
    def early(r):
        fills(r, [("h", 0), ("o", 0)])
        r.wait(vm="rp0")
        r("s_mul_i32 s94, %s, 102400\ns_add_u32 s94, s94, %d", sC, PO[0])
        r("buffer_store_dwordx4 %s, %s, %s, s94 offen sc1", v(RP + 24, 4), v(RD_[3]), srd(S_WS), tag="early")
    def late1(r):
        r("v_and_b32 %s, 15, %s\nv_mul_u32_u24 %s, 1280, %s\nv_lshrrev_b32 %s, 4, %s\nv_lshl_add_u32 %s, %s, 3, %s", v(t), L, v(t), v(t), v(t + 1), L, v(t + 2), v(t + 1), v(t))
        r("s_mul_i32 s94, %s, 20480\ns_add_u32 s94, s94, s63", sU)
        for i in range(5): r("buffer_load_dwordx2 %s, %s, %s, s94 offen offset:%d", v(RES + 2 * i, 2), v(t + 2), srd(S_X), 32 * i, tag="res")
        r("buffer_load_dwordx4 %s, %s, %s, s63 offen", v(RP + 28, 4), v(RS_[3]), srd(S_WOB), tag="rp")
        fills(r, [("kv", 0), ("x", 0)])
    def late2(r):
        rp_store(r, 0, "rpa", "late")
        r.wait(vm="rp")
        r("s_mul_i32 s94, %s, 102400\ns_add_u32 s94, s94, %d", sC, PO[1])
        r("buffer_store_dwordx4 %s, %s, %s, s94 offen sc1", v(RP + 28, 4), v(RD_[3]), srd(S_WS), tag="late")
    vq = Stream(a)
    lq = Stream(a)
    def stage(un):
        b = XR[un % 4]
        if L1CFG["accst"]:
            for i in range(8): a("v_accvgpr_read_b32 %s, %s", v(b + i), ag(8 * un + i))
        a("ds_write_b128 %s, %s", v(SW), ag(8 * un, 4))
        a("ds_write_b128 %s, %s offset:1024", v(SW), ag(8 * un + 4, 4))
        a("ds_read_b128 %s, %s", ag(8 * un, 4), v(SR0), tag=("xf", un))
        a("ds_read_b128 %s, %s", ag(8 * un + 4, 4), v(SR1), tag=("xf", un))
        if L1CFG["accst"]:
            def st(r):
                for i in range(8):
                    S_, Q_ = (SA_, QA_) if i < 4 else (SB_, QB_)
                    r("v_dot2c_f32_bf16 %s, %s, %s\nv_dot2c_f32_bf16 %s, %s, %s", v(S_), v(b + i), v(vONES), v(Q_), v(b + i), v(b + i))
            vq.add(st)
            return
        a("ds_read_b128 %s, %s", v(b, 4), v(SR0), tag=("xs", un))
        a("ds_read_b128 %s, %s", v(b + 4, 4), v(SR1), tag=("xs", un))
        def st(r):
            r.wait(lg=("xs", un))
            for i in range(8):
                r("v_dot2c_f32_bf16 %s, %s, %s\nv_dot2c_f32_bf16 %s, %s, %s", v(SA_), v(b + i), v(vONES), v(QA_), v(b + i), v(b + i))
        vq.add(st)
    GATES = L1CFG["gates"]
    def force(p):
        while p in marks and marks[p] > done[0]: lq.play(1); done[0] += 1
    def gate(upto):
        force(min(upto + L1CFG.get("la", 0), 9))
        a.wait(vm=("p", upto))
        a("s_barrier")
        stamp(a, "l1 g%d" % upto) if upto in L1CFG["st"] else None
        if upto == 9: arrive(a, 0)
    def stage_ops(un):
        b = XR[un % 4]
        def o0():
            force(min(un // 2 + L1CFG.get("la", 0), 9)); a.wait(vm=("u", un))
            for i in range(4): a("v_accvgpr_read_b32 %s, %s", v(b + i), ag(8 * un + i))
        def o1():
            for i in range(4, 8): a("v_accvgpr_read_b32 %s, %s", v(b + i), ag(8 * un + i))
            def st(r):
                for i in range(8):
                    S_, Q_ = (SA_, QA_) if i < 4 else (SB_, QB_)
                    r("v_dot2c_f32_bf16 %s, %s, %s\nv_dot2c_f32_bf16 %s, %s, %s", v(S_), v(b + i), v(vONES), v(Q_), v(b + i), v(b + i))
            vq.add(st)
        if L1CFG.get("nost"):
            def o0(): force(un // 2); a.wait(vm=("u", un))
            def o1(): pass
        if L1CFG.get("nost") == 2: return [o0]
        return [o0, o1, lambda: a("ds_write_b128 %s, %s", v(SW), ag(8 * un, 4)), lambda: a("ds_write_b128 %s, %s offset:1024", v(SW), ag(8 * un + 4, 4)),
                lambda: a("ds_read_b128 %s, %s", ag(8 * un, 4), v(SR0), tag=("xf", un)), lambda: a("ds_read_b128 %s, %s", ag(8 * un + 4, 4), v(SR1), tag=("xf", un))]
    marks = {}; done = [0]
    BARE = L1CFG.get("bare", 0)
    eq = Stream(a, early0 if not BARE & 1 else None)
    if not BARE & 2: lq.add(early)
    for p in range(L1CFG["pre"], 10):
        if p == 9 and not BARE & 1: lq.add(early2)
        lq.add(lambda r: (xld(r, 2 * p), xld(r, 2 * p + 1), wld(r, p))); marks[p] = len(lq)
    if L1CFG["touch"] == 2:
        lq.add(lambda r: (wtouch(r, "s98", S_WB, 34), r("s_add_u32 s58, s98, 128\ns_cmp_lt_u32 s58, 150\ns_cselect_b32 s58, s58, s98"), wtouch(r, "s58", S_WB, 35)))
    if not BARE & 4: lq.add(late1)
    for un in (0, 1):
        for o in stage_ops(un): o()
    gate(0)
    slots = []; DEP = 5
    for s in range(40):
        B = ag(4 * s, 4); c = {"c": "0"} if s == 0 else {}
        first = {"pre": (lambda un=s // 2: a.wait(lg=("xf", un)))}
        slots += [dict(op=M32, acc=AK, n=16, rd=rd_nat(s, 80), B=B, **first, **c), dict(op=M32, acc=AV, n=16, rd=rd_nat(s, 160), B=B, **c),
                  dict(op=M32, acc=AM, n=16, rd=rd_nat(s, 32), B=B, **c), dict(op=M32, acc=AQ, n=16, rd=rd_nat(s, 0), B=B, **c)]
    sops = []
    def hook(i):
        s, k = divmod(i, 4); p, j = divmod(i, 16)
        if k == 3 and not L1CFG.get("nocs"):
            lb = a.newlabel("L_cs")
            a("s_cmp_eq_u32 %s, %d\ns_cbranch_scc0 %s", sW, s % 4, lb)
            for q in range(4): a("%s %s, %s, %s, %s", M32, ag(160 + 16 * q, 16), ONES, v(RING + 4 * ((4 * s + q) % 9), 4), ag(160 + 16 * q, 16) if s >= 4 else "0")
            a.label(lb)
        if j == 0 and p < 9: sops.extend(stage_ops(2 * p + 2) + stage_ops(2 * p + 3))
        if sops: sops.pop(0)()
        if j == 10 and str(p) in GATES: gate(GATES[str(p)])
        vq.play(3); eq.play(2)
        if i % L1CFG["every"] == 0 or done[0] >= marks[9]: lq.play(1); done[0] += 1
    gemm(a, slots, DEP, hook=hook)
    assert not len(eq)
    vq.flush(); lq.flush()
    stamp(a, "l1 mfma end")
    if not BARE & 4: late2(a)
    if L1CFG["accst"]:
        for r_ in (SA_, QA_, SB_, QB_):
            a("v_add_f32_dpp %s, %s, %s quad_perm:[1,0,3,2] row_mask:0xf bank_mask:0xf", v(r_), v(r_), v(r_))
        for r_ in (SA_, QA_, SB_, QB_):
            a("v_add_f32_dpp %s, %s, %s quad_perm:[2,3,0,1] row_mask:0xf bank_mask:0xf", v(r_), v(r_), v(r_))
        a("v_and_b32 %s, 15, %s\nv_lshlrev_b32 %s, 4, %s", v(t + 2), L, v(t + 2), v(t + 2))
        for k, r_ in enumerate((SA_, QA_, SB_, QB_)): a("ds_bpermute_b32 %s, %s, %s", v(t + 4 + k), v(t + 2), v(r_))
        a("v_and_b32 %s, 16, %s\nv_cmp_eq_u32 vcc, 0, %s\ns_waitcnt lgkmcnt(0)", v(t + 3), L, v(t + 3))
        a("v_cndmask_b32 %s, %s, %s, vcc\nv_cndmask_b32 %s, %s, %s, vcc", v(t), v(t + 6), v(t + 4), v(t + 1), v(t + 7), v(t + 5))
    else:
        a("v_mov_b32 %s, %s\nv_mov_b32 %s, %s", v(t), v(SA_), v(t + 1), v(QA_))
        a("v_permlane32_swap_b32 %s, %s\nv_permlane32_swap_b32 %s, %s", v(SA_), v(t), v(QA_), v(t + 1))
        a("v_add_f32 %s, %s, %s\nv_add_f32 %s, %s, %s", v(t), v(t), v(SA_), v(t + 1), v(t + 1), v(QA_))
    stats_fin(a, t, t + 1, NMR, RSR)
    return ONES

def cs_add(a, which, tiles, t=TMP):
    L = v(vLane)
    a("v_bfe_u32 %s, %s, 2, 1\nv_lshlrev_b32 %s, 8, %s\nv_and_b32 %s, 3, %s\nv_lshl_add_u32 %s, %s, 2, %s", v(t), L, v(t), v(t), v(t + 1), L, v(t), v(t + 1), v(t))
    a("v_bfe_u32 %s, %s, 3, 2\nv_lshl_add_u32 %s, %s, 4, %s\nv_add_u32 %s, %d, %s", v(t + 1), L, v(t), v(t + 1), v(t), v(t), SP, v(t))
    a("s_mov_b64 exec, 0xffffffff")
    for k, r in tiles.items(): a("ds_add_f32 %s, %s offset:%d", v(t), r, CS[which] + 64 * k)
    a("s_mov_b64 exec, -1")
def cs_steps(a, s0, n, acc, ones, first, ring, t=TMP, tiles=(0, 1, 2), hook=None):
    a("s_mul_i32 s52, %s, %d\ns_add_u32 s52, s52, %d\ns_mul_i32 s53, %s, %d\ns_add_u32 s53, s53, %d", sW, 2816 * n, 2816 * s0, sW, 1024 * n, 1024 * s0)
    if 0 in tiles: a("v_add_u32 %s, s52, %s\nv_add_u32 %s, s52, %s", v(t), v(vWkv0), v(t + 1), v(vWm0))
    else: a("v_add_u32 %s, s53, %s", v(t), v(vWq))
    slots = []
    for s in range(n):
        c = {"c": "0"} if s == 0 and first else {}
        for q, k in enumerate(tiles):
            rd = [(t, s * 1024 + u * 256) for u in (0, 1)] if k == 3 else [((t, t, t + 1)[k], s * 2816 + u * 176 + 64 * k) for u in (0, 1)]
            slots.append(dict(op=M32, acc=acc[q], n=16, rd=rd, B=ones, swap=True, **c))
    gemm(a, slots, len(ring) - 1, ring=ring, hook=hook)

def stats_fin(a, S, Q, NM, RS):
    a("s_mov_b32 s56, 0x%08x" % f32bits(1.0 / 640))
    a("v_mul_f32 %s, s56, %s\nv_mul_f32 %s, s56, %s", v(NM), v(S), v(RS), v(Q))
    a("v_fma_f32 %s, -%s, %s, %s", v(RS), v(NM), v(NM), v(RS))
    a("v_max_f32 %s, 0, %s\nv_add_f32 %s, 0x%08x, %s" % (v(RS), v(RS), v(RS), f32bits(1e-5), v(RS)))
    a("v_rsq_f32 %s, %s\nv_sub_f32 %s, 0, %s", v(RS), v(RS), v(NM), v(NM))

import struct
def f32bits(x): return struct.unpack("<I", struct.pack("<f", x))[0]

def pairs(base_list):
    for b, n in base_list:
        for i in range(0, n, 2): yield b + i

def scale_regs(a, lst, RS):
    for r in pairs(lst): a("v_pk_mul_f32 %s, %s, %s op_sel_hi:[1,0]", v(r, 2), v(r, 2), v(RS, 2))
def pack20(a, dst, main, mix):
    src = [main + i for i in range(16)] + [mix + i for i in range(4)]
    for i in range(10): a("v_cvt_pk_bf16_f32 %s, %s, %s", v(dst + i), v(src[2 * i]), v(src[2 * i + 1]))

def prep_records(a, RS, hi):
    scale_regs(a, [(AK, 16), (AM + 4, 8), (AV, 16)], RS)
    pack20(a, AK, AK, AM + 4)
def write_records(a, hi):
    halo_store(a, hi, [v(AK, 4), v(AK + 4, 4), v(AK + 8, 4)] + [v(AV + 4 * i, 4) for i in range(4)] + [v(AM + 8, 4)])
    o = 14 * 48
    a("ds_write_b128 %s, %s offset:%d\nds_write_b128 %s, %s offset:%d\nds_write_b64 %s, %s offset:%d", v(vKrec), v(AK, 4), o, v(vKrec), v(AK + 4, 4), o + 16, v(vKrec), v(AK + 8, 2), o + 32)
    o = 14 * 80
    for i in range(4): a("ds_write_b128 %s, %s offset:%d", v(vVrec), v(AV + 4 * i, 4), o + 16 * i)
    a("ds_write_b128 %s, %s offset:%d", v(vVrec), v(AM + 8, 4), o + 64)

def attention(a, RS, oidx, retry):
    LG = TMP; t = TMP + 8
    KR = [RING, RING + 12, RING + 24]; VR = [24, 44, XT]
    def rdk(i, a=a):
        r = KR[i % 3]; o = (14 - 2 * i) * 48
        a("ds_read_b128 %s, %s offset:%d\nds_read_b128 %s, %s offset:%d\nds_read_b64 %s, %s offset:%d", v(r, 4), v(vKrec), o, v(r + 4, 4), v(vKrec), o + 16, v(r + 8, 2), v(vKrec), o + 32, tag=("k", i))
    def rdv(i):
        r = VR[i % 3]; o = (14 - 2 * i) * 80
        for j in range(5): a("ds_read_b128 %s, %s offset:%d", v(r + 4 * j, 4), v(vVrec), o + 16 * j, tag=("v", i))
    for i in (1, 2, 3): rdk(i)
    scale_regs(a, [(AQ, 16), (AM, 4)], RS)
    pack20(a, AQ, AQ, AM)
    for i in range(8): a("v_mov_b32 %s, 0", v(LG + i))
    for i in range(8):
        r = AK if i == 0 else KR[i % 3]
        if i == 1:
            z = a.a if isinstance(a, Mix) else a
            halo_consume(z, oidx // 2, retry, lambda: [rdk(k, z) for k in (1, 2, 3)])
        if i: a.wait(lg=("k", i))
        for j in range(10): a("v_dot2c_f32_bf16 %s, %s, %s", v(LG + i), v(AQ + j), v(r + j))
        if 1 <= i <= 4: rdk(i + 3)
        if i == 7: a.wait(vm="hl")
        if i in (5, 6, 7): rdv(i - 4)
    lb = a.newlabel("L_nomask")
    z = a.a if isinstance(a, Mix) else a
    z("s_cmp_lg_u32 %s, 0\ns_cbranch_scc1 %s", sT, lb)
    z("v_and_b32 %s, 31, %s\nv_mov_b32 %s, 0xff800000", v(t), v(vLane), v(t + 1))
    for i in range(1, 8):
        z("v_cmp_le_u32 vcc, %d, %s\nv_cndmask_b32 %s, %s, %s, vcc", 2 * i, v(t), v(LG + i), v(t + 1), v(LG + i))
    z("s_nop 2")
    a.label(lb)
    a("v_max3_f32 %s, %s, %s, %s\nv_max3_f32 %s, %s, %s, %s", v(t), v(LG), v(LG + 1), v(LG + 2), v(t + 1), v(LG + 3), v(LG + 4), v(LG + 5))
    a("v_max3_f32 %s, %s, %s, %s\nv_max_f32 %s, %s, %s", v(t), v(t), v(LG + 6), v(LG + 7), v(t), v(t), v(t + 1))
    import math
    a("s_mov_b32 s56, 0x%08x" % f32bits(20 ** -0.5 * math.log2(math.e)))
    a("v_mul_f32 %s, s56, %s", v(t), v(t))
    for i in range(8): a("v_fma_f32 %s, %s, s56, -%s", v(LG + i), v(LG + i), v(t))
    for i in range(8): a("v_exp_f32 %s, %s", v(LG + i), v(LG + i))
    a("v_pk_add_f32 %s, %s, %s\nv_pk_add_f32 %s, %s, %s", v(t, 2), v(LG, 2), v(LG + 2, 2), v(t + 2, 2), v(LG + 4, 2), v(LG + 6, 2))
    a("v_pk_add_f32 %s, %s, %s\nv_add_f32 %s, %s, %s\nv_rcp_f32 %s, %s", v(t, 2), v(t, 2), v(t + 2, 2), v(t), v(t), v(t + 1), v(t), v(t))
    O = list(pairs([(AV, 16), (AM + 8, 4)]))
    for i in range(8):
        sel = "op_sel:[0,%d,0] op_sel_hi:[1,%d,1]" % (i % 2, i % 2)
        P = v(LG + i - i % 2, 2)
        if i == 0:
            for r in O: a("v_pk_mul_f32 %s, %s, %s op_sel_hi:[1,0]", v(r, 2), v(r, 2), P)
        else:
            a.wait(lg=("v", i))
            for j, r in enumerate(O): a("v_pk_fma_f32 %s, %s, %s, %s %s", v(r, 2), v(VR[i % 3] + 2 * j, 2), P, v(r, 2), sel)
            if i + 3 <= 7: rdv(i + 3)
    scale_regs(a, [(AV, 16), (AM + 8, 4)], t)
    publish_o(a, oidx)

def publish_o(a, oidx, mix=AM + 8):
    pack20(a, AV, AV, mix)
    a("v_permlane32_swap_b32 %s, %s\nv_permlane32_swap_b32 %s, %s", v(AV + 8), v(AV + 10), v(AV + 9), v(AV + 11))
    o_store(a, oidx, v(AV, 4), v(AV + 4, 4), v(AV + 8, 4))
    stamp(a, "o%d pub" % (oidx + 1))


def layer1_qkv(a, chk, mid, phid, retry):
    ONES = l1_startup(a)
    stamp(a, "l1 gemm done")
    cs_add(a, 0, {k: ag(160 + 16 * k) for k in range(4)})
    init_probe(a, 0)
    for i in range(4): a("v_mov_b32 %s, -1", v(232 + i))
    a("s_waitcnt lgkmcnt(0)\ns_barrier")
    stamp(a, "l1 cs")
    for k in range(2):
        for i in range(4): a("ds_read_b128 %s, %s offset:%d", v(RING + 16 * k + 4 * i, 4), v(vCs), CS[0] + 64 * k + 16 * i, tag=("cs", k))
    def apply(k):
        a.wait(lg=("cs", k))
        for i in range(0, 16, 2):
            a("v_pk_fma_f32 %s, %s, %s, %s op_sel_hi:[1,0,1]", v(AK + 16 * k + i, 2), v(RING + 16 * (k % 2) + i, 2), v(NMR, 2), v(AK + 16 * k + i, 2))
        if k < 2:
            for i in range(4): a("ds_read_b128 %s, %s offset:%d", v(RING + 16 * k + 4 * i, 4), v(vCs), CS[0] + 64 * (k + 2) + 16 * i, tag=("cs", k + 2))
    for k in range(3): apply(k)
    prep_records(a, RSR, 0)
    write_records(a, 0)
    phid(a)
    fills(a, [("o", 1)], 232)
    apply(3)
    chk(a)
    halo_load(a, 0)
    stamp(a, "l1 recs")
    a.wait(vm="late")
    bg = mid(a)
    arrive(a, 128)
    stamp(a, "l1 mid")
    attention(Mix(a, bg, 8), RSR, 0, retry)
    return bg
```

```python
from gen2 import *
import math
CFG = dict(h_ld=32, att_every=12, kv_probe=24, g_every=2, wo_pre=6, wo_every=3, x_pre=10, pk0=92, d_o=6, d_x=6, d_kv=6)
MAXRETRY = 200000

def parkreg(n): return ag(160 + 4 * n, 4) if n < 24 else v(PARKV + 4 * (n - 24), 4)

def bounded_retry(a, label, sleep=2):
    ok = a.newlabel("L_ok")
    a("s_cbranch_vccz %s", ok)
    a("s_add_u32 %s, %s, 1\ns_cmp_gt_u32 %s, %d\ns_cbranch_scc1 %s", sRETRY, sRETRY, sRETRY, MAXRETRY, ok)
    vm, lg = list(a.vm), list(a.lg)
    a("s_waitcnt vmcnt(0) lgkmcnt(0)\ns_sleep %d\ns_branch %s" % (sleep, label))
    a.vm, a.lg = vm, lg
    a.label(ok)

def init_check(a, reg, base, tag):
    ok, lp = a.newlabel("L_iok"), a.newlabel("L_iwp")
    a("s_cmp_lg_u32 %s, 0\ns_cbranch_scc1 %s", sW, ok)
    vm0, lg0 = list(a.vm), list(a.lg)
    a.wait(vm=tag)
    a("s_mov_b64 exec, 15\nv_cmp_gt_u32 vcc, 64, %s\ns_cbranch_vccz %s", v(reg), ok)
    vm, lg = list(a.vm), list(a.lg)
    a("v_lshlrev_b32 %s, 5, %s", v(TMP + 8), v(vLane))
    a.label(lp)
    a("buffer_load_dword %s, %s, %s, 0 offen offset:%d sc1\ns_waitcnt vmcnt(0)", v(reg), v(TMP + 8), srd(S_DBG), base)
    a("v_cmp_gt_u32 vcc, 64, %s", v(reg))
    bounded_retry(a, lp, 4)
    a.vm, a.lg = vm0, lg0
    a.label(ok)
    a("s_mov_b64 exec, -1")

def wo_base(a, which):
    a("s_mul_i32 s96, %s, 102400\ns_lshl_b32 s97, %s, 10\ns_add_u32 s96, s96, s97\ns_add_u32 s96, s96, %d", sC, sW, PO[which])
def wo_dma(a, ns):
    for n in ns:
        a("s_add_u32 s94, s97, %d\ns_mov_b32 m0, s94\ns_add_u32 s95, s96, %d", WOI + 4096 * n, 4096 * n)
        a("buffer_load_dwordx4 %s, %s, s95 offen lds", v(vL16), srd(S_WS), tag="wod")
WO1 = list(range(2, 15))
WO2 = [0, 1] + list(range(15, 25))

def park_base(a, which):
    a("s_mul_i32 s88, %s, 153600\ns_lshl_b32 s89, %s, 10\ns_add_u32 s88, s88, s89\ns_add_u32 s88, s88, %d", sHP, sW, PW[which])
def park_load(a, ns):
    for n in ns:
        a("s_add_u32 s95, s88, %d", 4096 * n)
        a("buffer_load_dwordx4 %s, %s, %s, s95 offen", parkreg(n), v(vL16), srd(S_WS), tag=("park", n))
def park_load27(a):
    a("s_add_u32 s95, s88, %d", 4096 * 27)
    a("buffer_load_dwordx4 %s, %s, %s, s95 offen", parkreg(27), v(vL16), srd(S_WS), tag=("park", 27))
def pack_store(a):
    for n in range(28):
        lb = a.newlabel("L_ps")
        a("s_cmp_eq_u32 %s, %d\ns_cbranch_scc0 %s\ns_add_u32 s95, s88, %d", sR, n % 16, lb, 4096 * n)
        a("buffer_store_dwordx4 %s, %s, %s, s95 offen sc1", parkreg(n), v(vL16), srd(S_WS))
        a.vm.pop()
        a.label(lb)
def park_write(a, ns, t, raw=False):
    a("v_add_u32 %s, s89, %s\nv_add_u32 %s, 0x10000, %s", v(t), v(vL16), v(t + 1), v(t))
    for n in ns:
        a.wait(vm=("park", n))
        if raw and n == 27: a("s_cmp_lt_u32 %s, 2\ns_cselect_b64 exec, -1, 0", sW)
        a("ds_write_b128 %s, %s offset:%d", v(t + n // 16), parkreg(n), 4096 * (n % 16))
        if raw and n == 27: a("s_mov_b64 exec, -1")
def q_base(a):
    a("s_mov_b32 s98, s88")
def q_dma(a):
    for n in range(28, 38):
        a("s_add_u32 s94, s89, %d", 4096 * n)
        if n == 37: a("s_cmp_lt_u32 %s, 2\ns_cselect_b32 s94, s94, 0x30000", sW)
        a("s_mov_b32 m0, s94\ns_add_u32 s95, s98, %d", 4096 * n)
        a("buffer_load_dwordx4 %s, %s, s95 offen lds", v(vL16), srd(S_WS), tag="qd")

def wo_phase(a, L, rest, after_bulk=None):
    WAC, PR, D = 64, 24, 40
    a.wait(vm="wod")
    a("s_barrier")
    a("s_mul_i32 s59, %s, 20480\ns_add_u32 s59, s59, %d\ns_add_u32 s60, s59, 16384", sU, OB[L])
    stamp(a, "wo%d bar" % (L + 1))
    if L == 0: a.wait(vm="res"); phi_frags(a)
    early = [n for n in range(12) if L < 3 and not rest.has(("park", n))]
    if early: park_write(a, early, TMP + 2)
    if L == 0:
        for i in range(4): a("v_mov_b32 %s, 0x3f803f80", v(CONE + i))
        CS1[0] = (len(early) * 4096 // 2816) // 4 * 4
        print('early', len(early), CS1)
        if CS1[0]:
            a("s_waitcnt lgkmcnt(0)\ns_barrier")
            cs_steps(a, 0, CS1[0] // 4, CACC, v(CONE, 4), True, CRING)
    if CFG["d_o"] and len(early) < 8: a("s_sleep %d", CFG["d_o"])
    top = a.newlabel("L_wo")
    a.label(top)
    for i in range(4): a("buffer_load_dwordx4 %s, %s, %s, s60 offen offset:%d sc1", v(PR + 4 * i, 4), v(vL16), srd(S_WS), 1024 * i, tag="pr")
    for i in range(10):
        a("v_lshlrev_b32 %s, 16, %s\nv_and_b32 %s, 0xffff0000, %s", v(WAC + 2 * i), v(RES + i), v(WAC + 2 * i + 1), v(RES + i))
    a.wait(vm="pr")
    a("v_max3_u32 %s, %s, %s, %s", v(TMP), v(PR), v(PR + 1), v(PR + 2))
    for i in range(3, 15, 2): a("v_max3_u32 %s, %s, %s, %s", v(TMP), v(TMP), v(PR + i), v(PR + i + 1))
    a("v_max_u32 %s, %s, %s", v(TMP), v(TMP), v(PR + 15))
    a("v_cmp_eq_u32 vcc, -1, %s", v(TMP))
    bounded_retry(a, top)
    stamp(a, "wo%d probe ok" % (L + 1))
    def bulk(r):
        for s in range(16):
            r("s_add_u32 s95, s59, %d", 1024 * (s - s % 4))
            r("buffer_load_dwordx4 %s, %s, %s, s95 offen offset:%d sc1", ag(4 * s, 4), v(vL16), srd(S_WS), 1024 * (s % 4), tag=("o", s))
    bg = Stream(a, bulk)
    bg.q += rest.q; rest.q = []
    if after_bulk: bg.add(after_bulk)
    bg.play(CFG["wo_pre"])
    def hk(i):
        if i % CFG["wo_every"] == 0: bg.play(1)
    slots = []
    for s in [16, 17, 18, 19] + list(range(16)):
        for t5 in range(5):
            ad = vWo1 if s >= 10 else vWo0
            slots.append(dict(op=M16, acc=WAC + 4 * t5, n=4, rd=[(ad, (s % 10) * 5120 + u * 2560 + 32 * t5) for u in (0, 1)],
                              B=v(PR + 4 * (s - 16), 4) if s >= 16 else ag(4 * s, 4), vm=("o", s) if s < 16 else None))
    gemm(a, slots, 7, hook=hk, ring=84)
    bg.flush()
    a("v_cmp_u_f32 vcc, %s, %s", v(WAC + 16), v(WAC + 16))
    bounded_retry(a, top)
    stamp(a, "wo%d gemm" % (L + 1))
    for i in range(10): a("v_cvt_pk_bf16_f32 %s, %s, %s", v(D + i), v(WAC + 2 * i), v(WAC + 2 * i + 1))
    if L < 3:
        for i in range(10): a("v_mov_b32 %s, %s", v(RES + i), v(D + i))
    for q in (0, 4, 8):
        a("v_permlane16_swap_b32 %s, %s\nv_permlane16_swap_b32 %s, %s", v(D + q), v(D + q + 2), v(D + q + 1), v(D + q + 3))
    if L == 3:
        t = TMP; Ln = v(vLane)
        a("v_and_b32 %s, 15, %s\nv_mul_u32_u24 %s, 1280, %s\nv_lshrrev_b32 %s, 9, %s\nv_lshl_add_u32 %s, %s, 4, %s", v(t), Ln, v(t), v(t), v(t + 1), v(vXst), v(t), v(t + 1), v(t))
        a("s_mul_i32 s52, %s, 20480\ns_mul_i32 s53, %s, 160\ns_add_u32 s52, s52, s53", sU, sC)
        a("buffer_store_dwordx4 %s, %s, %s, s52 offen", v(D, 4), v(t), srd(S_OUT))
        a("buffer_store_dwordx4 %s, %s, %s, s52 offen offset:64", v(D + 4, 4), v(t), srd(S_OUT))
        a("s_mov_b32 exec_lo, 0xffff\ns_mov_b32 exec_hi, 0xffff")
        a("buffer_store_dwordx4 %s, %s, %s, s52 offen offset:128", v(D + 8, 4), v(t), srd(S_OUT))
        a("s_mov_b64 exec, -1")
        return
    x_store(a, L, v(D, 4), v(D + 4, 4), v(D + 8, 4), None)
    S, Q = TMP, TMP + 1
    a("v_mov_b32 %s, 0\nv_mov_b32 %s, 0", v(S), v(Q))
    for i in range(10): a("v_dot2c_f32_bf16 %s, %s, %s\nv_dot2c_f32_bf16 %s, %s, %s", v(S), v(RES + i), v(vONES), v(Q), v(RES + i), v(RES + i))
    for sw in ("v_permlane16_swap_b32", "v_permlane32_swap_b32"):
        a("v_mov_b32 %s, %s\nv_mov_b32 %s, %s", v(S + 2), v(S), v(S + 3), v(Q))
        a("%s %s, %s\n%s %s, %s", sw, v(S), v(S + 2), sw, v(Q), v(S + 3))
        a("v_pk_add_f32 %s, %s, %s", v(S, 2), v(S, 2), v(S + 2, 2))
    st_store(a, v(S, 2))
    stamp(a, "x%d pub" % (L + 2))
    return len(early)

def transition(a, L, lo=12):
    a("s_barrier")
    park_write(a, range(lo, 28), TMP + 8)
    q_base(a)
    if L < 3: park_base(a, (L + 1) % 2)

def cs_init(a, which, tiles):
    for k in tiles:
        for i in range(4): a("ds_read_b128 %s, %s offset:%d", v(AK + 16 * k + 4 * i, 4), v(vCs), CS[which] + 64 * k + 16 * i, tag=("ci", k))
def cs_mul(a, tiles):
    for k in tiles:
        a.wait(lg=("ci", k))
        scale_regs(a, [(AK + 16 * k, 16)], NMR)

def qkv_front(a, L):
    isA = L % 2 == 0; xi = L - 1; which = L % 2; t = TMP
    a("s_lshl_b32 s59, %s, 11\ns_add_u32 s59, s59, %d", sT, ST[xi])
    a("s_mul_i32 s60, %s, 40960\ns_add_u32 s60, s60, %d", sT, XB[xi])
    a("s_mov_b32 s99, 0")
    stamp(a, "q%d begin" % (L + 1))
    top = a.newlabel("L_qkv")
    a.label(top)
    for i in range(4): a("buffer_load_dwordx2 %s, %s, %s, s59 offen offset:%d sc1", v(t + 2 * i, 2), v(vStLd), srd(S_WS), 128 * i, tag="st")
    if L != 1: cs_init(a, which, (0, 1, 2, 3))
    a.wait(vm="st")
    a("v_pk_add_f32 %s, %s, %s\nv_pk_add_f32 %s, %s, %s\nv_pk_add_f32 %s, %s, %s", v(t, 2), v(t, 2), v(t + 2, 2), v(t + 4, 2), v(t + 4, 2), v(t + 6, 2), v(t, 2), v(t, 2), v(t + 4, 2))
    a("v_cmp_u_f32 vcc, %s, %s", v(t), v(t))
    bounded_retry(a, top)
    stamp(a, "q%d probe ok" % (L + 1))
    def bulk(r):
        for s in range(40):
            r("s_add_u32 s95, s60, %d", 1024 * (s - s % 4))
            r("buffer_load_dwordx4 %s, %s, %s, s95 offen offset:%d sc1", ag(4 * s, 4), v(vL16), srd(S_WS), 1024 * (s % 4), tag=("x", s))
        q_dma(r)
        r.label("@q")
        if L < 3:
            for i in range(4): r("v_mov_b32 %s, -1", v(XT + 16 + i))
            fills(r, [("h", 1), ("x", 1), ("kv", 1), ("o", 2)] if L == 1 else [("x", 2), ("o", 3)], XT + 16)
        r.label("@f")
        if L < 3: park_load(r, range(28))
    bg = Stream(a, bulk)
    bg.play(CFG["x_pre"])
    def red(R, sws):
        for sw in sws:
            a("v_mov_b32 %s, %s\nv_mov_b32 %s, %s", v(R + 2), v(R), v(R + 3), v(R + 1))
            a("%s %s, %s\n%s %s, %s", sw, v(R), v(R + 2), sw, v(R + 1), v(R + 3))
            a("v_pk_add_f32 %s, %s, %s", v(R, 2), v(R, 2), v(R + 2, 2))
    red(t, ["v_permlane32_swap_b32"])
    stats_fin(a, t, t + 1, NMR, RSR)
    if L != 1: cs_mul(a, (0, 1, 2, 3))
    sk = a.newlabel("L_skb")
    a("s_waitcnt lgkmcnt(0)\ns_cmp_eq_u32 s99, 0\ns_cbranch_scc0 %s\ns_barrier\ns_mov_b32 s99, 1", sk)
    if L == 1:
        cs_steps(a, CS1[0], (40 - CS1[0]) // 4, CACC, v(CONE, 4), CS1[0] == 0, CRING, TMP + 4)
        cs_add(a, 1, {k: v(CACC[k]) for k in range(3)}, TMP + 4)
        a("s_waitcnt lgkmcnt(0)\ns_barrier")
    a.label(sk)
    if L == 1: cs_init(a, 1, (0, 1, 2)); cs_mul(a, (0, 1, 2))
    slots = []
    for s in range(40):
        for acc, win in ((AK, 0), (AV, 64), (AM, 128)):
            slots.append(dict(op=M32, acc=acc, n=16, rd=rd_kvm(s, win), B=ag(4 * s, 4), vm=("x", s)))
    def hook(i):
        s, k = divmod(i, 3)
        bg.play_vm(1 if i % 2 == 1 else 0, 2)
    gemm(a, slots, 6, hook=hook, ringn=9)
    bg.upto("@f")
    a("v_cmp_u_f32 vcc, %s, %s", v(AM), v(AM))
    bounded_retry(a, top)
    stamp(a, "q%d pass1" % (L + 1))
    if isA: prep_records(a, RSR, 1)
    a.wait(vm="qd")
    a("s_waitcnt lgkmcnt(0)\ns_barrier")
    return bg
CACC, CONE, CRING, CS1 = [120, 136, XT], XT + 16, [52, 56, 60, 152, 156, 160], [0]

def pass2(a, which, hook=None, zero=False):
    gemm(a, [dict(op=M32, acc=AQ, n=16, rd=rd_q(s), B=ag(4 * s, 4), **({"c": "0"} if zero and s == 0 else {})) for s in range(40)], 5, hook=hook, ringn=7)

def qkv_A(a, L):
    bg = qkv_front(a, L)
    wo_base(a, 0)
    sd = Stream(a, lambda r: write_records(r, 1)); bg.front(lambda r: wo_dma(r, WO1))
    sd.play(3)
    def hook(i):
        if i % 2 == 1 or i == 0: sd.play(1)
        if i == CFG["h_ld"]: halo_load(a, 1)
        elif i % 2 == 0 and i > 2 and not CFG["h_ld"] - 8 < i < CFG["h_ld"]: bg.play_vm(1, 0)
    pass2(a, 0, hook)
    sd.flush()
    stamp(a, "pass2")
    a.wait(vm="fill")
    a("s_waitcnt lgkmcnt(0)\ns_barrier")
    bg.front(lambda r: (wo_dma(r, WO2), r.label("@w")))
    attention(Mix(a, bg, CFG["att_every"]), RSR, L, bounded_retry)
    bg.upto("@w")
    return bg

PHL = SP + 8192; ZL = SP + 1024
def phi_dma(a):
    a("s_lshl_b32 s94, %s, 10\ns_mul_i32 s95, %s, 1600\ns_add_u32 s95, s95, s94\ns_add_u32 s94, s94, %d\ns_mov_b32 m0, s94", sW, sHP, PHL)
    a("buffer_load_dwordx4 %s, %s, s95 offen lds", v(vL16), srd(S_PHI), tag="phi")
    for i in range(4): a("v_mov_b32 %s, 0", v(TMP + i))
    a("v_add_u32 %s, %d, %s", v(TMP + 4), ZL, v(vL16))
    a("ds_write_b128 %s, %s", v(TMP + 4), v(TMP, 4))
def phi_frags(a):
    t = TMP; Ln = v(vLane)
    a("s_movk_i32 s57, 960\ns_movk_i32 s56, 160")
    a("v_bfe_u32 %s, %s, 2, 2\nv_mul_u32_u24 %s, 40, %s", v(t), Ln, v(t), v(t))
    a("v_bfe_u32 %s, %s, 4, 1\nv_bfe_u32 %s, %s, 1, 1\nv_lshl_add_u32 %s, %s, 1, %s", v(t + 1), Ln, v(t + 2), Ln, v(t + 1), v(t + 1), v(t + 2))
    a("v_lshl_add_u32 %s, %s, 3, %s\nv_add_u32 %s, %d, %s", v(t), v(t + 1), v(t), v(t), PHL, v(t))
    a("v_lshrrev_b32 %s, 5, %s\nv_and_b32 %s, 1, %s\nv_mov_b32 %s, %d", v(t + 2), Ln, v(t + 3), Ln, v(t + 8), ZL)
    a("v_mad_u32_u24 %s, %s, s57, %s", v(t + 4), v(t + 2), v(t))
    a("v_mad_u32_u24 %s, %s, s56, %s\nv_add_u32 %s, 640, %s", v(t + 5), v(t + 2), v(t), v(t + 5), v(t + 5))
    a("v_cmp_eq_u32 vcc, %s, %s", v(t + 2), v(t + 3))
    a("v_cndmask_b32 %s, %s, %s, vcc\nv_cndmask_b32 %s, %s, %s, vcc", v(t + 4), v(t + 8), v(t + 4), v(t + 5), v(t + 8), v(t + 5))
    a("v_cmp_eq_u32 vcc, 0, %s", v(t + 1))
    a("v_cndmask_b32 %s, %s, %s, vcc\nv_cndmask_b32 %s, %s, %s, vcc", v(t + 6), v(t + 8), v(t + 4), v(t + 7), v(t + 8), v(t + 5))
    for ft in range(2):
        for k in range(2):
            for u in range(2): a("ds_read_b64_tr_b16 %s, %s offset:%d", v(PHIF + 12 * ft + 4 * k + 2 * u, 2), v(t + 4 + 2 * ft), 320 * k + 160 * u + 32 * ft)
        a("ds_read_b64_tr_b16 %s, %s offset:%d", v(PHIF + 12 * ft + 8, 2), v(t + 5 + 2 * ft), 32 * ft)
        a("v_mov_b32 %s, 0\nv_mov_b32 %s, 0", v(PHIF + 12 * ft + 10), v(PHIF + 12 * ft + 11))
    a("s_waitcnt lgkmcnt(0)")

def feature_map(a, main, mix, order, EP=RING, EN=40, D0=XT, D1=24, out=RING, pre=None):
    t = TMP
    pack20(a, main, main, mix)
    a("v_mov_b32 %s, 0\nv_mov_b32 %s, 0", v(main + 10), v(main + 11))
    slots = [dict(op=M32, acc=(D0, D1)[ft], n=16, A=v(PHIF + 12 * ft + 4 * k, 4), B=v(main + 4 * k, 4), **({"c": "0"} if k == 0 else {})) for k in range(3) for ft in range(2)]
    gemm(a, slots, 0)
    P = [D0 + i for i in range(16)] + [D1 + i for i in range(4)]
    for op, r in (("max", t), ("min", t + 2)):
        a("v_%s3_f32 %s, %s, %s, %s", op, v(r), v(P[0]), v(P[1]), v(P[2]))
        for i in range(3, 19, 2): a("v_%s3_f32 %s, %s, %s, %s", op, v(r), v(r), v(P[i]), v(P[i + 1]))
        a("v_%s_f32 %s, %s, %s", op, v(r), v(r), v(P[19]))
    a("s_mov_b32 s56, 0x%08x\ns_mov_b32 s57, 0x%08x" % (f32bits(math.log2(math.e)), f32bits(-math.log2(math.e))))
    a("v_mul_f32 %s, s57, %s\nv_mul_f32 %s, s56, %s\nv_mov_b32 %s, s56\nv_mov_b32 %s, s57", v(t), v(t), v(t + 2), v(t + 2), v(t + 4), v(t + 6))
    for E, c, m in ((EP, t + 4, t), (EN, t + 6, t + 2)):
        for i in range(0, 20, 2): a("v_pk_fma_f32 %s, %s, %s, %s op_sel_hi:[1,0,0]", v(E + i, 2), v(P[i], 2), v(c, 2), v(m, 2))
        for i in range(20): a("v_exp_f32 %s, %s", v(E + i), v(E + i))
    for E, s in ((EP, t), (EN, t + 2)):
        a("v_pk_add_f32 %s, %s, %s", v(s, 2), v(E, 2), v(E + 2, 2))
        for i in range(4, 20, 2): a("v_pk_add_f32 %s, %s, %s", v(s, 2), v(s, 2), v(E + i, 2))
        a("v_add_f32 %s, %s, %s\nv_rcp_f32 %s, %s", v(s), v(s), v(s + 1), v(s), v(s))
    scale_regs(a, [(EP, 20)], t); scale_regs(a, [(EN, 20)], t + 2)
    F = [EP + i for i in range(20)] + [EN + i for i in range(20)]
    for i in range(20): a("v_cvt_pk_bf16_f32 %s, %s, %s", v(out + i), v(F[order[2 * i]]), v(F[order[2 * i + 1]]))

def qkv_B(a, L):
    t = TMP; Ln = v(vLane); ki = L // 2
    bg = qkv_front(a, L)
    wo_base(a, 1)
    bg.front(lambda r: (wo_dma(r, WO1), r.label('@w')))
    m = Mix(a, bg, 16)
    scale_regs(m, [(AK, 16), (AM + 4, 8), (AV, 16)], RSR)
    pack20(m, AV, AV, AM + 8)
    a("v_mov_b32 %s, 0x3f80\nv_mov_b32 %s, 0", v(AV + 10), v(AV + 11))
    a("v_lshrrev_b32 %s, 5, %s\nv_lshlrev_b32 %s, 7, %s\nv_and_b32 %s, 31, %s\nv_add_u32 %s, %s, %s", v(t + 8), Ln, v(t + 8), v(t + 8), v(t + 9), Ln, v(t + 8), v(t + 8), v(t + 9))
    a("s_lshl_b32 s52, %s, 5\nv_add_u32 %s, s52, %s\nv_mul_u32_u24 %s, 160, %s", sW, v(t + 8), v(t + 8), v(t + 8), v(t + 8))
    for i in range(3): a("ds_write_b128 %s, %s offset:%d", v(t + 8), v(AV + 4 * i, 4), PHIR + 80 + 16 * i)
    if L == 1:
        def csq(r):
            for i in range(4): r("v_mov_b32 %s, 0x3f803f80", v(60 + i))
            cs_steps(r, 0, 10, [AV], v(60, 4), True, [156, 160, AM + 8], AM + 12, tiles=(3,))
        cq = Stream(a, csq)
        feature_map(Mix(m, cq, 7), AK, AM + 4, list(range(40)), pre=lambda: None)
        cq.flush()
        cs_add(a, 1, {3: v(AV)}, AM + 12)
    else: feature_map(m, AK, AM + 4, list(range(40)))
    for i in range(5): a("ds_write_b128 %s, %s offset:%d", v(t + 8), v(RING + 4 * i, 4), PHIR + 16 * i)
    a("s_lshr_b32 s52, %s, 1\ns_mul_i32 s52, s52, 20480\ns_sub_u32 s52, s52, %d\ns_and_b32 s53, %s, 1\ns_lshl_b32 s53, s53, 5", sW, WOI, sW)
    a("v_add_u32 %s, s52, %s\nv_add_u32 %s, s53, %s", v(t + 2), v(vWo0), v(t + 3), v(t + 2))
    a.wait(vm="fill")
    a("s_waitcnt lgkmcnt(0)\ns_barrier")
    stamp(a, "phi k")
    VB, KA = 24, 40
    for ks in range(4):
        for u in (0, 1): a("ds_read_b64_tr_b16 %s, %s offset:%d", v(VB + 4 * ks + 2 * u, 2), v(t + 3), ks * 5120 + u * 2560 + 80, tag="vb")
    slots = [dict(op=M16, acc=KA + 4 * ft, n=4, rd=[(t + 2, ks * 5120 + u * 2560 + 32 * ft) for u in (0, 1)], B=v(VB + 4 * ks, 4), **({"c": "0"} if ks == 0 else {})) for ks in range(4) for ft in range(3)]
    gemm(a, slots, 3, ringn=7)
    for i in range(6): a("v_cvt_pk_bf16_f32 %s, %s, %s", v(KA + 12 + i), v(KA + 2 * i), v(KA + 2 * i + 1))
    a("v_permlane16_swap_b32 %s, %s\nv_permlane16_swap_b32 %s, %s", v(KA + 16), v(KA + 18), v(KA + 17), v(KA + 19))
    kv_store(a, ki, v(KA + 12, 4), v(KA + 16, 4))
    stamp(a, "kv pub")
    PB, SA, C0 = XT + 24, XT + 16, XT + 26
    a("s_lshl_b32 s59, %s, 16\ns_lshl_b32 s52, %s, 10\ns_add_u32 s59, s59, s52\ns_add_u32 s59, s59, %d", sHP, sW, KVB[ki])
    a("v_lshlrev_b32 %s, 12, %s\nv_mov_b32 %s, 0x3f80\nv_mov_b32 %s, 1.0", v(PB), Ln, v(C0), v(C0 + 1))
    a("v_cmp_gt_u32 vcc, 16, %s\nv_mov_b32 %s, 0x80000000\nv_cndmask_b32 %s, %s, %s, vcc", Ln, v(PB + 1), v(PB), v(PB + 1), v(PB))
    a("s_lshl_b32 s52, %s, 6\nv_add_u32 %s, s52, %s\nv_cmp_gt_u32 vcc, 240, %s\nv_cndmask_b32 %s, %s, %s, vcc", sW, v(t + 10), Ln, v(t + 10), v(t + 11), v(PB + 1), v(vL16))
    GO = t + 11
    probe = lambda r: r("buffer_load_dword %s, %s, %s, s59 offen offset:752 sc1", v(PB + 1), v(PB), srd(S_WS), tag="kp")
    def hook(i):
        if i % 2 == 0 and i < CFG["kv_probe"] - 8: bg.play_vm(1, 2)
        if i == CFG["kv_probe"]: probe(a)
    pass2(a, 1, hook, L == 1)
    bg.upto('@w')
    stamp(a, "pass2")
    a("s_waitcnt lgkmcnt(0)\ns_barrier")
    if L == 1:
        for i in range(4): a("ds_read_b128 %s, %s offset:%d", v(24 + 4 * i, 4), v(vCs), CS[1] + 192 + 16 * i, tag="cq")
        a.wait(lg="cq")
        for i in range(0, 16, 2): a("v_pk_fma_f32 %s, %s, %s, %s op_sel_hi:[1,0,1]", v(AQ + i, 2), v(24 + i, 2), v(NMR, 2), v(AQ + i, 2))
    lp = a.newlabel("L_kvp"); ok = a.newlabel("L_kvok")
    a.wait(vm="kp")
    a("v_cmp_eq_u32 vcc, -1, %s\ns_cbranch_vccz %s", v(PB + 1), ok)
    vm, lg = list(a.vm), list(a.lg)
    a.label(lp)
    probe(a); a("s_waitcnt vmcnt(0)\nv_cmp_eq_u32 vcc, -1, %s", v(PB + 1))
    bounded_retry(a, lp, 1)
    a.vm, a.lg = vm, lg
    a.label(ok)
    stamp(a, "kv probe")
    G = [AK + 4 * i for i in range(8)]
    def ld(r, p):
        r("s_add_u32 s95, s59, %d", 4096 * p)
        r("buffer_load_dwordx4 %s, %s, %s, s95 offen sc1", v(G[p % 8], 4), v(GO), srd(S_WS), tag=("kv", p))
    def gather(r, spread):
        for p in range(8): ld(r, p)
        for i in range(8): r("v_mov_b32 %s, 0", v(SA + i))
        if spread: wo_dma(r, WO2[:6])
        for p in range(16):
            r.wait(vm=("kv", p))
            for i in range(4): r("v_dot2c_f32_bf16 %s, %s, %s\nv_dot2c_f32_bf16 %s, %s, %s", v(SA + 2 * i), v(G[p % 8] + i), v(C0), v(SA + 2 * i + 1), v(G[p % 8] + i), v(C0 + 1))
            if p < 8: ld(r, p + 8)
        if spread: wo_dma(r, WO2[6:])
    gs = Stream(a, lambda r: (gather(r, True), r.label('@g')))
    gs.q += bg.q; bg = gs
    gs.play(4)
    m = Mix(a, gs, CFG["g_every"])
    scale_regs(m, [(AQ, 16), (AM, 4)], RSR)
    order = []
    for g in range(4): order += [4 * g + i for i in range(4)] + [16 + 4 * g + i for i in range(4)]
    order += list(range(32, 40))
    FQ = AQ - 8
    feature_map(m, AQ, AM, order, out=FQ)
    stamp(a, "phi q")
    gs.upto('@g')
    def check(lab):
        a("v_mul_u32_u24 %s, 2731, %s\nv_lshrrev_b32 %s, 16, %s", v(t + 3), v(t + 10), v(t + 3), v(t + 3))
        a("v_mul_u32_u24 %s, 24, %s\nv_sub_u32 %s, %s, %s", v(t + 3), v(t + 3), v(t + 3), v(t + 10), v(t + 3))
        a("v_add_f32 %s, %s, %s\nv_add_f32 %s, %s, %s\nv_add_f32 %s, %s, %s", v(t + 4), v(SA), v(SA + 2), v(t + 5), v(SA + 4), v(SA + 6), v(t + 4), v(t + 4), v(t + 5))
        a("v_cmp_gt_u32 s[90:91], 21, %s\nv_cmp_u_f32 vcc, %s, %s\ns_and_b64 vcc, vcc, s[90:91]", v(t + 3), v(t + 4), v(t + 4))
    check(None)
    ok = a.newlabel("L_gok"); lp = a.newlabel("L_glp")
    a("s_cbranch_vccz %s", ok)
    vm, lg = list(a.vm), list(a.lg)
    a.label(lp)
    a("s_waitcnt vmcnt(0)")
    gather(a, False); check(None)
    bounded_retry(a, lp, 1)
    a.vm, a.lg = vm, lg
    a.label(ok)
    stamp(a, "kv gathered")
    for i in range(4): a("v_cvt_pk_bf16_f32 %s, %s, %s", v(SA + 8 + i), v(SA + 2 * i), v(SA + 2 * i + 1))
    a("v_lshlrev_b32 %s, 4, %s\nv_add_u32 %s, %d, %s", v(t + 2), v(t + 10), v(t + 2), KVT, v(t + 2))
    a("ds_write_b128 %s, %s", v(t + 2), v(SA + 8, 4))
    AF = [24, 32, 40, 48, RING]
    m = Mix(a, bg, 12)
    for k in range(5):
        for i in range(8): m("v_mov_b32 %s, 0", v(AF[k] + i))
    a("v_bfe_u32 %s, %s, 3, 2\nv_and_b32 %s, 3, %s\nv_lshl_add_u32 %s, %s, 2, %s\nv_lshlrev_b32 %s, 4, %s", v(t), Ln, v(t + 1), Ln, v(t), v(t), v(t + 1), v(t), v(t))
    a("v_lshrrev_b32 %s, 5, %s\nv_mul_u32_u24 %s, 1920, %s\nv_add3_u32 %s, %s, %s, %s", v(t + 1), Ln, v(t + 1), v(t + 1), v(t), v(t), v(t + 1), v(t + 1))
    a("v_sub_u32 %s, %s, %s\nv_add_u32 %s, %d, %s", v(t), v(t), v(t + 1), v(t), KVT, v(t))
    a("s_waitcnt lgkmcnt(0)\ns_barrier")
    a("s_mov_b32 exec_lo, 0x0f0f0f0f\ns_mov_b32 exec_hi, 0xf0f0f0f0")
    for k in range(5):
        for tl in range(2): a("ds_read_b128 %s, %s offset:%d", v(AF[k] + 4 * tl, 4), v(t), 384 * k + 256 * tl, tag=("af", k))
    a("s_mov_b64 exec, -1")
    N1 = AK
    slots = [dict(op=M32, acc=(AV, N1)[tl], n=16, A=v(AF[k] + 4 * tl, 4), B=v(FQ + 4 * k, 4), lg=("af", k), **({"c": "0"} if k == 0 else {})) for k in range(5) for tl in range(2)]
    gemm(a, slots, 0)
    a("v_add_f32 %s, 0x%08x, %s\nv_rcp_f32 %s, %s" % (v(t), f32bits(1e-6), v(N1 + 4), v(t), v(t)))
    scale_regs(a, [(AV, 16), (N1, 4)], t)
    publish_o(a, L, N1)
    return bg
```

```python
import sys
from gen3 import *
def build(stage=99):
    a = Asm()
    PKS['pk'] = PK; PKS['pq'] = PQ
    prologue(a)
    def mid(a):
        a("s_waitcnt lgkmcnt(0)\ns_barrier")
        wo_base(a, 0)
        return Stream(a, lambda r: (wo_dma(r, range(25)), r.label('@w'), park_load(r, range(28))))
    park_base(a, 1)
    bg = layer1_qkv(a, lambda a: init_check(a, XT + 24, 0, "ip"), mid, phi_dma, bounded_retry)
    bg.upto('@w')
    def setfill():
        for i in range(4): a("v_mov_b32 %s, -1", v(XT + i))
    ne = wo_phase(a, 0, bg, lambda r: init_probe(r, 8))
    init_check(a, XT + 24, 8, "ip")
    transition(a, 1, ne)
    for L in (1, 2, 3):
        bg = (qkv_B if L % 2 else qkv_A)(a, L)
        ne = wo_phase(a, L, bg)
        if L < 3: transition(a, L + 1, ne)
    stamp(a, "end")
    stamp_dump(a)
    a("s_waitcnt vmcnt(0)")
    a.label("L_end")
    return wrap(a.text(), grid=256, block=256, lds=163840, vgpr=512, accum=256)
if __name__ == "__main__":
    open("k.s", "w").write(build())
    PROF[0] = True
    open("kp.s", "w").write(build())
    open("stamps.txt", "w").write("\n".join(STAMPS))
```

```python
import re
NAME = "interleave_layers__sliding_local_dilated__linear_kernel_hedgehog__prompt"

_REG = re.compile(r"^(-|abs\()?([vas])(\d+)\)?$")
_RNG = re.compile(r"^(-|abs\()?([vas])\[(\d+):(\d+)\]\)?$")

def regs_of(op):
    op = op.strip()
    m = _REG.match(op)
    if m:
        return {(m.group(2), int(m.group(3)))}
    m = _RNG.match(op)
    if m:
        return {(m.group(2), i) for i in range(int(m.group(3)), int(m.group(4)) + 1)}
    if op in ("vcc", "vcc_lo", "vcc_hi"):
        return {("s", "vcc")}
    if op in ("exec", "exec_lo", "exec_hi"):
        return {("s", "exec")}
    if op == "m0":
        return {("s", "m0")}
    return set()

TRANS = ("v_exp_f32", "v_log_f32", "v_rcp_f32", "v_rsq_f32", "v_sqrt_f32", "v_sin_f32", "v_cos_f32")
RMW = ("v_fmac_f32", "v_dot2c_f32_bf16", "v_pk_fmac", "v_mac")

class Ins:
    __slots__ = ("text", "name", "kind", "rd", "wr", "A", "B", "C", "passes", "states", "wide_store", "lds_dma")
    def __init__(self, text):
        self.text = text
        t = text.split(";")[0].strip()
        parts = t.split(None, 1)
        self.name = name = parts[0]
        rest = parts[1] if len(parts) > 1 else ""
        ops, cur, depth = [], "", 0
        for ch in rest:
            if ch in "[(": depth += 1
            if ch in "])": depth -= 1
            if ch == "," and depth == 0:
                ops.append(cur.strip()); cur = ""
            else:
                cur += ch
        if cur.strip(): ops.append(cur.strip())
        mods = ""
        if ops:
            sp = ops[-1].split(None, 1)
            ops[-1] = sp[0]
            mods = sp[1] if len(sp) > 1 else ""
        R = [regs_of(o) for o in ops]
        self.rd, self.wr = set(), set()
        self.A = self.B = self.C = set()
        self.passes = 0; self.states = 1; self.wide_store = False; self.lds_dma = False
        def U(l):
            s = set()
            for x in l: s |= x
            return s
        if name.startswith("v_mfma"):
            self.kind = "mfma"
            self.wr = R[0]; self.A, self.B, self.C = R[1], R[2], R[3]
            self.rd = R[1] | R[2] | R[3]
            self.passes = 8 if "32x32" in name else 4
        elif name.startswith("v_"):
            self.kind = "valu"
            if name.startswith("v_cmp"):
                self.wr = R[0]; self.rd = U(R[1:])
            elif name.startswith("v_permlane") and "swap" in name:
                self.wr = R[0] | R[1]; self.rd = R[0] | R[1]
            elif name.startswith("v_readfirstlane") or name.startswith("v_readlane"):
                self.wr = R[0]; self.rd = U(R[1:])
            elif "_co_" in name:
                self.wr = R[0] | R[1]; self.rd = U(R[2:])
            else:
                self.wr = R[0]; self.rd = U(R[1:])
                if name.startswith(RMW) or "dpp" in mods or "quad_perm" in mods or "row_" in mods:
                    self.rd |= R[0]
                if name.startswith("v_cndmask") and len(ops) == 3:
                    self.rd |= {("s", "vcc")}
        elif name.startswith("ds_"):
            self.kind = "ds"
            if "read" in name or "permute" in name or "swizzle" in name:
                self.wr = R[0]; self.rd = U(R[1:])
            else:
                self.rd = U(R)
        elif name.startswith("buffer_") or name.startswith("global_"):
            self.kind = "vmem"
            allm = (rest + " ")
            if " lds" in (" " + mods + " ").replace("lds", " lds ") and "load" in name and re.search(r"\blds\b", mods):
                self.lds_dma = True
                self.rd = U(R) | {("s", "m0")}
            elif "load" in name:
                self.wr = R[0]; self.rd = U(R[1:])
                if "d16" in name: self.rd |= R[0]
            elif "atomic" in name:
                self.rd = U(R)
                if "sc0" in mods: self.wr = R[0]
            else:
                self.rd = U(R)
                if "x4" in name or "x3" in name:
                    self.wide_store = True
                    self.A = R[0] if name.startswith("buffer") else R[1]
        elif name.startswith("s_"):
            self.kind = "salu"
            if name == "s_nop":
                self.states = int(ops[0], 0) + 1
            elif name.startswith(("s_cmp", "s_cbranch", "s_branch", "s_waitcnt", "s_barrier", "s_sleep", "s_endpgm", "s_setprio")):
                self.rd = U(R)
            else:
                self.wr = R[0] if R else set(); self.rd = U(R[1:])
                if "saveexec" in name: self.wr |= {("s", "exec")}
        else:
            raise ValueError("unknown instr: " + text)

def need(prod, cons):
    n = 0
    pk, ck = prod.kind, cons.kind
    if pk == "valu":
        vw = {r for r in prod.wr if r[0] in "va"}
        sw = {r for r in prod.wr if r[0] == "s"}
        if ck == "mfma" and vw & cons.rd: n = max(n, 2)
        if ck == "valu":
            if cons.name.startswith("v_permlane") and vw & cons.rd: n = max(n, 2)
            if ("dpp" in cons.text or "quad_perm" in cons.text or "row_" in cons.text) and vw & cons.rd: n = max(n, 2)
            if cons.name.startswith(("v_readfirstlane", "v_readlane")) and vw & cons.rd: n = max(n, 1)
            if prod.name.startswith(TRANS) and not cons.name.startswith(TRANS) and vw & cons.rd: n = max(n, 1)
            if prod.name.startswith(TRANS) and cons.name.startswith(TRANS) and vw & cons.rd: n = max(n, 1)
            if sw & cons.rd: n = max(n, 2)
            if prod.name.startswith("v_dot2") and vw & (cons.rd | cons.wr):
                same = prod.name == cons.name
                if not (same and not (vw & (cons.rd - cons.wr))): n = max(n, 3)
        if prod.name.startswith("v_dot2") and ck in ("mfma", "ds", "vmem") and vw & cons.rd: n = max(n, 3)
        if ck == "vmem" and sw & cons.rd: n = max(n, 5)
        if ck == "salu" and sw & cons.rd: n = max(n, 1)
        if ck == "mfma" and ("s", "exec") in sw: n = max(n, 4)
    elif pk == "mfma":
        big = 12 if prod.passes == 8 else 8
        if ck == "mfma":
            if prod.wr & (cons.A | cons.B): n = max(n, big)
            if prod.wr & cons.C and not (prod.wr == cons.C and prod.passes == cons.passes): n = max(n, big - 2)
            if prod.wr & cons.wr and not (prod.wr == cons.C and prod.passes == cons.passes): n = max(n, big - 2)
        else:
            if prod.wr & (cons.rd | cons.wr): n = max(n, big)
            if ck == "valu" and prod.C & cons.wr: n = max(n, 7 if prod.passes == 8 else 3)
            if ck in ("ds", "vmem") and prod.C & cons.wr: n = max(n, 7 if prod.passes == 8 else 3)
    elif pk == "vmem":
        if prod.wide_store and prod.A & cons.wr: n = max(n, 2)
    elif pk == "ds":
        if ("b128" in prod.name or "b96" in prod.name) and "write" in prod.name and ck == "valu" and {r for r in prod.rd if r[0] in "va"} & cons.wr: n = max(n, 2)
    elif pk == "salu":
        if ("s", "m0") in prod.wr and (cons.lds_dma): n = max(n, 1)
    return n

class Asm:
    def __init__(self):
        self.items = []
        self._lab = 0
        self.vm = []
        self.lg = []
    def __call__(self, s, *a, tag=None):
        if a: s = s % a
        for ln in s.split("\n"):
            ln = ln.strip()
            if not ln: continue
            ins = Ins(ln)
            self.items.append(ins)
            if tag == "nocount": pass
            elif ins.kind == "vmem": self.vm.append(tag)
            elif ins.kind == "ds": self.lg.append(tag)
            elif ins.name == "s_waitcnt":
                m = re.search(r"vmcnt\((\d+)\)", ln)
                if m:
                    n = int(m.group(1)); self.vm = self.vm[len(self.vm) - n:] if n and n < len(self.vm) else ([] if n == 0 else self.vm)
                m = re.search(r"lgkmcnt\((\d+)\)", ln)
                if m:
                    n = int(m.group(1)); self.lg = self.lg[len(self.lg) - n:] if n and n < len(self.lg) else ([] if n == 0 else self.lg)
    def _cnt(self, q, tag):
        idx = [i for i, t in enumerate(q) if t == tag or (isinstance(tag, (list, tuple, set)) and t in tag)]
        if not idx: return None
        return len(q) - 1 - idx[-1]
    def wait(self, vm=None, lg=None):
        parts = []
        if vm is not None:
            n = self._cnt(self.vm, vm)
            if n is not None: parts.append("vmcnt(%d)" % min(n, 63))
        if lg is not None:
            n = self._cnt(self.lg, lg)
            if n is not None: parts.append("lgkmcnt(%d)" % min(n, 15))
        if parts: self("s_waitcnt " + " ".join(parts))
    def label(self, name): self.items.append(("label", name))
    def raw(self, text): self.items.append(("raw", text))
    def newlabel(self, base="L"):
        self._lab += 1
        return "%s_%d" % (base, self._lab)
    def comment(self, s): self.items.append(("raw", "    ; " + s))
    def text(self):
        out, hist = [], []
        for it in self.items:
            if isinstance(it, tuple):
                out.append(it[1] + ":" if it[0] == "label" else it[1])
                continue
            req, dist = 0, 0
            for p in reversed(hist):
                if dist >= 20: break
                n = need(p, it)
                if n > dist: req = max(req, n - dist)
                dist += p.states
            while req > 0:
                k = min(req, 16)
                nop = Ins("s_nop %d" % (k - 1))
                out.append("    " + nop.text); hist.append(nop); req -= k
            out.append("    " + it.text)
            hist.append(it)
            if len(hist) > 40: hist = hist[-24:]
        return "\n".join(out) + "\n"

HEADER_COMMENT = """; Kernarg layout for this problem (80 bytes, ptrs only, base s[0:1]):
"""

def wrap(body, grid=256, block=256, lds=0, vgpr=256, sgpr=102, accum=256, kname=NAME + "_kernel", extra_comment=""):
    s = HEADER_COMMENT + extra_comment
    s += "; @launch grid=(%d,1,1) block=(%d,1,1) lds=%d\n" % (grid, block, lds)
    s += '.amdgcn_target "amdgcn-amd-amdhsa--gfx950"\n.text\n'
    s += ".globl %s\n.p2align 8\n.type %s,@function\n%s:\n" % (kname, kname, kname)
    s += body
    s += "    s_endpgm\n"
    s += '.section .rodata,"a"\n.p2align 6\n.amdhsa_kernel %s\n' % kname
    s += "  .amdhsa_next_free_vgpr %d\n  .amdhsa_next_free_sgpr %d\n  .amdhsa_accum_offset %d\n" % (vgpr, sgpr, accum)
    s += "  .amdhsa_group_segment_fixed_size 0\n  .amdhsa_kernarg_size 80\n  .amdhsa_user_sgpr_count 2\n"
    s += "  .amdhsa_user_sgpr_kernarg_segment_ptr 1\n  .amdhsa_system_sgpr_workgroup_id_x 1\n"
    s += "  .amdhsa_float_denorm_mode_32 3\n"
    s += ".end_amdhsa_kernel\n"
    return s

class Rec:
    def __init__(self, real):
        self.real = real; self.items = []
    def __call__(self, s, *a, tag=None):
        if a: s = s % a
        for ln in s.split("\n"):
            ln = ln.strip()
            if ln: self.items.append(("i", ln, tag))
    def wait(self, vm=None, lg=None): self.items.append(("w", vm, lg))
    def label(self, n): self.items.append(("l", n, None))
    def newlabel(self, b="L"): return self.real.newlabel(b)
    def thunks(self):
        out, cur, masked = [], [], False
        for it in self.items:
            cur.append(it)
            if it[0] == "i":
                ln = it[1]
                if ln.startswith(("s_mov_b64 exec", "s_mov_b32 exec")):
                    masked = not ln.endswith("exec, -1")
                    if ln.startswith("s_mov_b32 exec"): masked = True
                    if not masked: out.append(cur); cur = []
                    continue
                if masked or (ln.startswith("s_") and not ln.startswith("s_barrier")) or ln.startswith("v_cmp"): continue
                out.append(cur); cur = []
        if cur: out.append(cur)
        for th in out:
            wr = set()
            for it in th:
                if it[0] != "i": continue
                ins = Ins(it[1])
                bad = {r for r in ins.rd if r in {("s", 90), ("s", 91), ("s", 94), ("s", 95), ("s", "m0"), ("s", 56), ("s", 57)}} - wr
                assert not bad, ("stream thunk reads shared scalar temp", it[1])
                wr |= ins.wr
        return out

class Stream:
    def __init__(self, a, fn=None):
        self.a = a; self.q = []
        if fn: self.add(fn)
    def add(self, fn):
        r = Rec(self.a); fn(r); self.q += r.thunks(); return self
    def play(self, k=1):
        for _ in range(k):
            if not self.q: return
            for it in self.q.pop(0):
                if it[0] == "i": self.a(it[1], tag=it[2])
                elif it[0] == "w": self.a.wait(vm=it[1], lg=it[2])
                elif not it[1].startswith("@"): self.a.label(it[1])
    def flush(self): self.play(len(self.q))
    def front(self, fn):
        r = Rec(self.a); fn(r); self.q = r.thunks() + self.q; return self
    def _isvm(self, th): return any(it[0] == "i" and it[1].startswith(("buffer_", "global_")) for it in th)
    def play_vm(self, nvm, nother):
        while self.q:
            if self._isvm(self.q[0]):
                if nvm == 0: return
                nvm -= 1
            else:
                if nother == 0: return
                nother -= 1
            self.play(1)
    def upto(self, mark):
        idx = [i for i, th in enumerate(self.q) if any(it[0] == "l" and it[1] == mark for it in th)]
        if idx: self.play(idx[0])
    def has(self, tag): return any(it[0] == "i" and it[2] == tag for th in self.q for it in th)
    def __len__(self): return len(self.q)

class Mix:
    def __init__(self, a, bg, every):
        self.a, self.bg, self.every, self.n, self.masked = a, bg, every, 0, False
    def __call__(self, s, *args, tag=None):
        if args: s = s % args
        for ln in s.split("\n"):
            ln = ln.strip()
            if not ln: continue
            self.a(ln, tag=tag)
            if ln.startswith(("s_mov_b64 exec", "s_mov_b32 exec")):
                self.masked = not ln.endswith("exec, -1") or ln.startswith("s_mov_b32")
            if ln.startswith("s_") or ln.startswith("v_cmp") or self.masked: continue
            self.n += 2 if ln.startswith(("v_exp", "v_rcp")) else (6 if "32x32" in ln else 1)
            if self.n >= self.every:
                self.n = 0; self.bg.play(1)
    def __getattr__(self, k): return getattr(self.a, k)
    def __setattr__(self, k, val):
        if k in ("vm", "lg"): setattr(self.a, k, val)
        else: object.__setattr__(self, k, val)
```

```python
import sys
from gen3 import *
def build(stage=99):
    a = Asm()
    PKS['pk'] = PK; PKS['pq'] = PQ
    prologue(a)
    def mid(a):
        a("s_waitcnt lgkmcnt(0)\ns_barrier")
        wo_base(a, 0)
        return Stream(a, lambda r: (wo_dma(r, range(25)), r.label('@w'), park_load(r, range(28))))
    park_base(a, 1)
    bg = layer1_qkv(a, lambda a: init_check(a, XT + 24, 0, "ip"), mid, phi_dma, bounded_retry)
    bg.upto('@w')
    def setfill():
        for i in range(4): a("v_mov_b32 %s, -1", v(XT + i))
    ne = wo_phase(a, 0, bg, lambda r: init_probe(r, 128))
    init_check(a, XT + 24, 128, "ip")
    transition(a, 1, ne)
    for L in (1, 2, 3):
        bg = (qkv_B if L % 2 else qkv_A)(a, L)
        ne = wo_phase(a, L, bg)
        if L < 3: transition(a, L + 1, ne)
    stamp(a, "end")
    stamp_dump(a)
    a("s_waitcnt vmcnt(0)")
    a.label("L_end")
    return wrap(a.text(), grid=256, block=256, lds=163840, vgpr=512, accum=256)
if __name__ == "__main__":
    open("k.s", "w").write(build())
    PROF[0] = True
    open("kp.s", "w").write(build())
    open("stamps.txt", "w").write("\n".join(STAMPS))
```

```python
from asmlib import *

XB = [0x000000, 0x280000, 0x500000]
OB = [0x780000 + i * 0x280000 for i in range(4)]
ST = [0x1180000 + i * 0x20000 for i in range(3)]
KVB = [0x11E0000, 0x12E0000]
PW = [0x1400000, 0x1660000]
PO = [0x1900000, 0x19D0000]
HB = [0x1AA0000, 0x1BA0000]
FLG = 0x1CA0000
DBGWS = 0x1D00000
WS_BYTES = 0x2000000
KVM, QI, SP = 0, 112640, 153600
CS = [0, 512]
CSP = 2048
STG = SP + 2048
REC_K, REC_V = 0, 13824
WOI = 51200
HP = 36864
SQX = 69632
PHIR = 0
KVT = SP + 4096
S_WS, S_X, S_WA, S_WOA, S_WB, S_PHI, S_WOB, S_OUT, S_DBG = (8, 12, 16, 20, 24, 28, 32, 36, 40)
def srd(b): return "s[%d:%d]" % (b, b + 3)
sW, sR, sHP, sC, sH64 = "s44", "s45", "s46", "s47", "s48"
sT = "s49"
sU = "s50"
sRETRY = "s51"
vL16, vWkv0, vWkv1, vWm0, vWm1, vWq, vHkv, vHm, vWo0, vWo1 = range(1, 11)
vXst, vStSt, vStLd, vOst, vHx, vHSt, vKrec, vVrec, vCs, vHcs = range(11, 21)
vLane, vONES = 21, 22
vHD = [vHkv, vHm, vHSt, vHcs]
HXF, HAC = 24, 44
AK, AV, AM, AQ = 64, 80, 96, 112
RING = 128
TMP = 164
PHIF = 176
RES = 200
PARKV = 212
def v(i, n=1): return "v%d" % i if n == 1 else "v[%d:%d]" % (i, i + n - 1)
def ag(i, n=1): return "a%d" % i if n == 1 else "a[%d:%d]" % (i, i + n - 1)

def build_srd(a, base, lo, nbytes):
    a("s_mov_b32 s%d, s%d\ns_and_b32 s%d, s%d, 0xffff\ns_mov_b32 s%d, %d\ns_mov_b32 s%d, 0x00020000" % (base, lo, base + 1, lo + 1, base + 2, nbytes, base + 3))

MAP = [0]
def prologue(a):
    a.label("L_start")
    a("s_getpc_b64 s[84:85]")
    a("s_and_b32 s84, s84, 0xffffff00")
    a("s_cmp_ge_u32 s2, 256")
    a("s_cbranch_scc1 L_end")
    a("s_load_dwordx16 s[64:79], s[0:1], 0")
    a("s_load_dwordx4 s[80:83], s[0:1], 64")
    a("v_lshrrev_b32 v1, 6, v0")
    a("v_and_b32 %s, 63, v0", v(vLane))
    a("v_readfirstlane_b32 %s, v1", sW)
    a("s_and_b32 s52, s2, 7\ns_lshr_b32 s53, s2, 3")
    if MAP[0] == 0:
        a("s_and_b32 %s, s52, 1", sH64)
        a("s_lshr_b32 s52, s52, 1\ns_lshl_b32 s52, s52, 2\ns_lshr_b32 s54, s53, 3")
        a("s_add_u32 %s, s52, s54", sR)
    else:
        a("s_bfe_u32 %s, s53, 0x10003", sH64)
        a("s_lshl_b32 s52, s52, 1\ns_lshr_b32 s54, s53, 4")
        a("s_add_u32 %s, s52, s54", sR)
    a("s_and_b32 %s, s53, 7", sC)
    a("s_lshl_b32 s52, %s, 3\ns_add_u32 %s, s52, %s", sH64, sHP, sC)
    a("s_lshl_b32 s52, %s, 2\ns_add_u32 %s, s52, %s", sR, sT, sW)
    a("s_lshl_b32 s52, %s, 1\ns_add_u32 s52, s52, %s\ns_lshl_b32 s52, s52, 2\ns_add_u32 %s, s52, %s", sR, sH64, sU, sW)
    a("s_mov_b32 %s, 0", sRETRY)
    a("v_lshlrev_b32 %s, 4, %s", v(vL16), v(vLane))
    a("v_mov_b32 %s, 0x3f803f80", v(vONES))
    a("s_waitcnt lgkmcnt(0)")
    build_srd(a, S_WS, 82, WS_BYTES)
    build_srd(a, S_X, 64, 2621440)
    build_srd(a, S_WA, 66, 2457600)
    build_srd(a, S_WOA, 68, 819200)
    build_srd(a, S_WB, 72, 2457600)
    build_srd(a, S_PHI, 74, 25600)
    build_srd(a, S_WOB, 76, 819200)
    build_srd(a, S_OUT, 78, 2621440)
    build_srd(a, S_DBG, 80, 256)

def pat_kvm(a, dst, sm, t):
    L = v(vLane)
    a("s_lshl_b32 s94, %s, 6", sm)
    a("v_add_u32 %s, s94, %s", v(t), L)
    a("v_mul_u32_u24 %s, 5958, %s\nv_lshrrev_b32 %s, 16, %s", v(t + 1), v(t), v(t + 1), v(t + 1))
    a("v_mul_u32_u24 %s, 11, %s\nv_sub_u32 %s, %s, %s", v(t + 2), v(t + 1), v(t), v(t), v(t + 2))
    a("v_and_b32 %s, 3, %s\nv_lshlrev_b32 %s, 2, %s", v(t + 2), v(t + 1), v(t + 2), v(t + 2))
    a("v_bfe_u32 %s, %s, 2, 2", v(t + 3), v(t + 1))
    a("v_and_b32 %s, -16, %s", v(t + 1), v(t + 1))
    a("v_or3_b32 %s, %s, %s, %s", v(t + 1), v(t + 1), v(t + 2), v(t + 3))
    a("v_mul_u32_u24 %s, 3840, %s", v(dst), v(t + 1))
    a("v_lshrrev_b32 %s, 2, %s\nv_add_u32 %s, 1, %s\nv_mul_u32_u24 %s, 80, %s", v(t + 1), v(t), v(t + 1), v(t + 1), v(t + 1), v(t + 1))
    a("v_and_b32 %s, 3, %s\nv_bfe_u32 %s, %s, 1, 1", v(t + 2), v(t), v(t + 3), v(t))
    a("v_add3_u32 %s, %s, %s, %s", v(t + 1), v(t + 1), v(t + 2), v(t + 3))
    a("v_mul_u32_u24 %s, 80, %s\nv_subrev_u32 %s, 638, %s", v(t + 2), v(t), v(t + 2), v(t + 2))
    a("v_cmp_gt_u32 vcc, 8, %s", v(t))
    a("v_cndmask_b32 %s, %s, %s, vcc", v(t + 1), v(t + 2), v(t + 1))
    a("v_lshl_add_u32 %s, %s, 4, %s", v(dst), v(t + 1), v(dst))

def pat_q(a, dst, t):
    L = v(vLane)
    a("v_lshrrev_b32 %s, 2, %s\nv_mul_u32_u24 %s, 3840, %s", v(t), L, v(dst), v(t))
    a("v_and_b32 %s, 3, %s\nv_bfe_u32 %s, %s, 1, 1\nv_add_u32 %s, %s, %s", v(t), L, v(t + 1), L, v(t), v(t), v(t + 1))
    a("v_lshl_add_u32 %s, %s, 4, %s", v(dst), v(t), v(dst))

def pat_wo(a, dst, sm, t):
    L = v(vLane)
    a("s_mul_i32 s56, %s, 205\ns_lshr_b32 s56, s56, 10\nv_mov_b32 %s, s56", sm, v(t))
    a("v_bfe_u32 %s, %s, 3, 2", v(t + 2), L)
    a("v_lshrrev_b32 %s, 1, %s\nv_add_u32 %s, %s, %s\nv_lshlrev_b32 %s, 3, %s", v(t + 3), v(t + 2), v(t + 3), v(t + 3), v(t + 2), v(t + 3), v(t + 3))
    a("v_mad_u32_u24 %s, %s, 40, %s", v(t + 3), v(t), v(t + 3))
    a("v_lshl_add_u32 %s, %s, 2, %s", v(t + 2), v(t), v(t + 2))
    a("v_mul_u32_u24 %s, 40, %s\nv_subrev_u32 %s, 2544, %s", v(t + 2), v(t + 2), v(t + 2), v(t + 2))
    a("v_cmp_gt_u32 vcc, 16, %s", v(t))
    a("v_cndmask_b32 %s, %s, %s, vcc", v(t + 2), v(t + 2), v(t + 3))
    a("v_mul_u32_u24 %s, 5, %s\nv_sub_u32 %s, %s, %s\nv_lshlrev_b32 %s, 5, %s", v(t), v(t), v(t), sm, v(t), v(dst), v(t))
    a("v_and_b32 %s, 1, %s\nv_lshl_add_u32 %s, %s, 4, %s", v(t), L, v(dst), v(t), v(dst))
    a("v_lshrrev_b32 %s, 5, %s\nv_bfe_u32 %s, %s, 1, 2\nv_lshl_add_u32 %s, %s, 2, %s", v(t), L, v(t + 1), L, v(t), v(t), v(t + 1))
    a("v_add_u32 %s, %s, %s", v(t), v(t), v(t + 2))
    a("v_mul_u32_u24 %s, 1280, %s\nv_add_u32 %s, %s, %s", v(t), v(t), v(dst), v(dst), v(t))

def addr_regs(a):
    L = v(vLane); t = TMP
    A, B, C, D, E = v(t), v(t + 1), v(t + 2), v(t + 3), v(t + 4)
    a("v_bfe_u32 %s, %s, 2, 2", A, L)
    a("v_lshrrev_b32 %s, 5, %s", B, L)
    a("v_lshlrev_b32 %s, 2, %s\nv_lshl_add_u32 %s, %s, 1, %s", C, A, C, B, C)
    a("v_mul_u32_u24 %s, 176, %s", C, C)
    a("v_bfe_u32 %s, %s, 4, 1\nv_bfe_u32 %s, %s, 1, 1\nv_lshl_add_u32 %s, %s, 1, %s", D, L, E, L, D, D, E)
    a("v_and_b32 %s, 1, %s", E, L)
    a("v_lshl_add_u32 %s, %s, 3, %s\nv_lshl_add_u32 %s, %s, 5, %s", v(vWkv0), D, C, v(vWkv0), E, v(vWkv0))
    a("v_add_u32 %s, %d, %s", v(vWkv1), 20 * 2816, v(vWkv0))
    a("v_lshl_add_u32 %s, %s, 4, %s\nv_lshl_add_u32 %s, %s, 3, %s", v(vWm0), D, C, v(vWm0), E, v(vWm0))
    a("v_add_u32 %s, %d, %s", v(vWm1), 20 * 2816, v(vWm0))
    a("v_lshl_add_u32 %s, %s, 3, %s\nv_lshlrev_b32 %s, 6, %s", C, B, A, C, C)
    a("v_lshl_add_u32 %s, %s, 3, %s\nv_lshl_add_u32 %s, %s, 5, %s", C, D, C, C, E, C)
    a("v_add_u32 %s, %d, %s", v(vWq), QI, C)
    a("v_lshrrev_b32 %s, 2, %s\nv_mul_u32_u24 %s, 160, %s\nv_and_b32 %s, 3, %s", C, L, C, C, D, L)
    a("v_lshl_add_u32 %s, %s, 3, %s\nv_add_u32 %s, %d, %s", C, D, C, v(vWo0), WOI, C)
    a("v_add_u32 %s, %d, %s", v(vWo1), WOI, v(vL16))
    a("v_bfe_u32 %s, %s, 4, 1\nv_lshrrev_b32 %s, 5, %s\nv_lshl_add_u32 %s, %s, 1, %s", C, L, D, L, C, C, D)
    a("v_and_b32 %s, 15, %s", D, L)
    a("v_lshlrev_b32 %s, 9, %s\nv_lshl_add_u32 %s, %s, 4, %s", E, C, E, D, E)
    a("s_and_b32 s52, %s, 1\ns_lshl_b32 s52, s52, 8\nv_add_u32 %s, s52, %s", sW, v(vXst), E)
    a("v_lshlrev_b32 %s, 3, %s", v(vStSt), D)
    a("v_bfe_u32 %s, %s, 4, 1", C, L)
    a("v_lshl_add_u32 %s, %s, 10, %s\nv_lshl_add_u32 %s, %s, 9, %s", E, C, v(vStSt), v(vStLd), B, E)
    a("v_mul_u32_u24 %s, 20480, %s\nv_lshl_add_u32 %s, %s, 9, %s\nv_lshl_add_u32 %s, %s, 4, %s", E, C, E, B, E, v(vOst), D, E)
    a("s_cmp_eq_u32 %s, 0\ns_cselect_b32 s52, 0x80000000, 0\ns_cmp_lg_u32 %s, 0\ns_cselect_b32 s52, 0x80000000, s52", sR, sW)
    a("v_or_b32 %s, s52, %s", v(vHx), v(vL16))
    a("v_bfe_u32 %s, %s, 4, 1\nv_mul_u32_u24 %s, 144, %s\nv_add_u32 %s, %s, %s", C, L, C, C, C, C, D)
    a("v_mul_u32_u24 %s, 48, %s\nv_mul_u32_u24 %s, 80, %s\nv_lshl_add_u32 %s, %s, 4, %s\nv_lshl_add_u32 %s, %s, 4, %s", E, C, C, C, v(vHD[0]), B, E, C, B, C)
    a("v_add_u32 %s, %d, %s\nv_add_u32 %s, %d, %s\nv_add_u32 %s, %d, %s\nv_add_u32 %s, 32, %s", v(vHD[2]), REC_V + 16, C, v(vHD[3]), REC_V + 48, C, C, REC_V - 16, C, E, E)
    a("v_cmp_gt_u32 vcc, 32, %s\nv_cndmask_b32 %s, %s, %s, vcc", L, v(vHD[1]), C, E)
    a("v_and_b32 %s, 31, %s\nv_mul_u32_u24 %s, 144, %s\nv_add_u32 %s, %s, %s", C, L, E, B, C, C, E)
    a("s_lshl_b32 s52, %s, 5\ns_add_u32 s52, s52, 2\nv_add_u32 %s, s52, %s", sW, C, C)
    a("v_mul_u32_u24 %s, 48, %s\nv_mul_u32_u24 %s, 80, %s\nv_add_u32 %s, %d, %s", v(vKrec), C, C, C, v(vVrec), REC_V, C)
    a("v_lshlrev_b32 %s, 8, %s\nv_add_u32 %s, %d, %s", v(vCs), B, v(vCs), SP, v(vCs))

STAMPS = []
PROF = [False]
CYC = {"l1 g3": 59, "l1 g9": 60, "start": 61, "l1 mfma end": 62, "q4 probe ok": 56, "q4 pass1": 55}
def stamp(a, name):
    if not PROF[0]: return
    if len(STAMPS) >= 55: return
    i = len(STAMPS); STAMPS.append(name)
    a("s_memrealtime s[92:93]\ns_waitcnt lgkmcnt(0)\nv_writelane_b32 v23, s92, %d" % i)
    if name in CYC:
        a("s_memtime s[92:93]\ns_waitcnt lgkmcnt(0)\nv_writelane_b32 v23, s92, %d" % CYC[name])
def stamp_dump(a):
    if not PROF[0]: return
    a("s_lshl_b32 s52, s2, 2\ns_add_u32 s52, s52, %s\ns_lshl_b32 s52, s52, 8\ns_add_u32 s52, s52, %d", sW, DBGWS)
    a("v_writelane_b32 v23, %s, 63", sRETRY)
    a("s_getreg_b32 s53, hwreg(HW_REG_XCC_ID)\nv_writelane_b32 v23, s53, 58")
    a("s_getreg_b32 s53, hwreg(HW_REG_HW_ID)\nv_writelane_b32 v23, s53, 57")
    a("v_lshlrev_b32 v1, 2, %s", v(vLane))
    a("buffer_store_dword v23, v1, %s, s52 offen", srd(S_WS))
```

```python
from gen1 import *
import re
PARKV = 240
NMR, RSR = 210, 0
XT = 212
M32 = "v_mfma_f32_32x32x16_bf16"
M16 = "v_mfma_f32_16x16x32_bf16"
_uid = [0]
def uid():
    _uid[0] += 1
    return _uid[0]

def gemm(a, slots, depth, hook=None, ring=RING, ringn=9):
    u = uid()
    rl = ring if isinstance(ring, list) else [ring + 4 * i for i in range(ringn)]
    ringn = len(rl)
    rs = [i for i, s in enumerate(slots) if "rd" in s]
    pos = {i: k for k, i in enumerate(rs)}
    def issue(k):
        if k >= len(rs): return
        s = slots[rs[k]]; r = rl[k % ringn]
        if len(s["rd"]) == 1:
            a("ds_read_b128 %s, %s offset:%d", v(r, 4), v(s["rd"][0][0]), s["rd"][0][1], tag=("g", u, k))
            return
        for h, (ad, off) in enumerate(s["rd"]):
            a("ds_read_b64_tr_b16 %s, %s offset:%d", v(r + 2 * h, 2), v(ad), off, tag=("g", u, k))
    for k in range(depth): issue(k)
    for i, s in enumerate(slots):
        if s.get("pre"): s["pre"]()
        if "rd" in s:
            k = pos[i]; A = v(rl[k % ringn], 4)
            a.wait(vm=s.get("vm"), lg=("g", u, k))
        else:
            A = s["A"]; a.wait(vm=s.get("vm"), lg=s.get("lg"))
        D = s["acc"] if isinstance(s["acc"], str) else v(s["acc"], s["n"])
        if s.get("swap"): a("%s %s, %s, %s, %s", s["op"], D, s["B"], A, s.get("c", D))
        else: a("%s %s, %s, %s, %s", s["op"], D, A, s["B"], s.get("c", D))
        if "rd" in s: issue(pos[i] + depth)
        if hook: hook(i)

def rd_kvm(s, win):
    hi = s >= 20; s2 = s - 20 * hi
    ad = (vWm1 if hi else vWm0) if win == 128 else (vWkv1 if hi else vWkv0)
    return [(ad, s2 * 2816 + u * 176 + win) for u in (0, 1)]
def rf_kvm(s, k):
    hi = s >= 20
    return [(((vWm1 if hi else vWm0) if k == 2 else (vWkv1 if hi else vWkv0)), (s - 20 * hi) * 2816 + 1024 * k)]
def rf_q(s): return [(vWq, s * 1024)]
def frag_regs(a):
    t = TMP; L = v(vLane)
    a("v_mov_b32 %s, %s\nv_add_u32 %s, %d, %s\nv_add_u32 %s, %d, %s", v(vWkv0), v(vL16), v(vWkv1), 20 * 2816, v(vL16), v(vWq), QI, v(vL16))
    a("v_and_b32 %s, 31, %s\nv_min_u32 %s, 23, %s\nv_lshrrev_b32 %s, 5, %s\nv_mul_u32_u24 %s, 384, %s\nv_lshl_add_u32 %s, %s, 4, %s\nv_add_u32 %s, %d, %s", v(t), L, v(t), v(t), v(t + 1), L, v(t + 1), v(t + 1), v(vWm0), v(t), v(t + 1), v(vWm1), 20 * 2816, v(vWm0))
def rd_q(s): return [(vWq, s * 1024 + u * 256) for u in (0, 1)]

def re_sg(x, sg):
    for i in range(4): x = re.sub(r"\bs%d\b" % (52 + i), "s#%d" % i, x)
    for i in range(4): x = x.replace("s#%d" % i, "s%d" % sg[i])
    return x
def fills(a, which, F0=XT):
    F = v(F0, 4)
    _a = a
    def a(x, *ar, **k): _a(x % ar if ar else x, tag="fill")
    for kind, i in which:
        if kind == "o": o_store(a, i, F, F, F, (70, 71, 72, 73))
        elif kind == "x": x_store(a, i, F, F, F, v(F0, 2), (70, 71, 72, 73))
        elif kind == "kv": kv_store(a, i, F, F, (70, 71, 72, 73), TMP + 8)
        elif kind == "h": halo_store(_a, i, [F] * 8, (70, 71, 72, 73), TMP + 8)

def o_store(a, i, d0, d1, d2, sg=(52, 53, 54, 55)):
    _a = a
    def a(x, *ar, **k): _a(re_sg(x % ar if ar else x, sg), **k)
    a("s_mul_i32 s52, %s, 40960\ns_lshl_b32 s53, %s, 10\ns_add_u32 s52, s52, %d\ns_add_u32 s53, s53, s52", sT, sHP, OB[i])
    a("s_lshl_b32 s54, %s, 8\ns_add_u32 s54, s54, s52\ns_add_u32 s54, s54, 16384", sHP)
    a("buffer_store_dwordx4 %s, %s, %s, s53 offen sc1", d0, v(vOst), srd(S_WS))
    a("buffer_store_dwordx4 %s, %s, %s, s53 offen offset:256 sc1", d1, v(vOst), srd(S_WS))
    a("s_mov_b64 exec, 0xffffffff")
    a("buffer_store_dwordx4 %s, %s, %s, s54 offen sc1", d2, v(vOst), srd(S_WS))
    a("s_mov_b64 exec, -1")

def x_store(a, i, d0, d1, d2, dst, sg=(52, 53, 54, 55)):
    _a = a
    def a(x, *ar, **k): _a(re_sg(x % ar if ar else x, sg), **k)
    a("s_lshr_b32 s52, %s, 1\ns_mul_i32 s52, s52, 40960\ns_mul_i32 s53, %s, 5120\ns_add_u32 s52, s52, s53\ns_add_u32 s52, s52, %d\ns_add_u32 s53, s52, 4096", sU, sC, XB[i])
    a("s_lshl_b32 s54, %s, 10\ns_lshl_b32 s55, %s, 7\ns_add_u32 s54, s54, s55\ns_add_u32 s54, s54, %d", sU, sC, ST[i])
    a("buffer_store_dwordx4 %s, %s, %s, s52 offen sc1", d0, v(vXst), srd(S_WS))
    a("buffer_store_dwordx4 %s, %s, %s, s52 offen offset:2048 sc1", d1, v(vXst), srd(S_WS))
    a("s_mov_b32 exec_lo, 0xffff\ns_mov_b32 exec_hi, 0xffff")
    a("buffer_store_dwordx4 %s, %s, %s, s53 offen sc1", d2, v(vXst), srd(S_WS))
    if dst is not None: st_store(a, dst)
    else: a("s_mov_b64 exec, -1")
def st_store(a, dst):
    a("s_mov_b64 exec, 0xffff")
    a("buffer_store_dwordx2 %s, %s, %s, s54 offen sc1", dst, v(vStSt), srd(S_WS))
    a("s_mov_b64 exec, -1")

def kv_store(a, i, d0, d1, sg=(52, 53, 54, 55), t=TMP):
    _a = a
    def a(x, *ar, **k): _a(re_sg(x % ar if ar else x, sg), **k)
    a("v_lshrrev_b32 %s, 4, %s\nv_mul_u32_u24 %s, 384, %s\nv_and_b32 %s, 15, %s\nv_lshl_add_u32 %s, %s, 4, %s", v(t), v(vLane), v(t), v(t), v(t + 1), v(vLane), v(t), v(t + 1), v(t))
    a("s_lshl_b32 s52, %s, 4\ns_add_u32 s52, s52, %s\ns_lshl_b32 s52, s52, 12\ns_add_u32 s52, s52, %d", sHP, sR, KVB[i])
    a("s_lshr_b32 s53, %s, 1\ns_mul_i32 s53, s53, 1920\ns_add_u32 s52, s52, s53\ns_and_b32 s53, %s, 1\ns_lshl_b32 s54, s53, 8\ns_add_u32 s52, s52, s54", sW, sW)
    a("s_cmp_eq_u32 s53, 0\ns_cselect_b32 s54, -1, 0x00ff00ff\ns_and_b32 s55, s54, 0xffff")
    a("s_mov_b32 exec_lo, s54\ns_mov_b32 exec_hi, s54")
    a("buffer_store_dwordx4 %s, %s, %s, s52 offen sc1", d0, v(t), srd(S_WS))
    a("s_mov_b32 exec_lo, s55\ns_mov_b32 exec_hi, 0")
    a("buffer_store_dwordx4 %s, %s, %s, s52 offen offset:1536 sc1", d1, v(t), srd(S_WS))
    a("s_mov_b64 exec, -1")

def halo_store(a, i, d, sg=(52, 53, 54, 55), t=TMP):
    _a = a
    def a(x, *ar, **k): _a(re_sg(x % ar if ar else x, sg), tag="nocount")
    a("v_lshrrev_b32 %s, 5, %s\nv_lshlrev_b32 %s, 1, %s\nv_lshl_add_u32 %s, %s, 8, %s", v(t), v(vLane), v(t + 1), v(vStSt), v(t), v(t), v(t + 1))
    a("s_lshl_b32 s52, %s, 4\ns_add_u32 s52, s52, %s\ns_lshl_b32 s52, s52, 12\ns_add_u32 s52, s52, %d", sR, sHP, HB[i])
    a("s_cmp_eq_u32 %s, 3\ns_cselect_b32 s54, 0xffff0000, 0\ns_mov_b32 exec_lo, s54\ns_mov_b32 exec_hi, s54", sW)
    lb = _a.newlabel("L_hs")
    a("s_cbranch_scc0 %s", lb)
    for k in range(8): a("buffer_store_dwordx4 %s, %s, %s, s52 offen offset:%d sc1", d[k], v(t), srd(S_WS), 512 * k)
    _a.label(lb)
    a("s_mov_b64 exec, -1")
HLD = 24
def halo_load(a, i):
    a("s_lshl_b32 s94, %s, 4\ns_add_u32 s94, s94, %s\ns_lshl_b32 s94, s94, 12\ns_add_u32 s94, s94, %d", sR, sHP, HB[i] - 65536)
    for k in range(4): a("buffer_load_dwordx4 %s, %s, %s, s94 offen offset:%d sc1", v(HLD + 4 * k, 4), v(vHx), srd(S_WS), 1024 * k, tag="hl")
def halo_consume(a, i, retry, redo):
    t = HLD + 16
    sk, chk, lp = a.newlabel("L_hk"), a.newlabel("L_hc"), a.newlabel("L_hl")
    a("s_cmp_lg_u32 %s, 0\ns_cbranch_scc1 %s", sW, sk)
    vm, lg = list(a.vm), list(a.lg)
    a.wait(vm="hl")
    a("s_branch %s", chk)
    a.label(lp)
    halo_load(a, i)
    a("s_waitcnt vmcnt(0)")
    a.label(chk)
    a("v_max3_u32 %s, %s, %s, %s", v(t), v(HLD), v(HLD + 1), v(HLD + 2))
    for k in range(3, 15, 2): a("v_max3_u32 %s, %s, %s, %s", v(t), v(t), v(HLD + k), v(HLD + k + 1))
    a("v_max_u32 %s, %s, %s\nv_cmp_eq_u32 vcc, -1, %s", v(t), v(t), v(HLD + 15), v(t))
    retry(a, lp, 1)
    for k in range(4): a("ds_write_b128 %s, %s", v(vHD[k]), v(HLD + 4 * k, 4))
    a("s_waitcnt lgkmcnt(0)")
    redo()
    a("s_waitcnt lgkmcnt(0)")
    a.vm, a.lg = vm, lg
    a.label(sk)

def arrive(a, base):
    t = TMP
    if base is None: a("s_lshl_b32 s56, %s, 3", sHP)
    else: a("s_and_b32 s56, s2, 3\ns_lshl_b32 s56, s56, 5\ns_add_u32 s56, s56, %d", base)
    a("s_cmp_eq_u32 %s, 0\ns_cselect_b32 s57, 0, 0x80000000\ns_or_b32 s56, s56, s57", sW)
    a("v_mov_b32 %s, s56\nv_mov_b32 %s, 1", v(t + 10), v(t + 11))
    a("s_mov_b64 exec, 1")
    a("buffer_atomic_add %s, %s, %s, 0 offen sc1", v(t + 11), v(t + 10), srd(S_DBG))
    a("s_mov_b64 exec, -1")

def init_probe(r, base, ta=TMP + 8):
    r("v_lshlrev_b32 %s, 5, %s\ns_lshl_b32 s94, %s, 12\nv_add_u32 %s, s94, %s\ns_mov_b64 exec, 15", v(ta), v(vLane), sW, v(ta), v(ta))
    r("buffer_load_dword %s, %s, %s, 0 offen offset:%d\ns_mov_b64 exec, -1", v(XT + 24), v(ta), srd(S_DBG), base, tag="ip")
L1CFG = dict(aq=1, ipd=20, ph=(0, 2, 4, 6), rot=1, every=2, la=0, pre=4, sld=5, sst=8, st=(), hld=44, gates={'0': [3], '3': [6], '6': [8], '7': [9, 'early']})
PK = list(range(176, 187)); PQ, PX = 187, 188
PKS = {'pk': PK, 'pq': PQ}
def raw_dma(r, n, srdw, tag, dst=None):
    r("s_add_u32 s95, s62, %d", (n // 11) * 256 * 3840)
    if dst is None:
        r("s_lshl_b32 s94, %s, 10\ns_add_u32 s94, s94, %d", sW, 4096 * n)
        if n == 27: r("s_cmp_lt_u32 %s, 2\ns_cselect_b32 s94, s94, 0x30000", sW)
        r("s_mov_b32 m0, s94")
        r("buffer_load_dwordx4 %s, %s, s95 offen lds", v(PKS['pk'][n % 11]), srd(srdw), tag=tag)
    else:
        r("buffer_load_dwordx4 %s, %s, %s, s95 offen", dst, v(PKS['pk'][n % 11]), srd(srdw), tag=tag)
def raw_q(r, p, srdw, tag):
    r("s_lshl_b32 s94, %s, 10\ns_add_u32 s94, s94, %d\ns_mov_b32 m0, s94", sW, QI + 4096 * p)
    r("s_mul_i32 s95, %s, %d\ns_add_u32 s95, s95, s62\ns_add_u32 s95, s95, %d", sW, 16 * 3840, p * 64 * 3840)
    r("buffer_load_dwordx4 %s, %s, s95 offen lds", v(PKS['pq']), srd(srdw), tag=tag)

def l1_startup(a, retry):
    WS_, WD_ = 59, 63
    XR = [224, 232, 240, 248]
    SA_, QA_, SB_, QB_ = 189, 190, 191, XT + 7
    t = TMP; L = v(vLane)
    RPS, RPD, RTA, RDAT = 56, 57, 58, [192, 196, 44]
    def rp_pat(r):
        A_, B_, C_ = v(t + 4), v(t + 5), v(t + 6)
        r("s_add_u32 s56, %s, 1\ns_and_b32 s56, s56, 3\ns_mul_i32 s56, s56, 1280\nv_add_u32 %s, s56, %s", sW, v(RPS), v(PQ))
        r("v_and_b32 %s, 3, %s\nv_min_u32 %s, 2, %s\nv_mul_u32_u24 %s, 1280, %s\nv_lshrrev_b32 %s, 2, %s\nv_mul_u32_u24 %s, 3840, %s\nv_add3_u32 %s, %s, %s, 32", A_, L, A_, A_, A_, A_, B_, L, B_, B_, A_, A_, B_)
        r("s_cmp_eq_u32 %s, 2\ns_cselect_b64 vcc, -1, 0\nv_cndmask_b32 %s, %s, %s, vcc", sW, v(RPS), v(RPS), A_)
        r("v_sub_u32 %s, %s, %s\nv_add_u32 %s, %s, %s\nv_subrev_u32 %s, %d, %s", A_, v(SW), v(vL16), v(RTA), v(vWq), A_, v(RTA), QI, v(RTA))
        r("v_bfe_u32 %s, %s, 4, 1\nv_bfe_u32 %s, %s, 1, 1\nv_lshl_add_u32 %s, %s, 1, %s\nv_and_b32 %s, 1, %s\nv_mul_u32_u24 %s, 3, %s\nv_sub_u32 %s, %s, %s\nv_lshlrev_b32 %s, 3, %s\nv_add_u32 %s, %s, %s", A_, L, B_, L, A_, A_, B_, B_, L, B_, B_, A_, A_, B_, A_, A_, A_, A_, v(RTA))
        r("s_cmp_eq_u32 %s, 2\ns_cselect_b64 vcc, -1, 0\nv_cndmask_b32 %s, %s, %s, vcc", sW, v(RTA), v(RTA), A_)
        r("v_lshrrev_b32 %s, 5, %s\nv_lshlrev_b32 %s, 7, %s\nv_sub_u32 %s, %s, %s\nv_and_b32 %s, 31, %s\nv_mov_b32 %s, 0x80000000", A_, L, A_, A_, A_, v(vL16), A_, B_, L, C_)
        r("v_cmp_gt_u32 vcc, 24, %s\nv_cndmask_b32 %s, %s, %s, vcc", B_, A_, C_, A_)
        r("s_cmp_eq_u32 %s, 2\ns_cselect_b64 vcc, -1, 0\nv_cndmask_b32 %s, %s, %s, vcc", sW, v(RPD), v(vL16), A_)
    def rp_step(r, i):
        if i < 2: r("s_add_u32 s95, %s, %d", sR, 16 * i)
        else: r("s_cmp_lt_u32 %s, 8\ns_cselect_b32 s95, 32, 0\ns_add_u32 s95, s95, %s", sR, sR)
    def rp_load(r, srdw, tag):
        for i in range(3):
            rp_step(r, i)
            r("s_mul_i32 s95, s95, %d\ns_add_u32 s95, s95, s62", 16 * 3840)
            r("buffer_load_dwordx4 %s, %s, %s, s95 offen", v(RDAT[i], 4), v(RPS), srd(srdw), tag=tag)
    def rp_tr(r, tagw):
        r.wait(vm=tagw)
        r("s_mov_b32 exec_hi, -1")
        for i in range(3):
            r("ds_write_b128 %s, %s", v(SW), v(RDAT[i], 4))
            for u in range(2): r("ds_read_b64_tr_b16 %s, %s offset:%d", v(RDAT[i] + 2 * u, 2), v(RTA), 256 * u, tag="wt")
        r("s_mov_b64 exec, -1")
    def rp_store(r, which, tag):
        r.wait(lg="wt")
        for i in range(3):
            rp_step(r, i)
            r("s_cmp_eq_u32 %s, 3\ns_movk_i32 s94, 2816\ns_cselect_b32 s94, 1024, s94\ns_mul_i32 s95, s95, s94\ns_cselect_b32 s94, %d, s97\ns_add_u32 s95, s95, s94", sW, QI)
            r("s_mul_i32 s94, %s, 153600\ns_add_u32 s94, s94, s95\ns_add_u32 s94, s94, %d", sHP, PW[which])
            r("buffer_store_dwordx4 %s, %s, %s, s94 offen sc1", v(RDAT[i], 4), v(RPD), srd(S_WS), tag=tag)
    a("s_movk_i32 s61, 1280")
    a("v_lshrrev_b32 %s, 2, %s\nv_mul_u32_u24 %s, 1280, %s", v(t), L, v(t), v(t))
    a("v_lshrrev_b32 %s, 4, %s\nv_xor_b32 %s, %s, %s\nv_and_b32 %s, 3, %s", v(t + 1), L, v(t + 1), v(t + 1), L, v(t + 1), v(t + 1))
    a("v_lshl_add_u32 %s, %s, 4, %s", v(PX), v(t + 1), v(t))
    a("s_mul_i32 s86, %s, 40960\ns_add_u32 s87, s86, 20480\ns_mul_i32 s63, %s, 160\ns_mul_i32 s62, %s, 80\ns_lshl_b32 s97, %s, 10", sT, sC, sHP, sW)
    stamp(a, "start")
    a("s_and_b32 s96, %s, 3\ns_mul_i32 s96, s96, 3\ns_add_u32 s96, s96, %s", sR, sC)
    if not L1CFG["rot"]: a("s_mov_b32 s96, 0")
    def ptab(p): a("s_add_u32 s%d, s96, %d\ns_cmp_ge_u32 s%d, 10\ns_cselect_b32 s91, 10, 0\ns_sub_u32 s%d, s%d, s91\ns_mov_b32 s96, s%d" % (74 + p, min(p, 1), 74 + p, 74 + p, 74 + p, 74 + p))
    def xld(r, un):
        for h in range(2):
            r("s_lshl_b32 s90, s%d, 7\ns_add_u32 s90, s90, s%d", 74 + un // 2, 86 + h)
            r("buffer_load_dwordx4 %s, %s, %s, s90 offen offset:%d", ag(8 * un + 4 * h, 4), v(PX), srd(S_X), 64 * (un % 2), tag=("u", un))
    def wld(r, p):
        lo = 0 if p == 0 else (11 * (p - 1) + 10) // 4 + 1
        hi = min((11 * p + 10) // 4, 27)
        for n in range(lo, hi + 1):
            if n < 11:
                r("s_add_u32 s58, %s, %d\ns_cmp_ge_u32 s58, 11\ns_cselect_b32 s57, 11, 0\ns_sub_u32 s58, s58, s57", sW, 4 * n % 11)
                pat_kvm(r, PK[n], "s58", t)
            p0, p1 = 4 * n // 11, min((4 * n + 3) // 11, 9)
            r("s_add_u32 s94, s97, %d", 4096 * n)
            if n == 27: r("s_cmp_lt_u32 %s, 2\ns_cselect_b32 s94, s94, 0x30000", sW)
            r("s_mov_b32 m0, s94")
            if p1 != p0: r("s_cmp_ge_u32 %s, %d\ns_cselect_b32 s95, s%d, s%d\ns_mul_i32 s95, s95, %d", sW, 11 * p1 - 4 * n, 74 + p1, 74 + p0, 64 * 3840)
            else: r("s_mul_i32 s95, s%d, %d", 74 + p0, 64 * 3840)
            r("s_add_u32 s95, s95, s62")
            r("buffer_load_dwordx4 %s, %s, s95 offen lds", v(PK[n % 11]), srd(S_WA), tag=("p", p))
    def qld(r, p):
        r("s_add_u32 s94, s97, %d\ns_mov_b32 m0, s94", QI + 4096 * p)
        r("s_lshl_b32 s95, s%d, 2\ns_add_u32 s95, s95, %s\ns_mul_i32 s95, s95, %d\ns_add_u32 s95, s95, s62", 74 + p, sW, 16 * 3840)
        r("buffer_load_dwordx4 %s, %s, s95 offen lds", v(PQ), srd(S_WA), tag="qd")
    ptab(0); ptab(1)
    xld(a, 0); xld(a, 1); wld(a, 0)
    for p in range(2, 10): ptab(p)
    a("s_lshr_b32 s52, s2, 3\ns_lshl_b32 s52, s52, 2\ns_add_u32 s52, s52, %s\ns_lshl_b32 s52, s52, 10", sW)
    a("s_min_u32 s52, s52, (L_end-L_start-1024)&0xfffffff0")
    a("v_add_u32 %s, s52, %s", v(t + 8), v(vL16))
    a("global_load_dwordx4 %s, %s, s[84:85]", ag(252, 4), v(t + 8), tag="pf")
    xld(a, 2); xld(a, 3); wld(a, 1)
    addr_regs(a)
    pat_q(a, PQ, t)
    SW, SR0, SR1 = XT + 4, XT + 5, XT + 6
    a("s_lshl_b32 s52, %s, 11\ns_add_u32 s52, s52, %d", sW, STG)
    a("v_add_u32 %s, s52, %s", v(SW), v(vL16))
    a("v_and_b32 %s, 31, %s\nv_lshlrev_b32 %s, 6, %s\nv_add_u32 %s, s52, %s", v(t), L, v(t), v(t), v(t), v(t))
    a("v_bfe_u32 %s, %s, 2, 2\nv_lshrrev_b32 %s, 5, %s\nv_xor_b32 %s, %s, %s", v(t + 1), L, v(t + 2), L, v(t + 1), v(t + 1), v(t + 2))
    a("v_lshl_add_u32 %s, %s, 4, %s", v(SR0), v(t + 1), v(t))
    a("v_xor_b32 %s, 32, %s", v(SR1), v(SR0))
    for i in range(4): a("v_mov_b32 %s, -1\nv_mov_b32 %s, 0x3f803f80", v(XT + i), v(XT + 8 + i))
    for r_ in (SA_, QA_, SB_, QB_): a("v_mov_b32 %s, 0", v(r_))
    a("v_add_u32 %s, %d, %s", v(t), SP, v(vL16))
    for i in range(4): a("v_mov_b32 %s, 0", v(t + 4 + i))
    a("ds_write_b128 %s, %s", v(t), v(t + 4, 4))
    a("s_lshl_b32 s52, %s, 6\nv_add_u32 %s, s52, %s\nv_add_u32 %s, 128, %s\ns_cmp_lt_u32 %s, 2\ns_cselect_b64 vcc, -1, 0", sW, v(60), v(vWkv0), v(61), v(vWm0), sW)
    a("v_cndmask_b32 %s, %s, %s, vcc\nv_add_u32 %s, %d, %s", v(60), v(61), v(60), v(61), 20 * 2816, v(60))
    ONES = v(XT + 8, 4)
    PRE = L1CFG["pre"]
    for p in range(2, PRE): xld(a, 2 * p); xld(a, 2 * p + 1); wld(a, p)
    stamp(a, "l1 issued")
    def pats(r):
        r("s_lshl_b32 s58, %s, 1\ns_add_u32 s58, s58, %s\ns_lshl_b32 s58, s58, 2\ns_add_u32 s58, s58, %s", sR, sH64, sW)
        pat_wo(r, WS_, "s58", t)
        r("s_cmp_lt_u32 s58, 100\ns_cselect_b32 s53, 0, 0x80000000\ns_lshl_b32 s58, s58, 10\ns_or_b32 s58, s58, s53")
        r("v_or_b32 %s, s53, %s\nv_add_u32 %s, s58, %s", v(WS_), v(WS_), v(WD_), v(vL16))
        rp_pat(r)
    def wo_ld(r, k, tag): r("buffer_load_dwordx4 %s, %s, %s, s63 offen", v(48 + 4 * k, 4), v(WS_), srd(S_WOB if k else S_WOA), tag=tag)
    def wo_tr(r, k):
        r("v_sub_u32 %s, %s, %s\nv_lshl_add_u32 %s, %s, 3, %s", v(43), v(SW), v(vL16), v(43), L, v(43))
        r("s_mov_b32 exec_hi, -1")
        r("ds_write_b128 %s, %s", v(SW), v(48 + 4 * k, 4))
        for u in range(2): r("ds_read_b64_tr_b16 %s, %s offset:%d", v(48 + 4 * k + 2 * u, 2), v(43), 512 * u, tag="wt")
        r("s_mov_b64 exec, -1")
    def wo_st(r, k, tag):
        r.wait(lg="wt")
        r("s_mul_i32 s94, %s, 102400\ns_add_u32 s94, s94, %d", sC, PO[k])
        r("buffer_store_dwordx4 %s, %s, %s, s94 offen sc1", v(48 + 4 * k, 4), v(WD_), srd(S_WS), tag=tag)
    def res_ld(r):
        r("v_and_b32 %s, 15, %s\nv_mul_u32_u24 %s, 1280, %s\nv_lshrrev_b32 %s, 4, %s\nv_lshl_add_u32 %s, %s, 3, %s", v(42), L, v(42), v(42), v(40), L, v(42), v(40), v(42))
        r("s_mul_i32 s98, %s, 20480\ns_add_u32 s98, s98, s63", sU)
        for i in range(5): r("buffer_load_dwordx2 %s, %s, %s, s98 offen offset:%d", v(RES + 2 * i, 2), v(42), srd(S_X), 32 * i, tag="res")
    vq = Stream(a); lq = Stream(a); eq = Stream(a, pats)
    def loads(r):
        for p in range(PRE, 10):
            xld(r, 2 * p); xld(r, 2 * p + 1); r.label("@x%d" % p); wld(r, p); r.label("@w%d" % p)
            if p == L1CFG["sld"]: r.label("@sl"); rp_load(r, S_WB, "sl"); wo_ld(r, 0, "sl"); fills(r, [("h", 0), ("o", 0)])
            if p == L1CFG["sst"]: r.label("@t"); rp_store(r, 1, "early"); wo_st(r, 0, "early"); r.label("@s")
        for p in range(10): qld(r, p)
        r.label("@q")
        rp_load(r, S_WA, "sl2"); wo_ld(r, 1, "sl2"); res_ld(r)
        fills(r, [("kv", 0), ("x", 0)])
        rp_tr(r, "sl2"); wo_tr(r, 1); rp_store(r, 0, "late"); wo_st(r, 1, "late")
        fills(r, [("o", 1)])
    lq.add(loads)
    sops = []
    play0 = lq.play
    def play(k=1):
        for _ in range(k):
            if lq.q and any(it[0] == "l" and it[1] == "@sl" for it in lq.q[0]): eq.flush()
            if lq.q and any(it[0] == "l" and it[1] == "@t" for it in lq.q[0]):
                while len(sops) % 5 in (1, 2): sops.pop(0)()
                rp_tr(a, "sl"); wo_tr(a, 0)
            play0(1)
    lq.play = play
    def gate(upto, extra=None):
        lq.upto("@w%d" % min(upto + L1CFG["la"], 9))
        if extra: lq.upto("@q" if L1CFG["aq"] else "@s")
        a.wait(vm=[("p", upto), extra])
        a("s_barrier")
        if upto in L1CFG["st"]: stamp(a, "l1 g%d" % upto)
        if extra: arrive(a, 0)
    def stage_ops(un):
        b = XR[un % 4]
        def o0():
            lq.upto("@x%d" % (un // 2)); a.wait(vm=("u", un))
            for i in range(4): a("v_accvgpr_read_b32 %s, %s", v(b + i), ag(8 * un + i))
        def o1():
            for i in range(4, 8): a("v_accvgpr_read_b32 %s, %s", v(b + i), ag(8 * un + i))
            def st(r):
                for i in range(8):
                    S_, Q_ = (SA_, QA_) if i < 4 else (SB_, QB_)
                    r("v_dot2c_f32_bf16 %s, %s, %s\nv_dot2c_f32_bf16 %s, %s, %s", v(S_), v(b + i), v(vONES), v(Q_), v(b + i), v(b + i))
            vq.add(st)
        return [o0, o1, lambda: (a("ds_write_b128 %s, %s", v(SW), ag(8 * un, 4)), a("ds_write_b128 %s, %s offset:1024", v(SW), ag(8 * un + 4, 4))),
                lambda: a("ds_read_b128 %s, %s", ag(8 * un, 4), v(SR0), tag=("xf", un)), lambda: a("ds_read_b128 %s, %s", ag(8 * un + 4, 4), v(SR1), tag=("xf", un))]
    for un in (0, 1):
        for o in stage_ops(un): o()
    gate(0)
    slots = []; DEP = 6
    for s in range(40):
        B = ag(4 * s, 4); c = {"c": "0"} if s == 0 else {}
        first = {"pre": (lambda un=s // 2: a.wait(lg=("xf", un)))}
        slots += [dict(op=M32, acc=AK, n=16, rd=rd_kvm(s, 0), B=B, **first, **c), dict(op=M32, acc=AV, n=16, rd=rd_kvm(s, 64), B=B, **c),
                  dict(op=M32, acc=AM, n=16, rd=rd_kvm(s, 128), B=B, **c),
                  dict(op=M32, acc=ag(160, 16), n=16, rd=[(60 + (s >= 20), (s % 20) * 2816 + u * 176) for u in (0, 1)], B=ONES, swap=True, **c)]
    GATES = L1CFG["gates"]
    def hook(i):
        p, j = divmod(i, 16)
        if j == 0 and p < 9: sops.extend(stage_ops(2 * p + 2) + stage_ops(2 * p + 3))
        if sops: sops.pop(0)()
        if j == 9 and str(p) in GATES: gate(*GATES[str(p)])
        vq.play(3); eq.play(3)
        if (i % 8) in L1CFG["ph"]: lq.play(1)
    gemm(a, slots, DEP, hook=hook)
    assert not len(eq)
    vq.flush(); lq.upto("@q")
    stamp(a, "l1 mfma end")
    for r_ in (SA_, QA_, SB_, QB_):
        a("v_add_f32_dpp %s, %s, %s quad_perm:[1,0,3,2] row_mask:0xf bank_mask:0xf", v(r_), v(r_), v(r_))
    for r_ in (SA_, QA_, SB_, QB_):
        a("v_add_f32_dpp %s, %s, %s quad_perm:[2,3,0,1] row_mask:0xf bank_mask:0xf", v(r_), v(r_), v(r_))
    a("v_and_b32 %s, 15, %s\nv_lshlrev_b32 %s, 4, %s", v(t + 2), L, v(t + 2), v(t + 2))
    for k, r_ in enumerate((SA_, QA_, SB_, QB_)): a("ds_bpermute_b32 %s, %s, %s", v(t + 8 + k), v(t + 2), v(r_), tag="bp")
    cs_add(a, 0, ag(160), put=True)
    a("v_and_b32 %s, 16, %s\nv_cmp_eq_u32 vcc, 0, %s\ns_waitcnt lgkmcnt(0)\ns_barrier", v(t + 3), L, v(t + 3))
    a("v_cndmask_b32 %s, %s, %s, vcc\nv_cndmask_b32 %s, %s, %s, vcc", v(t), v(t + 10), v(t + 8), v(t + 1), v(t + 11), v(t + 9))
    return ONES, lq

def cs_add(a, which, tiles, t=TMP, put=False):
    L = v(vLane)
    a("v_bfe_u32 %s, %s, 2, 1\nv_lshlrev_b32 %s, 8, %s\nv_and_b32 %s, 3, %s\nv_lshl_add_u32 %s, %s, 2, %s", v(t), L, v(t), v(t), v(t + 1), L, v(t), v(t + 1), v(t))
    a("v_bfe_u32 %s, %s, 3, 2\nv_lshl_add_u32 %s, %s, 4, %s\nv_add_u32 %s, %d, %s", v(t + 1), L, v(t), v(t + 1), v(t), v(t), SP, v(t))
    if put:
        a("s_min_u32 s52, %s, 2\ns_lshl_b32 s52, s52, 6\nv_add_u32 %s, s52, %s\ns_mov_b64 exec, 0xffffffff", sW, v(t), v(t))
        a("ds_write_b32 %s, %s offset:%d\ns_mov_b64 exec, -1", v(t), tiles, CS[which])
        return
    a("s_mov_b64 exec, 0xffffffff")
    for k, r in tiles.items(): a("ds_add_f32 %s, %s offset:%d", v(t), r, CS[which] + 64 * k)
    a("s_mov_b64 exec, -1")
def cs_steps(a, s0, n, acc, ones, first, ring, t=TMP):
    a("s_lshl_b32 s52, %s, 10\nv_add_u32 %s, s52, %s\nv_add_u32 %s, 2048, %s\ns_cmp_lt_u32 %s, 2\ns_cselect_b64 vcc, -1, 0", sW, v(t), v(vWkv0), v(t + 1), v(vWm0), sW)
    a("v_cndmask_b32 %s, %s, %s, vcc\nv_add_u32 %s, %d, %s", v(t), v(t + 1), v(t), v(t), 2816 * s0, v(t))
    gemm(a, [dict(op=M32, acc=acc, n=16, rd=[(t, s * 2816)], B=ones, swap=True, **({"c": "0"} if s == 0 and first else {})) for s in range(n)], len(ring) - 1, ring=ring)

def stats_fin(a, S, Q, NM, RS):
    a("s_mov_b32 s56, 0x%08x" % f32bits(1.0 / 640))
    a("v_mul_f32 %s, s56, %s\nv_mul_f32 %s, s56, %s", v(NM), v(S), v(RS), v(Q))
    a("v_fma_f32 %s, -%s, %s, %s", v(RS), v(NM), v(NM), v(RS))
    a("v_max_f32 %s, 0, %s\nv_add_f32 %s, 0x%08x, %s" % (v(RS), v(RS), v(RS), f32bits(1e-5), v(RS)))
    a("v_rsq_f32 %s, %s\nv_sub_f32 %s, 0, %s", v(RS), v(RS), v(NM), v(NM))

import struct
def f32bits(x): return struct.unpack("<I", struct.pack("<f", x))[0]

def pairs(base_list):
    for b, n in base_list:
        for i in range(0, n, 2): yield b + i

def scale_regs(a, lst, RS):
    for r in pairs(lst): a("v_pk_mul_f32 %s, %s, %s op_sel_hi:[1,0]", v(r, 2), v(r, 2), v(RS, 2))
def pack20(a, dst, main, mix):
    src = [main + i for i in range(16)] + [mix + i for i in range(4)]
    for i in range(10): a("v_cvt_pk_bf16_f32 %s, %s, %s", v(dst + i), v(src[2 * i]), v(src[2 * i + 1]))

def prep_records(a, RS, hi):
    scale_regs(a, [(AK, 16), (AM + 4, 8), (AV, 16)], RS)
    pack20(a, AK, AK, AM + 4)
def write_records(a, hi):
    halo_store(a, hi, [v(AK, 4), v(AK + 4, 4), v(AK + 8, 4)] + [v(AV + 4 * i, 4) for i in range(4)] + [v(AM + 8, 4)])
    o = 14 * 48
    a("ds_write_b128 %s, %s offset:%d\nds_write_b128 %s, %s offset:%d\nds_write_b64 %s, %s offset:%d", v(vKrec), v(AK, 4), o, v(vKrec), v(AK + 4, 4), o + 16, v(vKrec), v(AK + 8, 2), o + 32)
    o = 14 * 80
    for i in range(4): a("ds_write_b128 %s, %s offset:%d", v(vVrec), v(AV + 4 * i, 4), o + 16 * i)
    a("ds_write_b128 %s, %s offset:%d", v(vVrec), v(AM + 8, 4), o + 64)

def attention(a, RS, oidx, retry):
    LG = TMP; t = TMP + 8
    KR = [RING, RING + 12, RING + 24]; VR = [24, 44, XT]
    def rdk(i, a=a):
        r = KR[i % 3]; o = (14 - 2 * i) * 48
        a("ds_read_b128 %s, %s offset:%d\nds_read_b128 %s, %s offset:%d\nds_read_b64 %s, %s offset:%d", v(r, 4), v(vKrec), o, v(r + 4, 4), v(vKrec), o + 16, v(r + 8, 2), v(vKrec), o + 32, tag=("k", i))
    def rdv(i):
        r = VR[i % 3]; o = (14 - 2 * i) * 80
        for j in range(5): a("ds_read_b128 %s, %s offset:%d", v(r + 4 * j, 4), v(vVrec), o + 16 * j, tag=("v", i))
    for i in (1, 2, 3): rdk(i)
    scale_regs(a, [(AQ, 16), (AM, 4)], RS)
    pack20(a, AQ, AQ, AM)
    for i in range(8): a("v_mov_b32 %s, 0", v(LG + i))
    for i in range(8):
        r = AK if i == 0 else KR[i % 3]
        if i == 1:
            z = a.a if isinstance(a, Mix) else a
            halo_consume(z, oidx // 2, retry, lambda: [rdk(k, z) for k in (1, 2, 3)])
        if i: a.wait(lg=("k", i))
        for j in range(10): a("v_dot2c_f32_bf16 %s, %s, %s", v(LG + i), v(AQ + j), v(r + j))
        if 1 <= i <= 4: rdk(i + 3)
        if i == 7: a.wait(vm="hl")
        if i in (5, 6, 7): rdv(i - 4)
    lb = a.newlabel("L_nomask")
    z = a.a if isinstance(a, Mix) else a
    z("s_cmp_lg_u32 %s, 0\ns_cbranch_scc1 %s", sT, lb)
    z("v_and_b32 %s, 31, %s\nv_mov_b32 %s, 0xff800000", v(t), v(vLane), v(t + 1))
    for i in range(1, 8):
        z("v_cmp_le_u32 vcc, %d, %s\nv_cndmask_b32 %s, %s, %s, vcc", 2 * i, v(t), v(LG + i), v(t + 1), v(LG + i))
    z("s_nop 2")
    a.label(lb)
    a("v_max3_f32 %s, %s, %s, %s\nv_max3_f32 %s, %s, %s, %s", v(t), v(LG), v(LG + 1), v(LG + 2), v(t + 1), v(LG + 3), v(LG + 4), v(LG + 5))
    a("v_max3_f32 %s, %s, %s, %s\nv_max_f32 %s, %s, %s", v(t), v(t), v(LG + 6), v(LG + 7), v(t), v(t), v(t + 1))
    import math
    a("s_mov_b32 s56, 0x%08x" % f32bits(20 ** -0.5 * math.log2(math.e)))
    a("v_mul_f32 %s, s56, %s", v(t), v(t))
    for i in range(8): a("v_fma_f32 %s, %s, s56, -%s", v(LG + i), v(LG + i), v(t))
    for i in range(8): a("v_exp_f32 %s, %s", v(LG + i), v(LG + i))
    a("v_pk_add_f32 %s, %s, %s\nv_pk_add_f32 %s, %s, %s", v(t, 2), v(LG, 2), v(LG + 2, 2), v(t + 2, 2), v(LG + 4, 2), v(LG + 6, 2))
    a("v_pk_add_f32 %s, %s, %s\nv_add_f32 %s, %s, %s\nv_rcp_f32 %s, %s", v(t, 2), v(t, 2), v(t + 2, 2), v(t), v(t), v(t + 1), v(t), v(t))
    O = list(pairs([(AV, 16), (AM + 8, 4)]))
    for i in range(8):
        sel = "op_sel:[0,%d,0] op_sel_hi:[1,%d,1]" % (i % 2, i % 2)
        P = v(LG + i - i % 2, 2)
        if i == 0:
            for r in O: a("v_pk_mul_f32 %s, %s, %s op_sel_hi:[1,0]", v(r, 2), v(r, 2), P)
        else:
            a.wait(lg=("v", i))
            for j, r in enumerate(O): a("v_pk_fma_f32 %s, %s, %s, %s %s", v(r, 2), v(VR[i % 3] + 2 * j, 2), P, v(r, 2), sel)
            if i + 3 <= 7: rdv(i + 3)
    scale_regs(a, [(AV, 16), (AM + 8, 4)], t)
    publish_o(a, oidx)

def publish_o(a, oidx, mix=AM + 8):
    pack20(a, AV, AV, mix)
    a("v_permlane32_swap_b32 %s, %s\nv_permlane32_swap_b32 %s, %s", v(AV + 8), v(AV + 10), v(AV + 9), v(AV + 11))
    o_store(a, oidx, v(AV, 4), v(AV + 4, 4), v(AV + 8, 4))
    stamp(a, "o%d pub" % (oidx + 1))


def layer1_qkv(a, chk, mid, phid, retry):
    ONES, lq = l1_startup(a, retry)
    stamp(a, "l1 cs")
    for k in range(3):
        for i in range(4): a("ds_read_b128 %s, %s offset:%d", v((RING, RING + 16, AQ)[k] + 4 * i, 4), v(vCs), CS[0] + 64 * k + 16 * i, tag=("cs", k))
    stats_fin(a, TMP, TMP + 1, NMR, RSR)
    for k in range(3):
        a.wait(lg=("cs", k))
        for i in range(0, 16, 2):
            a("v_pk_fma_f32 %s, %s, %s, %s op_sel_hi:[1,0,1]", v(AK + 16 * k + i, 2), v((RING, RING + 16, AQ)[k] + i, 2), v(NMR, 2), v(AK + 16 * k + i, 2))
    prep_records(a, RSR, 0)
    sd = Stream(a, lambda r: (write_records(r, 0), phid(r)))
    sd.play(4)
    a.wait(vm="qd")
    a("s_barrier")
    stamp(a, "l1 q in")
    CA = 41
    a("s_mul_i32 s52, %s, 10240\nv_add_u32 %s, s52, %s", sW, v(CA), v(vWq))
    slots = []
    for s in range(40):
        slots.append(dict(op=M32, acc=AQ, n=16, rd=rd_q(s), B=ag(4 * s, 4), **({"c": "0"} if s == 0 else {})))
        if s % 4 == 3: slots.append(dict(op=M32, acc=ag(160, 16), n=16, rd=[(CA, (s // 4) * 1024 + u * 256) for u in (0, 1)], B=ONES, swap=True, **({"c": "0"} if s == 3 else {})))
    def hook(i):
        if i % 2 == 1: sd.play(1)
        if i == L1CFG["hld"] - L1CFG["ipd"]: init_probe(a, 0, TMP + 7)
        if i == L1CFG["hld"]: chk(a); halo_load(a, 0)
        elif i % 2 == 0 and not L1CFG["hld"] - 6 < i < L1CFG["hld"]: lq.play_vm(1, 4)
    gemm(a, slots, 6, hook=hook)
    sd.flush(); lq.flush()
    cs_add(a, 0, {3: ag(160)})
    frag_regs(a)
    stamp(a, "l1 pass2")
    a.wait(vm="late")
    bg = mid(a)
    arrive(a, 128)
    for i in range(4): a("ds_read_b128 %s, %s offset:%d", v(44 + 4 * i, 4), v(vCs), CS[0] + 192 + 16 * i, tag="cq")
    a.wait(lg="cq")
    for i in range(0, 16, 2): a("v_pk_fma_f32 %s, %s, %s, %s op_sel_hi:[1,0,1]", v(AQ + i, 2), v(44 + i, 2), v(NMR, 2), v(AQ + i, 2))
    stamp(a, "l1 mid")
    attention(Mix(a, bg, 8), RSR, 0, retry)
    return bg
```

```python
from gen2 import *
import math
CFG = dict(x_pre1=6, h_ld=32, att_every=12, kv_probe=24, g_every=8, g_pre=6, gs_every=24, af_every=8, wo_pre=10, wo_every=4, p1_fast=0, p1_ev=2, x_pre=10, pk0=92, d_o=6, d_x=6, d_kv=6)
MAXRETRY = 200000

def parkreg(n): return ag(160 + 4 * n, 4) if n < 24 else v(PARKV + 4 * (n - 24), 4)

def bounded_retry(a, label, sleep=2):
    ok = a.newlabel("L_ok")
    a("s_cbranch_vccz %s", ok)
    a("s_add_u32 %s, %s, 1\ns_cmp_gt_u32 %s, %d\ns_cbranch_scc1 %s", sRETRY, sRETRY, sRETRY, MAXRETRY, ok)
    vm, lg = list(a.vm), list(a.lg)
    a("s_waitcnt vmcnt(0) lgkmcnt(0)\ns_sleep %d\ns_branch %s" % (sleep, label))
    a.vm, a.lg = vm, lg
    a.label(ok)

def init_check(a, reg, base, tag):
    ok, lp = a.newlabel("L_iok"), a.newlabel("L_iwp")
    a("s_cmp_lg_u32 %s, 0\ns_cbranch_scc1 %s", sW, ok)
    vm0, lg0 = list(a.vm), list(a.lg)
    a.wait(vm=tag)
    a("s_mov_b64 exec, 15\nv_cmp_gt_u32 vcc, 64, %s\ns_cbranch_vccz %s", v(reg), ok)
    vm, lg = list(a.vm), list(a.lg)
    a("v_lshlrev_b32 %s, 5, %s", v(TMP + 6), v(vLane))
    a.label(lp)
    a("buffer_load_dword %s, %s, %s, 0 offen offset:%d sc1\ns_waitcnt vmcnt(0)", v(reg), v(TMP + 6), srd(S_DBG), base)
    a("v_cmp_gt_u32 vcc, 64, %s", v(reg))
    bounded_retry(a, lp, 4)
    a.vm, a.lg = vm0, lg0
    a.label(ok)
    a("s_mov_b64 exec, -1")

def wo_base(a, which):
    a("s_mul_i32 s96, %s, 102400\ns_lshl_b32 s97, %s, 10\ns_add_u32 s96, s96, s97\ns_add_u32 s96, s96, %d", sC, sW, PO[which])
def wo_dma(a, ns):
    for n in ns:
        a("s_add_u32 s94, s97, %d\ns_mov_b32 m0, s94\ns_add_u32 s95, s96, %d", WOI + 4096 * n, 4096 * n)
        a("buffer_load_dwordx4 %s, %s, s95 offen lds", v(vL16), srd(S_WS), tag="wod")
WO1 = list(range(2, 15))
WO2 = [0, 1] + list(range(15, 25))

def park_base(a, which):
    a("s_mul_i32 s88, %s, 153600\ns_lshl_b32 s89, %s, 10\ns_add_u32 s88, s88, s89\ns_add_u32 s88, s88, %d", sHP, sW, PW[which])
def park_load(a, ns):
    for n in ns:
        a("s_add_u32 s95, s88, %d", 4096 * n)
        a("buffer_load_dwordx4 %s, %s, %s, s95 offen", parkreg(n), v(vL16), srd(S_WS), tag=("park", n))
def park_load27(a):
    a("s_add_u32 s95, s88, %d", 4096 * 27)
    a("buffer_load_dwordx4 %s, %s, %s, s95 offen", parkreg(27), v(vL16), srd(S_WS), tag=("park", 27))
def pack_store(a):
    for n in range(28):
        lb = a.newlabel("L_ps")
        a("s_cmp_eq_u32 %s, %d\ns_cbranch_scc0 %s\ns_add_u32 s95, s88, %d", sR, n % 16, lb, 4096 * n)
        a("buffer_store_dwordx4 %s, %s, %s, s95 offen sc1", parkreg(n), v(vL16), srd(S_WS))
        a.vm.pop()
        a.label(lb)
def park_write(a, ns, t, raw=False):
    a("v_add_u32 %s, s89, %s\nv_add_u32 %s, 0x10000, %s", v(t), v(vL16), v(t + 1), v(t))
    for n in ns:
        a.wait(vm=("park", n))
        if raw and n == 27: a("s_cmp_lt_u32 %s, 2\ns_cselect_b64 exec, -1, 0", sW)
        a("ds_write_b128 %s, %s offset:%d", v(t + n // 16), parkreg(n), 4096 * (n % 16))
        if raw and n == 27: a("s_mov_b64 exec, -1")
def q_base(a):
    a("s_mov_b32 s98, s88")
def q_dma(a):
    for n in range(28, 38):
        a("s_add_u32 s94, s89, %d", 4096 * n)
        if n == 37: a("s_cmp_lt_u32 %s, 2\ns_cselect_b32 s94, s94, 0x30000", sW)
        a("s_mov_b32 m0, s94\ns_add_u32 s95, s98, %d", 4096 * n)
        a("buffer_load_dwordx4 %s, %s, s95 offen lds", v(vL16), srd(S_WS), tag="qd")

def wo_phase(a, L, rest, after_bulk=None):
    WAC, PR, D = 64, 24, 40
    a.wait(vm="wod")
    a("s_barrier")
    a("s_mul_i32 s59, %s, 20480\ns_add_u32 s59, s59, %d\ns_add_u32 s60, s59, 16384", sU, OB[L])
    stamp(a, "wo%d bar" % (L + 1))
    if L == 0: a.wait(vm="res"); phi_frags(a)
    early = [n for n in range(12) if L < 3 and not rest.has(("park", n))]
    if early: park_write(a, early, TMP + 2)
    if L == 0:
        for i in range(4): a("v_mov_b32 %s, 0x3f803f80", v(CONE + i))
        CS1[0] = (len(early) * 4096 // 2816) // 4 * 4
        print('early', len(early), CS1)
        if CS1[0]:
            a("s_waitcnt lgkmcnt(0)\ns_barrier")
            cs_steps(a, 0, CS1[0], CACC[0], v(CONE, 4), True, CRING)
    if CFG["d_o"] and len(early) < 8: a("s_sleep %d", CFG["d_o"])
    a("v_add_u32 %s, 0x10000, %s", v(TMP + 11), v(vWo1))
    top = a.newlabel("L_wo")
    a.label(top)
    for i in range(4): a("buffer_load_dwordx4 %s, %s, %s, s60 offen offset:%d sc1", v(PR + 4 * i, 4), v(vL16), srd(S_WS), 1024 * i, tag="pr")
    for i in range(10):
        a("v_lshlrev_b32 %s, 16, %s\nv_and_b32 %s, 0xffff0000, %s", v(WAC + 2 * i), v(RES + i), v(WAC + 2 * i + 1), v(RES + i))
    a.wait(vm="pr")
    a("v_max3_u32 %s, %s, %s, %s", v(TMP), v(PR), v(PR + 1), v(PR + 2))
    for i in range(3, 15, 2): a("v_max3_u32 %s, %s, %s, %s", v(TMP), v(TMP), v(PR + i), v(PR + i + 1))
    a("v_max_u32 %s, %s, %s", v(TMP), v(TMP), v(PR + 15))
    a("v_cmp_eq_u32 vcc, -1, %s", v(TMP))
    bounded_retry(a, top)
    stamp(a, "wo%d probe ok" % (L + 1))
    def bulk(r):
        for s in range(16):
            if s % 4 == 0: r("s_add_u32 s61, s59, %d", 1024 * s)
            r("buffer_load_dwordx4 %s, %s, %s, s61 offen offset:%d sc1", ag(4 * s, 4), v(vL16), srd(S_WS), 1024 * (s % 4), tag=("o", s))
    bg = Stream(a, bulk)
    bg.q += rest.q; rest.q = []
    if after_bulk: bg.add(after_bulk)
    bg.play(CFG["wo_pre"])
    def hk(i):
        if i % CFG["wo_every"] == 0: bg.play(1)
    slots = []
    for s in [16, 17, 18, 19] + list(range(16)):
        for t5 in range(5):
            f = 5 * s + t5
            slots.append(dict(op=M16, acc=WAC + 4 * t5, n=4, rd=[(vWo1 if f < 64 else TMP + 11, 1024 * (f % 64))],
                              B=v(PR + 4 * (s - 16), 4) if s >= 16 else ag(4 * s, 4), vm=("o", s) if s < 16 else None))
    gemm(a, slots, 7, hook=hk, ring=84)
    bg.flush()
    a("v_cmp_u_f32 vcc, %s, %s", v(WAC + 16), v(WAC + 16))
    bounded_retry(a, top)
    stamp(a, "wo%d gemm" % (L + 1))
    for i in range(10): a("v_cvt_pk_bf16_f32 %s, %s, %s", v(D + i), v(WAC + 2 * i), v(WAC + 2 * i + 1))
    if L < 3:
        for i in range(10): a("v_mov_b32 %s, %s", v(RES + i), v(D + i))
    for q in (0, 4, 8):
        a("v_permlane16_swap_b32 %s, %s\nv_permlane16_swap_b32 %s, %s", v(D + q), v(D + q + 2), v(D + q + 1), v(D + q + 3))
    if L == 3:
        t = TMP; Ln = v(vLane)
        a("v_and_b32 %s, 15, %s\nv_mul_u32_u24 %s, 1280, %s\nv_lshrrev_b32 %s, 9, %s\nv_lshl_add_u32 %s, %s, 4, %s", v(t), Ln, v(t), v(t), v(t + 1), v(vXst), v(t), v(t + 1), v(t))
        a("s_mul_i32 s52, %s, 20480\ns_mul_i32 s53, %s, 160\ns_add_u32 s52, s52, s53", sU, sC)
        a("buffer_store_dwordx4 %s, %s, %s, s52 offen", v(D, 4), v(t), srd(S_OUT))
        a("buffer_store_dwordx4 %s, %s, %s, s52 offen offset:64", v(D + 4, 4), v(t), srd(S_OUT))
        a("s_mov_b32 exec_lo, 0xffff\ns_mov_b32 exec_hi, 0xffff")
        a("buffer_store_dwordx4 %s, %s, %s, s52 offen offset:128", v(D + 8, 4), v(t), srd(S_OUT))
        a("s_mov_b64 exec, -1")
        return
    x_store(a, L, v(D, 4), v(D + 4, 4), v(D + 8, 4), None)
    S, Q = TMP, TMP + 1
    a("v_mov_b32 %s, 0\nv_mov_b32 %s, 0", v(S), v(Q))
    for i in range(10): a("v_dot2c_f32_bf16 %s, %s, %s\nv_dot2c_f32_bf16 %s, %s, %s", v(S), v(RES + i), v(vONES), v(Q), v(RES + i), v(RES + i))
    for sw in ("v_permlane16_swap_b32", "v_permlane32_swap_b32"):
        a("v_mov_b32 %s, %s\nv_mov_b32 %s, %s", v(S + 2), v(S), v(S + 3), v(Q))
        a("%s %s, %s\n%s %s, %s", sw, v(S), v(S + 2), sw, v(Q), v(S + 3))
        a("v_pk_add_f32 %s, %s, %s", v(S, 2), v(S, 2), v(S + 2, 2))
    st_store(a, v(S, 2))
    stamp(a, "x%d pub" % (L + 2))
    return len(early)

def transition(a, L, lo=12):
    a("s_barrier")
    park_write(a, range(lo, 28), TMP + 8)
    q_base(a)
    if L < 3: park_base(a, (L + 1) % 2)

def cs_init(a, which, tiles):
    for k in tiles:
        for i in range(4): a("ds_read_b128 %s, %s offset:%d", v(AK + 16 * k + 4 * i, 4), v(vCs), CS[which] + 64 * k + 16 * i, tag=("ci", k))
def cs_mul(a, tiles):
    for k in tiles:
        a.wait(lg=("ci", k))
        scale_regs(a, [(AK + 16 * k, 16)], NMR)

def qkv_front(a, L):
    isA = L % 2 == 0; xi = L - 1; which = L % 2; t = TMP
    a("s_lshl_b32 s59, %s, 11\ns_add_u32 s59, s59, %d", sT, ST[xi])
    a("s_mul_i32 s60, %s, 40960\ns_add_u32 s60, s60, %d", sT, XB[xi])
    a("s_mov_b32 s99, 0")
    stamp(a, "q%d begin" % (L + 1))
    top = a.newlabel("L_qkv")
    a.label(top)
    for i in range(4): a("buffer_load_dwordx2 %s, %s, %s, s59 offen offset:%d sc1", v(t + 2 * i, 2), v(vStLd), srd(S_WS), 128 * i, tag="st")
    if L != 1: cs_init(a, which, (0, 1, 2, 3))
    a.wait(vm="st")
    a("v_pk_add_f32 %s, %s, %s\nv_pk_add_f32 %s, %s, %s\nv_pk_add_f32 %s, %s, %s", v(t, 2), v(t, 2), v(t + 2, 2), v(t + 4, 2), v(t + 4, 2), v(t + 6, 2), v(t, 2), v(t, 2), v(t + 4, 2))
    a("v_cmp_u_f32 vcc, %s, %s", v(t), v(t))
    bounded_retry(a, top)
    stamp(a, "q%d probe ok" % (L + 1))
    def bulk(r):
        for s in range(40):
            if s % 4 == 0: r("s_add_u32 s61, s60, %d", 1024 * s)
            r("buffer_load_dwordx4 %s, %s, %s, s61 offen offset:%d sc1", ag(4 * s, 4), v(vL16), srd(S_WS), 1024 * (s % 4), tag=("x", s))
        q_dma(r)
        r.label("@q")
        if L < 3:
            for i in range(4): r("v_mov_b32 %s, -1", v(XT + 16 + i))
            fills(r, [("h", 1), ("x", 1), ("kv", 1), ("o", 2)] if L == 1 else [("x", 2), ("o", 3)], XT + 16)
        r.label("@f")
        if L < 3: park_load(r, range(28))
    bg = Stream(a, bulk)
    bg.play(CFG["x_pre"] + (CFG["x_pre1"] if L == 1 else 0))
    def red(R, sws):
        for sw in sws:
            a("v_mov_b32 %s, %s\nv_mov_b32 %s, %s", v(R + 2), v(R), v(R + 3), v(R + 1))
            a("%s %s, %s\n%s %s, %s", sw, v(R), v(R + 2), sw, v(R + 1), v(R + 3))
            a("v_pk_add_f32 %s, %s, %s", v(R, 2), v(R, 2), v(R + 2, 2))
    red(t, ["v_permlane32_swap_b32"])
    stats_fin(a, t, t + 1, NMR, RSR)
    if L != 1: cs_mul(a, (0, 1, 2, 3))
    sk = a.newlabel("L_skb")
    a("s_waitcnt lgkmcnt(0)\ns_cmp_eq_u32 s99, 0\ns_cbranch_scc0 %s\ns_barrier\ns_mov_b32 s99, 1", sk)
    if L == 1:
        assert CS1[0] == 16
        cs_steps(a, 16, 24, CACC[0], v(CONE, 4), False, CRING, TMP + 4)
        cs_add(a, 1, v(CACC[0]), TMP + 4, put=True)
        a("s_waitcnt lgkmcnt(0)")
    a.label(sk)
    if L != 2: stamp(a, "p1 go")
    slots = []
    for s in range(40):
        for acc, win in ((AK, 0), (AV, 1), (AM, 2)):
            slots.append(dict(op=M32, acc=acc, n=16, rd=rf_kvm(s, win), B=ag(4 * s, 4), vm=("x", s), **({"c": "0"} if L == 1 and s == 0 else {})))
    def hook(i):
        s, k = divmod(i, 3)
        bg.play_vm(1 if (i < CFG["p1_fast"] or i % CFG["p1_ev"] == 1) else 0, 2)
    gemm(a, slots, 6, hook=hook, ringn=9)
    bg.upto("@f")
    a("v_cmp_u_f32 vcc, %s, %s", v(AM), v(AM))
    bounded_retry(a, top)
    stamp(a, "q%d pass1" % (L + 1))
    if isA: prep_records(a, RSR, 1)
    a.wait(vm="qd")
    a("s_waitcnt lgkmcnt(0)\ns_barrier")
    if L == 1:
        for k in range(3):
            for i in range(4): a("ds_read_b128 %s, %s offset:%d", v(CACC[k] + 4 * i, 4), v(vCs), CS[1] + 64 * k + 16 * i, tag=("cl", k))
        for k in range(3):
            a.wait(lg=("cl", k))
            for i in range(0, 16, 2):
                a("v_pk_fma_f32 %s, %s, %s, %s op_sel_hi:[1,0,1]", v(AK + 16 * k + i, 2), v(CACC[k] + i, 2), v(NMR, 2), v(AK + 16 * k + i, 2))
    return bg
CACC, CONE, CRING, CS1 = [120, 136, XT], XT + 16, [52, 56, 60, 152, 156, 160], [0]

def pass2(a, which, hook=None, zero=False):
    gemm(a, [dict(op=M32, acc=AQ, n=16, rd=rf_q(s), B=ag(4 * s, 4), **({"c": "0"} if zero and s == 0 else {})) for s in range(40)], 5, hook=hook, ringn=7)

def qkv_A(a, L):
    bg = qkv_front(a, L)
    wo_base(a, 0)
    sd = Stream(a, lambda r: write_records(r, 1)); bg.front(lambda r: wo_dma(r, WO1))
    sd.play(3)
    def hook(i):
        if i % 2 == 1 or i == 0: sd.play(1)
        if i == CFG["h_ld"]: halo_load(a, 1)
        elif i % 2 == 0 and i > 2 and not CFG["h_ld"] - 8 < i < CFG["h_ld"]: bg.play_vm(1, 0)
    pass2(a, 0, hook)
    sd.flush()
    stamp(a, "pass2")
    a.wait(vm="fill")
    a("s_waitcnt lgkmcnt(0)\ns_barrier")
    bg.front(lambda r: (wo_dma(r, WO2), r.label("@w")))
    attention(Mix(a, bg, CFG["att_every"]), RSR, L, bounded_retry)
    bg.upto("@w")
    return bg

PHL = SP + 8192; ZL = SP + 1024
def phi_dma(a):
    a("s_lshl_b32 s94, %s, 10\ns_mul_i32 s95, %s, 1600\ns_add_u32 s95, s95, s94\ns_add_u32 s94, s94, %d\ns_mov_b32 m0, s94", sW, sHP, PHL)
    a("buffer_load_dwordx4 %s, %s, s95 offen lds", v(vL16), srd(S_PHI), tag="phi")
    for i in range(4): a("v_mov_b32 %s, 0", v(TMP + i))
    a("v_add_u32 %s, %d, %s", v(TMP + 4), ZL, v(vL16))
    a("ds_write_b128 %s, %s", v(TMP + 4), v(TMP, 4))
def phi_frags(a):
    t = TMP; Ln = v(vLane)
    a("s_movk_i32 s57, 960\ns_movk_i32 s56, 160")
    a("v_bfe_u32 %s, %s, 2, 2\nv_mul_u32_u24 %s, 40, %s", v(t), Ln, v(t), v(t))
    a("v_bfe_u32 %s, %s, 4, 1\nv_bfe_u32 %s, %s, 1, 1\nv_lshl_add_u32 %s, %s, 1, %s", v(t + 1), Ln, v(t + 2), Ln, v(t + 1), v(t + 1), v(t + 2))
    a("v_lshl_add_u32 %s, %s, 3, %s\nv_add_u32 %s, %d, %s", v(t), v(t + 1), v(t), v(t), PHL, v(t))
    a("v_lshrrev_b32 %s, 5, %s\nv_and_b32 %s, 1, %s\nv_mov_b32 %s, %d", v(t + 2), Ln, v(t + 3), Ln, v(t + 8), ZL)
    a("v_mad_u32_u24 %s, %s, s57, %s", v(t + 4), v(t + 2), v(t))
    a("v_mad_u32_u24 %s, %s, s56, %s\nv_add_u32 %s, 640, %s", v(t + 5), v(t + 2), v(t), v(t + 5), v(t + 5))
    a("v_cmp_eq_u32 vcc, %s, %s", v(t + 2), v(t + 3))
    a("v_cndmask_b32 %s, %s, %s, vcc\nv_cndmask_b32 %s, %s, %s, vcc", v(t + 4), v(t + 8), v(t + 4), v(t + 5), v(t + 8), v(t + 5))
    a("v_cmp_eq_u32 vcc, 0, %s", v(t + 1))
    a("v_cndmask_b32 %s, %s, %s, vcc\nv_cndmask_b32 %s, %s, %s, vcc", v(t + 6), v(t + 8), v(t + 4), v(t + 7), v(t + 8), v(t + 5))
    for ft in range(2):
        for k in range(2):
            for u in range(2): a("ds_read_b64_tr_b16 %s, %s offset:%d", v(PHIF + 12 * ft + 4 * k + 2 * u, 2), v(t + 4 + 2 * ft), 320 * k + 160 * u + 32 * ft)
        a("ds_read_b64_tr_b16 %s, %s offset:%d", v(PHIF + 12 * ft + 8, 2), v(t + 5 + 2 * ft), 32 * ft)
        a("v_mov_b32 %s, 0\nv_mov_b32 %s, 0", v(PHIF + 12 * ft + 10), v(PHIF + 12 * ft + 11))
    a("s_waitcnt lgkmcnt(0)")

def feature_map(a, main, mix, order, EP=RING, EN=40, D0=XT, D1=24, out=RING, packed=False):
    t = TMP
    if not packed: pack20(a, main, main, mix)
    a("v_mov_b32 %s, 0\nv_mov_b32 %s, 0", v(main + 10), v(main + 11))
    slots = [dict(op=M32, acc=(D0, D1)[ft], n=16, A=v(PHIF + 12 * ft + 4 * k, 4), B=v(main + 4 * k, 4), **({"c": "0"} if k == 0 else {})) for k in range(3) for ft in range(2)]
    gemm(a, slots, 0)
    P = [D0 + i for i in range(16)] + [D1 + i for i in range(4)]
    for op, r in (("max", t), ("min", t + 2)):
        a("v_%s3_f32 %s, %s, %s, %s", op, v(r), v(P[0]), v(P[1]), v(P[2]))
        for i in range(3, 19, 2): a("v_%s3_f32 %s, %s, %s, %s", op, v(r), v(r), v(P[i]), v(P[i + 1]))
        a("v_%s_f32 %s, %s, %s", op, v(r), v(r), v(P[19]))
    a("s_mov_b32 s56, 0x%08x\ns_mov_b32 s57, 0x%08x" % (f32bits(math.log2(math.e)), f32bits(-math.log2(math.e))))
    a("v_mul_f32 %s, s57, %s\nv_mul_f32 %s, s56, %s\nv_mov_b32 %s, s56\nv_mov_b32 %s, s57", v(t), v(t), v(t + 2), v(t + 2), v(t + 4), v(t + 6))
    for E, c, m in ((EP, t + 4, t), (EN, t + 6, t + 2)):
        for i in range(0, 20, 2): a("v_pk_fma_f32 %s, %s, %s, %s op_sel_hi:[1,0,0]", v(E + i, 2), v(P[i], 2), v(c, 2), v(m, 2))
        for i in range(20): a("v_exp_f32 %s, %s", v(E + i), v(E + i))
    for E, s in ((EP, t), (EN, t + 2)):
        a("v_pk_add_f32 %s, %s, %s", v(s, 2), v(E, 2), v(E + 2, 2))
        for i in range(4, 20, 2): a("v_pk_add_f32 %s, %s, %s", v(s, 2), v(s, 2), v(E + i, 2))
        a("v_add_f32 %s, %s, %s\nv_rcp_f32 %s, %s", v(s), v(s), v(s + 1), v(s), v(s))
    scale_regs(a, [(EP, 20)], t); scale_regs(a, [(EN, 20)], t + 2)
    F = [EP + i for i in range(20)] + [EN + i for i in range(20)]
    for i in range(20): a("v_cvt_pk_bf16_f32 %s, %s, %s", v(out + i), v(F[order[2 * i]]), v(F[order[2 * i + 1]]))

def qkv_B(a, L):
    t = TMP; Ln = v(vLane); ki = L // 2
    bg = qkv_front(a, L)
    wo_base(a, 1)
    bg.front(lambda r: (wo_dma(r, WO1), r.label('@w')))
    m = Mix(a, bg, 16)
    scale_regs(m, [(AK, 16), (AM + 4, 8), (AV, 16)], RSR)
    pack20(m, AV, AV, AM + 8)
    a("v_mov_b32 %s, 0x3f80\nv_mov_b32 %s, 0", v(AV + 10), v(AV + 11))
    a("v_lshrrev_b32 %s, 5, %s\nv_lshlrev_b32 %s, 7, %s\nv_and_b32 %s, 31, %s\nv_add_u32 %s, %s, %s", v(t + 8), Ln, v(t + 8), v(t + 8), v(t + 9), Ln, v(t + 8), v(t + 8), v(t + 9))
    a("s_lshl_b32 s52, %s, 5\nv_add_u32 %s, s52, %s\nv_mul_u32_u24 %s, 160, %s", sW, v(t + 8), v(t + 8), v(t + 8), v(t + 8))
    for i in range(3): a("ds_write_b128 %s, %s offset:%d", v(t + 8), v(AV + 4 * i, 4), PHIR + 80 + 16 * i)
    def p2(r, hook):
        slots = []
        if L == 1:
            for i in range(4): r("v_mov_b32 %s, 0x3f803f80", v(60 + i))
            r("s_mul_i32 s56, %s, 10240\nv_add_u32 %s, s56, %s", sW, v(XT + 16), v(vWq))
        for s in range(40):
            slots.append(dict(op=M32, acc=AQ, n=16, rd=rf_q(s), B=ag(4 * s, 4), **({"c": "0"} if L == 1 and s == 0 else {})))
            if L == 1 and s % 4 == 3: slots.append(dict(op=M32, acc=AV, n=16, rd=[(XT + 16, (s // 4) * 1024)], B=v(60, 4), swap=True, **({"c": "0"} if s == 3 else {})))
        gemm(r, slots, 5, hook=hook, ringn=7)
    feature_map(m, AK, AM + 4, list(range(40)))
    for i in range(5): a("ds_write_b128 %s, %s offset:%d", v(t + 8), v(RING + 4 * i, 4), PHIR + 16 * i)
    a("s_lshr_b32 s52, %s, 1\ns_mul_i32 s52, s52, 20480\ns_sub_u32 s52, s52, %d\ns_and_b32 s53, %s, 1\ns_lshl_b32 s53, s53, 5", sW, WOI, sW)
    a("v_add_u32 %s, s52, %s\nv_add_u32 %s, s53, %s", v(t + 2), v(vWo0), v(t + 3), v(t + 2))
    a.wait(vm="fill")
    a("s_waitcnt lgkmcnt(0)\ns_barrier")
    stamp(a, "phi k")
    VB, KA = 24, 40
    for ks in range(4):
        for u in (0, 1): a("ds_read_b64_tr_b16 %s, %s offset:%d", v(VB + 4 * ks + 2 * u, 2), v(t + 3), ks * 5120 + u * 2560 + 80, tag="vb")
    slots = [dict(op=M16, acc=KA + 4 * ft, n=4, rd=[(t + 2, ks * 5120 + u * 2560 + 32 * ft) for u in (0, 1)], B=v(VB + 4 * ks, 4), **({"c": "0"} if ks == 0 else {})) for ks in range(4) for ft in range(3)]
    gemm(a, slots, 3, ringn=7)
    for i in range(6): a("v_cvt_pk_bf16_f32 %s, %s, %s", v(KA + 12 + i), v(KA + 2 * i), v(KA + 2 * i + 1))
    a("v_permlane16_swap_b32 %s, %s\nv_permlane16_swap_b32 %s, %s", v(KA + 16), v(KA + 18), v(KA + 17), v(KA + 19))
    kv_store(a, ki, v(KA + 12, 4), v(KA + 16, 4))
    stamp(a, "kv pub")
    PB, SA, C0 = XT + 24, XT + 16, XT + 26
    a("s_lshl_b32 s59, %s, 16\ns_lshl_b32 s52, %s, 10\ns_add_u32 s59, s59, s52\ns_add_u32 s59, s59, %d", sHP, sW, KVB[ki])
    a("v_lshlrev_b32 %s, 12, %s\nv_mov_b32 %s, 0x3f80\nv_mov_b32 %s, 1.0", v(PB), Ln, v(C0), v(C0 + 1))
    a("v_cmp_gt_u32 vcc, 16, %s\nv_mov_b32 %s, 0x80000000\nv_cndmask_b32 %s, %s, %s, vcc", Ln, v(PB + 1), v(PB), v(PB + 1), v(PB))
    a("s_lshl_b32 s52, %s, 6\nv_add_u32 %s, s52, %s\nv_cmp_gt_u32 vcc, 240, %s\nv_cndmask_b32 %s, %s, %s, vcc", sW, v(t + 10), Ln, v(t + 10), v(t + 11), v(PB + 1), v(vL16))
    GO = t + 11
    probe = lambda r: r("buffer_load_dword %s, %s, %s, s59 offen offset:752 sc1", v(PB + 1), v(PB), srd(S_WS), tag="kp")
    KP = CFG["kv_probe"] + (10 if L == 1 else 0)
    def hook(i):
        if i % 2 == 0 and i < KP - 8: bg.play_vm(1, 2)
        if i == KP: probe(a)
    p2(a, hook)
    bg.upto('@w')
    if L == 1: cs_add(a, 1, {3: v(AV)}, TMP)
    stamp(a, "pass2")
    a("s_waitcnt lgkmcnt(0)\ns_barrier")
    if L == 1:
        for i in range(4): a("ds_read_b128 %s, %s offset:%d", v(24 + 4 * i, 4), v(vCs), CS[1] + 192 + 16 * i, tag="cq")
        a.wait(lg="cq")
        for i in range(0, 16, 2): a("v_pk_fma_f32 %s, %s, %s, %s op_sel_hi:[1,0,1]", v(AQ + i, 2), v(24 + i, 2), v(NMR, 2), v(AQ + i, 2))
    scale_regs(a, [(AQ, 16), (AM, 4)], RSR)
    pack20(a, AQ, AQ, AM)
    lp = a.newlabel("L_kvp"); ok = a.newlabel("L_kvok")
    a.wait(vm="kp")
    a("v_cmp_eq_u32 vcc, -1, %s\ns_cbranch_vccz %s", v(PB + 1), ok)
    vm, lg = list(a.vm), list(a.lg)
    a.label(lp)
    probe(a); a("s_waitcnt vmcnt(0)\nv_cmp_eq_u32 vcc, -1, %s", v(PB + 1))
    bounded_retry(a, lp, 1)
    a.vm, a.lg = vm, lg
    a.label(ok)
    stamp(a, "kv probe")
    G = [AK + 4 * i for i in range(8)] + [148, 152, 156, 160, 60, AM, AM + 4, AQ + 12]
    def ld(r, p):
        r("s_add_u32 s95, s59, %d", 4096 * p)
        r("buffer_load_dwordx4 %s, %s, %s, s95 offen sc1", v(G[p], 4), v(GO), srd(S_WS), tag=("kv", p))
    def gsum(r):
        for i in range(8): r("v_mov_b32 %s, 0", v(SA + i))
        for p in range(16):
            r.wait(vm=("kv", p))
            for i in range(4): r("v_dot2c_f32_bf16 %s, %s, %s\nv_dot2c_f32_bf16 %s, %s, %s", v(SA + 2 * i), v(G[p] + i), v(C0), v(SA + 2 * i + 1), v(G[p] + i), v(C0 + 1))
    def gather(r):
        for p in range(16): ld(r, p)
        gsum(r)
    gs = Stream(a, lambda r: ([ld(r, p) for p in range(16)], r.label('@g'), wo_dma(r, WO2), r.label('@w')))
    gs.q += bg.q; bg = gs
    gs.play(CFG["g_pre"])
    m = Mix(a, gs, CFG["g_every"])
    order = []
    for g in range(4): order += [4 * g + i for i in range(4)] + [16 + 4 * g + i for i in range(4)]
    order += list(range(32, 40))
    FQ = AQ - 8
    feature_map(m, AQ, AM, order, out=FQ, packed=True)
    stamp(a, "phi q")
    gs.upto('@g')
    gsum(Mix(a, gs, CFG["gs_every"]))
    def check(lab):
        a("v_mul_u32_u24 %s, 2731, %s\nv_lshrrev_b32 %s, 16, %s", v(t + 3), v(t + 10), v(t + 3), v(t + 3))
        a("v_mul_u32_u24 %s, 24, %s\nv_sub_u32 %s, %s, %s", v(t + 3), v(t + 3), v(t + 3), v(t + 10), v(t + 3))
        a("v_add_f32 %s, %s, %s\nv_add_f32 %s, %s, %s\nv_add_f32 %s, %s, %s", v(t + 4), v(SA), v(SA + 2), v(t + 5), v(SA + 4), v(SA + 6), v(t + 4), v(t + 4), v(t + 5))
        a("v_cmp_gt_u32 s[90:91], 21, %s\nv_cmp_u_f32 vcc, %s, %s\ns_and_b64 vcc, vcc, s[90:91]", v(t + 3), v(t + 4), v(t + 4))
    check(None)
    ok = a.newlabel("L_gok"); lp = a.newlabel("L_glp")
    a("s_cbranch_vccz %s", ok)
    vm, lg = list(a.vm), list(a.lg)
    a.label(lp)
    a("s_waitcnt vmcnt(0)")
    gather(a); check(None)
    bounded_retry(a, lp, 1)
    a.vm, a.lg = vm, lg
    a.label(ok)
    stamp(a, "kv gathered")
    for i in range(4): a("v_cvt_pk_bf16_f32 %s, %s, %s", v(SA + 8 + i), v(SA + 2 * i), v(SA + 2 * i + 1))
    a("v_lshlrev_b32 %s, 4, %s\nv_add_u32 %s, %d, %s", v(t + 2), v(t + 10), v(t + 2), KVT, v(t + 2))
    a("ds_write_b128 %s, %s", v(t + 2), v(SA + 8, 4))
    AF = [24, 32, 40, 48, RING]
    m = Mix(a, bg, CFG["af_every"])
    for k in range(5):
        for i in range(8): m("v_mov_b32 %s, 0", v(AF[k] + i))
    a("v_bfe_u32 %s, %s, 3, 2\nv_and_b32 %s, 3, %s\nv_lshl_add_u32 %s, %s, 2, %s\nv_lshlrev_b32 %s, 4, %s", v(t), Ln, v(t + 1), Ln, v(t), v(t), v(t + 1), v(t), v(t))
    a("v_lshrrev_b32 %s, 5, %s\nv_mul_u32_u24 %s, 1920, %s\nv_add3_u32 %s, %s, %s, %s", v(t + 1), Ln, v(t + 1), v(t + 1), v(t), v(t), v(t + 1), v(t + 1))
    a("v_sub_u32 %s, %s, %s\nv_add_u32 %s, %d, %s", v(t), v(t), v(t + 1), v(t), KVT, v(t))
    a("s_waitcnt lgkmcnt(0)\ns_barrier")
    a("s_mov_b32 exec_lo, 0x0f0f0f0f\ns_mov_b32 exec_hi, 0xf0f0f0f0")
    for k in range(5):
        for tl in range(2): a("ds_read_b128 %s, %s offset:%d", v(AF[k] + 4 * tl, 4), v(t), 384 * k + 256 * tl, tag=("af", k))
    a("s_mov_b64 exec, -1")
    N1 = AK
    slots = [dict(op=M32, acc=(AV, N1)[tl], n=16, A=v(AF[k] + 4 * tl, 4), B=v(FQ + 4 * k, 4), lg=("af", k), **({"c": "0"} if k == 0 else {})) for k in range(5) for tl in range(2)]
    gemm(a, slots, 0)
    a("v_add_f32 %s, 0x%08x, %s\nv_rcp_f32 %s, %s" % (v(t), f32bits(1e-6), v(N1 + 4), v(t), v(t)))
    scale_regs(a, [(AV, 16), (N1, 4)], t)
    publish_o(a, L, N1)
    bg.upto('@w')
    return bg
```

```python
from gen1 import *
import re
PARKV = 240
NMR, RSR = 210, 0
XT = 212
M32 = "v_mfma_f32_32x32x16_bf16"
M16 = "v_mfma_f32_16x16x32_bf16"
_uid = [0]
def uid():
    _uid[0] += 1
    return _uid[0]

def gemm(a, slots, depth, hook=None, ring=RING, ringn=9):
    u = uid()
    rl = ring if isinstance(ring, list) else [ring + 4 * i for i in range(ringn)]
    ringn = len(rl)
    rs = [i for i, s in enumerate(slots) if "rd" in s]
    pos = {i: k for k, i in enumerate(rs)}
    def issue(k):
        if k >= len(rs): return
        s = slots[rs[k]]; r = rl[k % ringn]
        if len(s["rd"]) == 1:
            a("ds_read_b128 %s, %s offset:%d", v(r, 4), v(s["rd"][0][0]), s["rd"][0][1], tag=("g", u, k))
            return
        for h, (ad, off) in enumerate(s["rd"]):
            a("ds_read_b64_tr_b16 %s, %s offset:%d", v(r + 2 * h, 2), v(ad), off, tag=("g", u, k))
    for k in range(depth): issue(k)
    for i, s in enumerate(slots):
        if s.get("pre"): s["pre"]()
        if "rd" in s:
            k = pos[i]; A = v(rl[k % ringn], 4)
            a.wait(vm=s.get("vm"), lg=("g", u, k))
        else:
            A = s["A"]; a.wait(vm=s.get("vm"), lg=s.get("lg"))
        D = s["acc"] if isinstance(s["acc"], str) else v(s["acc"], s["n"])
        if s.get("swap"): a("%s %s, %s, %s, %s", s["op"], D, s["B"], A, s.get("c", D))
        else: a("%s %s, %s, %s, %s", s["op"], D, A, s["B"], s.get("c", D))
        if "rd" in s: issue(pos[i] + depth)
        if hook: hook(i)

def rd_kvm(s, win):
    hi = s >= 20; s2 = s - 20 * hi
    ad = (vWm1 if hi else vWm0) if win == 128 else (vWkv1 if hi else vWkv0)
    return [(ad, s2 * 2816 + u * 176 + win) for u in (0, 1)]
def rf_kvm(s, k):
    hi = s >= 20
    return [(((vWm1 if hi else vWm0) if k == 2 else (vWkv1 if hi else vWkv0)), (s - 20 * hi) * 2816 + 1024 * k)]
def rf_q(s): return [(vWq, s * 1024)]
def frag_regs(a):
    t = TMP; L = v(vLane)
    a("v_mov_b32 %s, %s\nv_add_u32 %s, %d, %s\nv_add_u32 %s, %d, %s", v(vWkv0), v(vL16), v(vWkv1), 20 * 2816, v(vL16), v(vWq), QI, v(vL16))
    a("v_and_b32 %s, 31, %s\nv_min_u32 %s, 23, %s\nv_lshrrev_b32 %s, 5, %s\nv_mul_u32_u24 %s, 384, %s\nv_lshl_add_u32 %s, %s, 4, %s\nv_add_u32 %s, %d, %s", v(t), L, v(t), v(t), v(t + 1), L, v(t + 1), v(t + 1), v(vWm0), v(t), v(t + 1), v(vWm1), 20 * 2816, v(vWm0))
def rd_q(s): return [(vWq, s * 1024 + u * 256) for u in (0, 1)]

def re_sg(x, sg):
    for i in range(4): x = re.sub(r"\bs%d\b" % (52 + i), "s#%d" % i, x)
    for i in range(4): x = x.replace("s#%d" % i, "s%d" % sg[i])
    return x
def fills(a, which, F0=XT):
    F = v(F0, 4)
    _a = a
    def a(x, *ar, **k): _a(x % ar if ar else x, tag="fill")
    for kind, i in which:
        if kind == "o": o_store(a, i, F, F, F, (70, 71, 72, 73))
        elif kind == "x": x_store(a, i, F, F, F, v(F0, 2), (70, 71, 72, 73))
        elif kind == "kv": kv_store(a, i, F, F, (70, 71, 72, 73), TMP + 8)
        elif kind == "h": halo_store(_a, i, [F] * 8, (70, 71, 72, 73), TMP + 8)

def o_store(a, i, d0, d1, d2, sg=(52, 53, 54, 55)):
    _a = a
    def a(x, *ar, **k): _a(re_sg(x % ar if ar else x, sg), **k)
    a("s_mul_i32 s52, %s, 40960\ns_lshl_b32 s53, %s, 10\ns_add_u32 s52, s52, %d\ns_add_u32 s53, s53, s52", sT, sHP, OB[i])
    a("s_lshl_b32 s54, %s, 8\ns_add_u32 s54, s54, s52\ns_add_u32 s54, s54, 16384", sHP)
    a("buffer_store_dwordx4 %s, %s, %s, s53 offen sc1", d0, v(vOst), srd(S_WS))
    a("buffer_store_dwordx4 %s, %s, %s, s53 offen offset:256 sc1", d1, v(vOst), srd(S_WS))
    a("s_mov_b64 exec, 0xffffffff")
    a("buffer_store_dwordx4 %s, %s, %s, s54 offen sc1", d2, v(vOst), srd(S_WS))
    a("s_mov_b64 exec, -1")

def x_store(a, i, d0, d1, d2, dst, sg=(52, 53, 54, 55)):
    _a = a
    def a(x, *ar, **k): _a(re_sg(x % ar if ar else x, sg), **k)
    a("s_lshr_b32 s52, %s, 1\ns_mul_i32 s52, s52, 40960\ns_mul_i32 s53, %s, 5120\ns_add_u32 s52, s52, s53\ns_add_u32 s52, s52, %d\ns_add_u32 s53, s52, 4096", sU, sC, XB[i])
    a("s_lshl_b32 s54, %s, 10\ns_lshl_b32 s55, %s, 7\ns_add_u32 s54, s54, s55\ns_add_u32 s54, s54, %d", sU, sC, ST[i])
    a("buffer_store_dwordx4 %s, %s, %s, s52 offen sc1", d0, v(vXst), srd(S_WS))
    a("buffer_store_dwordx4 %s, %s, %s, s52 offen offset:2048 sc1", d1, v(vXst), srd(S_WS))
    a("s_mov_b32 exec_lo, 0xffff\ns_mov_b32 exec_hi, 0xffff")
    a("buffer_store_dwordx4 %s, %s, %s, s53 offen sc1", d2, v(vXst), srd(S_WS))
    if dst is not None: st_store(a, dst)
    else: a("s_mov_b64 exec, -1")
def st_store(a, dst):
    a("s_mov_b64 exec, 0xffff")
    a("buffer_store_dwordx2 %s, %s, %s, s54 offen sc1", dst, v(vStSt), srd(S_WS))
    a("s_mov_b64 exec, -1")

def kv_store(a, i, d0, d1, sg=(52, 53, 54, 55), t=TMP):
    _a = a
    def a(x, *ar, **k): _a(re_sg(x % ar if ar else x, sg), **k)
    a("v_lshrrev_b32 %s, 4, %s\nv_mul_u32_u24 %s, 384, %s\nv_and_b32 %s, 15, %s\nv_lshl_add_u32 %s, %s, 4, %s", v(t), v(vLane), v(t), v(t), v(t + 1), v(vLane), v(t), v(t + 1), v(t))
    a("s_lshl_b32 s52, %s, 4\ns_add_u32 s52, s52, %s\ns_lshl_b32 s52, s52, 12\ns_add_u32 s52, s52, %d", sHP, sR, KVB[i])
    a("s_lshr_b32 s53, %s, 1\ns_mul_i32 s53, s53, 1920\ns_add_u32 s52, s52, s53\ns_and_b32 s53, %s, 1\ns_lshl_b32 s54, s53, 8\ns_add_u32 s52, s52, s54", sW, sW)
    a("s_cmp_eq_u32 s53, 0\ns_cselect_b32 s54, -1, 0x00ff00ff\ns_and_b32 s55, s54, 0xffff")
    a("s_mov_b32 exec_lo, s54\ns_mov_b32 exec_hi, s54")
    a("buffer_store_dwordx4 %s, %s, %s, s52 offen sc1", d0, v(t), srd(S_WS))
    a("s_mov_b32 exec_lo, s55\ns_mov_b32 exec_hi, 0")
    a("buffer_store_dwordx4 %s, %s, %s, s52 offen offset:1536 sc1", d1, v(t), srd(S_WS))
    a("s_mov_b64 exec, -1")

def halo_store(a, i, d, sg=(52, 53, 54, 55), t=TMP):
    _a = a
    def a(x, *ar, **k): _a(re_sg(x % ar if ar else x, sg), tag="nocount")
    a("v_lshrrev_b32 %s, 5, %s\nv_lshlrev_b32 %s, 1, %s\nv_lshl_add_u32 %s, %s, 8, %s", v(t), v(vLane), v(t + 1), v(vStSt), v(t), v(t), v(t + 1))
    a("s_lshl_b32 s52, %s, 4\ns_add_u32 s52, s52, %s\ns_lshl_b32 s52, s52, 12\ns_add_u32 s52, s52, %d", sR, sHP, HB[i])
    a("s_cmp_eq_u32 %s, 3\ns_cselect_b32 s54, 0xffff0000, 0\ns_mov_b32 exec_lo, s54\ns_mov_b32 exec_hi, s54", sW)
    lb = _a.newlabel("L_hs")
    a("s_cbranch_scc0 %s", lb)
    for k in range(8): a("buffer_store_dwordx4 %s, %s, %s, s52 offen offset:%d sc1", d[k], v(t), srd(S_WS), 512 * k)
    _a.label(lb)
    a("s_mov_b64 exec, -1")
HLD = 24
def halo_load(a, i):
    a("s_lshl_b32 s94, %s, 4\ns_add_u32 s94, s94, %s\ns_lshl_b32 s94, s94, 12\ns_add_u32 s94, s94, %d", sR, sHP, HB[i] - 65536)
    for k in range(4): a("buffer_load_dwordx4 %s, %s, %s, s94 offen offset:%d sc1", v(HLD + 4 * k, 4), v(vHx), srd(S_WS), 1024 * k, tag="hl")
def halo_consume(a, i, retry, redo):
    t = HLD + 16
    sk, chk, lp = a.newlabel("L_hk"), a.newlabel("L_hc"), a.newlabel("L_hl")
    a("s_cmp_lg_u32 %s, 0\ns_cbranch_scc1 %s", sW, sk)
    vm, lg = list(a.vm), list(a.lg)
    a.wait(vm="hl")
    a("s_branch %s", chk)
    a.label(lp)
    halo_load(a, i)
    a("s_waitcnt vmcnt(0)")
    a.label(chk)
    a("v_max3_u32 %s, %s, %s, %s", v(t), v(HLD), v(HLD + 1), v(HLD + 2))
    for k in range(3, 15, 2): a("v_max3_u32 %s, %s, %s, %s", v(t), v(t), v(HLD + k), v(HLD + k + 1))
    a("v_max_u32 %s, %s, %s\nv_cmp_eq_u32 vcc, -1, %s", v(t), v(t), v(HLD + 15), v(t))
    retry(a, lp, 1)
    for k in range(4): a("ds_write_b128 %s, %s", v(vHD[k]), v(HLD + 4 * k, 4))
    a("s_waitcnt lgkmcnt(0)")
    redo()
    a("s_waitcnt lgkmcnt(0)")
    a.vm, a.lg = vm, lg
    a.label(sk)

def arrive(a, base):
    t = TMP
    if base is None: a("s_lshl_b32 s56, %s, 3", sHP)
    else: a("s_and_b32 s56, s2, 3\ns_lshl_b32 s56, s56, 5\ns_add_u32 s56, s56, %d", base)
    a("s_cmp_eq_u32 %s, 0\ns_cselect_b32 s57, 0, 0x80000000\ns_or_b32 s56, s56, s57", sW)
    a("v_mov_b32 %s, s56\nv_mov_b32 %s, 1", v(t + 10), v(t + 11))
    a("s_mov_b64 exec, 1")
    a("buffer_atomic_add %s, %s, %s, 0 offen sc1", v(t + 11), v(t + 10), srd(S_DBG))
    a("s_mov_b64 exec, -1")

def init_probe(r, base, ta=TMP + 8):
    r("v_lshlrev_b32 %s, 5, %s\ns_lshl_b32 s94, %s, 12\nv_add_u32 %s, s94, %s\ns_mov_b64 exec, 15", v(ta), v(vLane), sW, v(ta), v(ta))
    r("buffer_load_dword %s, %s, %s, 0 offen offset:%d\ns_mov_b64 exec, -1", v(XT + 24), v(ta), srd(S_DBG), base, tag="ip")
L1CFG = dict(aq=1, ipd=20, ph=(0, 2, 4, 6), rot=3, every=2, la=0, pre=4, sld=5, sst=8, st=(), hld=44, gates={'0': [3], '3': [6], '6': [8], '7': [9, 'early']})
PK = list(range(176, 187)); PQ, PX = 187, 188
PKS = {'pk': PK, 'pq': PQ}
def raw_dma(r, n, srdw, tag, dst=None):
    r("s_add_u32 s95, s62, %d", (n // 11) * 256 * 3840)
    if dst is None:
        r("s_lshl_b32 s94, %s, 10\ns_add_u32 s94, s94, %d", sW, 4096 * n)
        if n == 27: r("s_cmp_lt_u32 %s, 2\ns_cselect_b32 s94, s94, 0x30000", sW)
        r("s_mov_b32 m0, s94")
        r("buffer_load_dwordx4 %s, %s, s95 offen lds", v(PKS['pk'][n % 11]), srd(srdw), tag=tag)
    else:
        r("buffer_load_dwordx4 %s, %s, %s, s95 offen", dst, v(PKS['pk'][n % 11]), srd(srdw), tag=tag)
def raw_q(r, p, srdw, tag):
    r("s_lshl_b32 s94, %s, 10\ns_add_u32 s94, s94, %d\ns_mov_b32 m0, s94", sW, QI + 4096 * p)
    r("s_mul_i32 s95, %s, %d\ns_add_u32 s95, s95, s62\ns_add_u32 s95, s95, %d", sW, 16 * 3840, p * 64 * 3840)
    r("buffer_load_dwordx4 %s, %s, s95 offen lds", v(PKS['pq']), srd(srdw), tag=tag)

def l1_startup(a, retry):
    WS_, WD_ = 59, 63
    XR = [224, 232, 240, 248]
    SA_, QA_, SB_, QB_ = 189, 190, 191, XT + 7
    t = TMP; L = v(vLane)
    RPS, RPD, RTA, RDAT = 56, 57, 58, [192, 196, 44]
    def rp_pat(r):
        A_, B_, C_ = v(t + 4), v(t + 5), v(t + 6)
        r("s_add_u32 s56, %s, 1\ns_and_b32 s56, s56, 3\ns_mul_i32 s56, s56, 1280\nv_add_u32 %s, s56, %s", sW, v(RPS), v(PQ))
        r("v_and_b32 %s, 3, %s\nv_min_u32 %s, 2, %s\nv_mul_u32_u24 %s, 1280, %s\nv_lshrrev_b32 %s, 2, %s\nv_mul_u32_u24 %s, 3840, %s\nv_add3_u32 %s, %s, %s, 32", A_, L, A_, A_, A_, A_, B_, L, B_, B_, A_, A_, B_)
        r("s_cmp_eq_u32 %s, 2\ns_cselect_b64 vcc, -1, 0\nv_cndmask_b32 %s, %s, %s, vcc", sW, v(RPS), v(RPS), A_)
        r("v_sub_u32 %s, %s, %s\nv_add_u32 %s, %s, %s\nv_subrev_u32 %s, %d, %s", A_, v(SW), v(vL16), v(RTA), v(vWq), A_, v(RTA), QI, v(RTA))
        r("v_bfe_u32 %s, %s, 4, 1\nv_bfe_u32 %s, %s, 1, 1\nv_lshl_add_u32 %s, %s, 1, %s\nv_and_b32 %s, 1, %s\nv_mul_u32_u24 %s, 3, %s\nv_sub_u32 %s, %s, %s\nv_lshlrev_b32 %s, 3, %s\nv_add_u32 %s, %s, %s", A_, L, B_, L, A_, A_, B_, B_, L, B_, B_, A_, A_, B_, A_, A_, A_, A_, v(RTA))
        r("s_cmp_eq_u32 %s, 2\ns_cselect_b64 vcc, -1, 0\nv_cndmask_b32 %s, %s, %s, vcc", sW, v(RTA), v(RTA), A_)
        r("v_lshrrev_b32 %s, 5, %s\nv_lshlrev_b32 %s, 7, %s\nv_sub_u32 %s, %s, %s\nv_and_b32 %s, 31, %s\nv_mov_b32 %s, 0x80000000", A_, L, A_, A_, A_, v(vL16), A_, B_, L, C_)
        r("v_cmp_gt_u32 vcc, 24, %s\nv_cndmask_b32 %s, %s, %s, vcc", B_, A_, C_, A_)
        r("s_cmp_eq_u32 %s, 2\ns_cselect_b64 vcc, -1, 0\nv_cndmask_b32 %s, %s, %s, vcc", sW, v(RPD), v(vL16), A_)
    def rp_step(r, i):
        if i < 2: r("s_add_u32 s95, %s, %d", sR, 16 * i)
        else: r("s_cmp_lt_u32 %s, 8\ns_cselect_b32 s95, 32, 0\ns_add_u32 s95, s95, %s", sR, sR)
    def rp_load(r, srdw, tag):
        for i in range(3):
            rp_step(r, i)
            r("s_mul_i32 s95, s95, %d\ns_add_u32 s95, s95, s62", 16 * 3840)
            r("buffer_load_dwordx4 %s, %s, %s, s95 offen", v(RDAT[i], 4), v(RPS), srd(srdw), tag=tag)
    def rp_tr(r, tagw):
        r.wait(vm=tagw)
        r("s_mov_b32 exec_hi, -1")
        for i in range(3):
            r("ds_write_b128 %s, %s", v(SW), v(RDAT[i], 4))
            for u in range(2): r("ds_read_b64_tr_b16 %s, %s offset:%d", v(RDAT[i] + 2 * u, 2), v(RTA), 256 * u, tag="wt")
        r("s_mov_b64 exec, -1")
    def rp_store(r, which, tag):
        r.wait(lg="wt")
        for i in range(3):
            rp_step(r, i)
            r("s_cmp_eq_u32 %s, 3\ns_movk_i32 s94, 2816\ns_cselect_b32 s94, 1024, s94\ns_mul_i32 s95, s95, s94\ns_cselect_b32 s94, %d, s97\ns_add_u32 s95, s95, s94", sW, QI)
            r("s_mul_i32 s94, %s, 153600\ns_add_u32 s94, s94, s95\ns_add_u32 s94, s94, %d", sHP, PW[which])
            r("buffer_store_dwordx4 %s, %s, %s, s94 offen sc1", v(RDAT[i], 4), v(RPD), srd(S_WS), tag=tag)
    a("s_movk_i32 s61, 1280")
    a("v_lshrrev_b32 %s, 2, %s\nv_mul_u32_u24 %s, 1280, %s", v(t), L, v(t), v(t))
    a("v_lshrrev_b32 %s, 4, %s\nv_xor_b32 %s, %s, %s\nv_and_b32 %s, 3, %s", v(t + 1), L, v(t + 1), v(t + 1), L, v(t + 1), v(t + 1))
    a("v_lshl_add_u32 %s, %s, 4, %s", v(PX), v(t + 1), v(t))
    a("s_mul_i32 s86, %s, 40960\ns_add_u32 s87, s86, 20480\ns_mul_i32 s63, %s, 160\ns_mul_i32 s62, %s, 80\ns_lshl_b32 s97, %s, 10", sT, sC, sHP, sW)
    stamp(a, "start")
    a("s_and_b32 s96, %s, 3\ns_mul_i32 s96, s96, 3\ns_add_u32 s96, s96, %s", sR, sC)
    if not L1CFG["rot"]: a("s_mov_b32 s96, 0")
    if L1CFG["rot"] == 2: a("s_sub_u32 s96, s96, %s", sC)
    if L1CFG["rot"] == 3: a("s_lshr_b32 s91, %s, 1\ns_sub_u32 s96, s96, s91", sC)
    if L1CFG["rot"] == 4: a("s_mov_b32 s96, %s", sC)
    def ptab(p): a("s_add_u32 s%d, s96, %d\ns_cmp_ge_u32 s%d, 10\ns_cselect_b32 s91, 10, 0\ns_sub_u32 s%d, s%d, s91\ns_mov_b32 s96, s%d" % (74 + p, min(p, 1), 74 + p, 74 + p, 74 + p, 74 + p))
    def xld(r, un):
        for h in range(2):
            r("s_lshl_b32 s90, s%d, 7\ns_add_u32 s90, s90, s%d", 74 + un // 2, 86 + h)
            r("buffer_load_dwordx4 %s, %s, %s, s90 offen offset:%d", ag(8 * un + 4 * h, 4), v(PX), srd(S_X), 64 * (un % 2), tag=("u", un))
    def wld(r, p):
        lo = 0 if p == 0 else (11 * (p - 1) + 10) // 4 + 1
        hi = min((11 * p + 10) // 4, 27)
        for n in range(lo, hi + 1):
            if n < 11:
                r("s_add_u32 s58, %s, %d\ns_cmp_ge_u32 s58, 11\ns_cselect_b32 s57, 11, 0\ns_sub_u32 s58, s58, s57", sW, 4 * n % 11)
                pat_kvm(r, PK[n], "s58", t)
            p0, p1 = 4 * n // 11, min((4 * n + 3) // 11, 9)
            r("s_add_u32 s94, s97, %d", 4096 * n)
            if n == 27: r("s_cmp_lt_u32 %s, 2\ns_cselect_b32 s94, s94, 0x30000", sW)
            r("s_mov_b32 m0, s94")
            if p1 != p0: r("s_cmp_ge_u32 %s, %d\ns_cselect_b32 s95, s%d, s%d\ns_mul_i32 s95, s95, %d", sW, 11 * p1 - 4 * n, 74 + p1, 74 + p0, 64 * 3840)
            else: r("s_mul_i32 s95, s%d, %d", 74 + p0, 64 * 3840)
            r("s_add_u32 s95, s95, s62")
            r("buffer_load_dwordx4 %s, %s, s95 offen lds", v(PK[n % 11]), srd(S_WA), tag=("p", p))
    def qld(r, p):
        r("s_add_u32 s94, s97, %d\ns_mov_b32 m0, s94", QI + 4096 * p)
        r("s_lshl_b32 s95, s%d, 2\ns_add_u32 s95, s95, %s\ns_mul_i32 s95, s95, %d\ns_add_u32 s95, s95, s62", 74 + p, sW, 16 * 3840)
        r("buffer_load_dwordx4 %s, %s, s95 offen lds", v(PQ), srd(S_WA), tag="qd")
    ptab(0); ptab(1)
    xld(a, 0); xld(a, 1); wld(a, 0)
    for p in range(2, 10): ptab(p)
    a("s_lshr_b32 s52, s2, 3\ns_lshl_b32 s52, s52, 2\ns_add_u32 s52, s52, %s\ns_lshl_b32 s52, s52, 10", sW)
    a("s_min_u32 s52, s52, (L_end-L_start-1024)&0xfffffff0")
    a("v_add_u32 %s, s52, %s", v(t + 8), v(vL16))
    a("global_load_dwordx4 %s, %s, s[84:85]", ag(252, 4), v(t + 8), tag="pf")
    xld(a, 2); xld(a, 3); wld(a, 1)
    addr_regs(a)
    pat_q(a, PQ, t)
    SW, SR0, SR1 = XT + 4, XT + 5, XT + 6
    a("s_lshl_b32 s52, %s, 11\ns_add_u32 s52, s52, %d", sW, STG)
    a("v_add_u32 %s, s52, %s", v(SW), v(vL16))
    a("v_and_b32 %s, 31, %s\nv_lshlrev_b32 %s, 6, %s\nv_add_u32 %s, s52, %s", v(t), L, v(t), v(t), v(t), v(t))
    a("v_bfe_u32 %s, %s, 2, 2\nv_lshrrev_b32 %s, 5, %s\nv_xor_b32 %s, %s, %s", v(t + 1), L, v(t + 2), L, v(t + 1), v(t + 1), v(t + 2))
    a("v_lshl_add_u32 %s, %s, 4, %s", v(SR0), v(t + 1), v(t))
    a("v_xor_b32 %s, 32, %s", v(SR1), v(SR0))
    for i in range(4): a("v_mov_b32 %s, -1\nv_mov_b32 %s, 0x3f803f80", v(XT + i), v(XT + 8 + i))
    for r_ in (SA_, QA_, SB_, QB_): a("v_mov_b32 %s, 0", v(r_))
    a("v_add_u32 %s, %d, %s", v(t), SP, v(vL16))
    for i in range(4): a("v_mov_b32 %s, 0", v(t + 4 + i))
    a("ds_write_b128 %s, %s", v(t), v(t + 4, 4))
    a("s_lshl_b32 s52, %s, 6\nv_add_u32 %s, s52, %s\nv_add_u32 %s, 128, %s\ns_cmp_lt_u32 %s, 2\ns_cselect_b64 vcc, -1, 0", sW, v(60), v(vWkv0), v(61), v(vWm0), sW)
    a("v_cndmask_b32 %s, %s, %s, vcc\nv_add_u32 %s, %d, %s", v(60), v(61), v(60), v(61), 20 * 2816, v(60))
    ONES = v(XT + 8, 4)
    PRE = L1CFG["pre"]
    for p in range(2, PRE): xld(a, 2 * p); xld(a, 2 * p + 1); wld(a, p)
    stamp(a, "l1 issued")
    def pats(r):
        r("s_lshl_b32 s58, %s, 1\ns_add_u32 s58, s58, %s\ns_lshl_b32 s58, s58, 2\ns_add_u32 s58, s58, %s", sR, sH64, sW)
        pat_wo(r, WS_, "s58", t)
        r("s_cmp_lt_u32 s58, 100\ns_cselect_b32 s53, 0, 0x80000000\ns_lshl_b32 s58, s58, 10\ns_or_b32 s58, s58, s53")
        r("v_or_b32 %s, s53, %s\nv_add_u32 %s, s58, %s", v(WS_), v(WS_), v(WD_), v(vL16))
        rp_pat(r)
    def wo_ld(r, k, tag): r("buffer_load_dwordx4 %s, %s, %s, s63 offen", v(48 + 4 * k, 4), v(WS_), srd(S_WOB if k else S_WOA), tag=tag)
    def wo_tr(r, k):
        r("v_sub_u32 %s, %s, %s\nv_lshl_add_u32 %s, %s, 3, %s", v(43), v(SW), v(vL16), v(43), L, v(43))
        r("s_mov_b32 exec_hi, -1")
        r("ds_write_b128 %s, %s", v(SW), v(48 + 4 * k, 4))
        for u in range(2): r("ds_read_b64_tr_b16 %s, %s offset:%d", v(48 + 4 * k + 2 * u, 2), v(43), 512 * u, tag="wt")
        r("s_mov_b64 exec, -1")
    def wo_st(r, k, tag):
        r.wait(lg="wt")
        r("s_mul_i32 s94, %s, 102400\ns_add_u32 s94, s94, %d", sC, PO[k])
        r("buffer_store_dwordx4 %s, %s, %s, s94 offen sc1", v(48 + 4 * k, 4), v(WD_), srd(S_WS), tag=tag)
    def res_ld(r):
        r("v_and_b32 %s, 15, %s\nv_mul_u32_u24 %s, 1280, %s\nv_lshrrev_b32 %s, 4, %s\nv_lshl_add_u32 %s, %s, 3, %s", v(42), L, v(42), v(42), v(40), L, v(42), v(40), v(42))
        r("s_mul_i32 s98, %s, 20480\ns_add_u32 s98, s98, s63", sU)
        for i in range(5): r("buffer_load_dwordx2 %s, %s, %s, s98 offen offset:%d", v(RES + 2 * i, 2), v(42), srd(S_X), 32 * i, tag="res")
    vq = Stream(a); lq = Stream(a); eq = Stream(a, pats)
    def loads(r):
        for p in range(PRE, 10):
            xld(r, 2 * p); xld(r, 2 * p + 1); r.label("@x%d" % p); wld(r, p); r.label("@w%d" % p)
            if p == L1CFG["sld"]: r.label("@sl"); rp_load(r, S_WB, "sl"); wo_ld(r, 0, "sl"); fills(r, [("h", 0), ("o", 0)])
            if p == L1CFG["sst"]: r.label("@t"); rp_store(r, 1, "early"); wo_st(r, 0, "early"); r.label("@s")
        for p in range(10): qld(r, p)
        r.label("@q")
        rp_load(r, S_WA, "sl2"); wo_ld(r, 1, "sl2"); res_ld(r)
        fills(r, [("kv", 0), ("x", 0)])
        rp_tr(r, "sl2"); wo_tr(r, 1); rp_store(r, 0, "late"); wo_st(r, 1, "late")
        fills(r, [("o", 1)])
    lq.add(loads)
    sops = []
    play0 = lq.play
    def play(k=1):
        for _ in range(k):
            if lq.q and any(it[0] == "l" and it[1] == "@sl" for it in lq.q[0]): eq.flush()
            if lq.q and any(it[0] == "l" and it[1] == "@t" for it in lq.q[0]):
                while len(sops) % 5 in (1, 2): sops.pop(0)()
                rp_tr(a, "sl"); wo_tr(a, 0)
            play0(1)
    lq.play = play
    def gate(upto, extra=None):
        lq.upto("@w%d" % min(upto + L1CFG["la"], 9))
        if extra: lq.upto("@q" if L1CFG["aq"] else "@s")
        a.wait(vm=[("p", upto), extra])
        a("s_barrier")
        if upto in L1CFG["st"]: stamp(a, "l1 g%d" % upto)
        if extra: arrive(a, 0)
    def stage_ops(un):
        b = XR[un % 4]
        def o0():
            lq.upto("@x%d" % (un // 2)); a.wait(vm=("u", un))
            for i in range(4): a("v_accvgpr_read_b32 %s, %s", v(b + i), ag(8 * un + i))
        def o1():
            for i in range(4, 8): a("v_accvgpr_read_b32 %s, %s", v(b + i), ag(8 * un + i))
            def st(r):
                for i in range(8):
                    S_, Q_ = (SA_, QA_) if i < 4 else (SB_, QB_)
                    r("v_dot2c_f32_bf16 %s, %s, %s\nv_dot2c_f32_bf16 %s, %s, %s", v(S_), v(b + i), v(vONES), v(Q_), v(b + i), v(b + i))
            vq.add(st)
        return [o0, o1, lambda: (a("ds_write_b128 %s, %s", v(SW), ag(8 * un, 4)), a("ds_write_b128 %s, %s offset:1024", v(SW), ag(8 * un + 4, 4))),
                lambda: a("ds_read_b128 %s, %s", ag(8 * un, 4), v(SR0), tag=("xf", un)), lambda: a("ds_read_b128 %s, %s", ag(8 * un + 4, 4), v(SR1), tag=("xf", un))]
    for un in (0, 1):
        for o in stage_ops(un): o()
    gate(0)
    slots = []; DEP = 6
    for s in range(40):
        B = ag(4 * s, 4); c = {"c": "0"} if s == 0 else {}
        first = {"pre": (lambda un=s // 2: a.wait(lg=("xf", un)))}
        slots += [dict(op=M32, acc=AK, n=16, rd=rd_kvm(s, 0), B=B, **first, **c), dict(op=M32, acc=AV, n=16, rd=rd_kvm(s, 64), B=B, **c),
                  dict(op=M32, acc=AM, n=16, rd=rd_kvm(s, 128), B=B, **c),
                  dict(op=M32, acc=ag(160, 16), n=16, rd=[(60 + (s >= 20), (s % 20) * 2816 + u * 176) for u in (0, 1)], B=ONES, swap=True, **c)]
    GATES = L1CFG["gates"]
    def hook(i):
        p, j = divmod(i, 16)
        if j == 0 and p < 9: sops.extend(stage_ops(2 * p + 2) + stage_ops(2 * p + 3))
        if sops: sops.pop(0)()
        if j == 9 and str(p) in GATES: gate(*GATES[str(p)])
        vq.play(3); eq.play(3)
        if (i % 8) in L1CFG["ph"]: lq.play(1)
    gemm(a, slots, DEP, hook=hook)
    assert not len(eq)
    vq.flush(); lq.upto("@q")
    stamp(a, "l1 mfma end")
    for r_ in (SA_, QA_, SB_, QB_):
        a("v_add_f32_dpp %s, %s, %s quad_perm:[1,0,3,2] row_mask:0xf bank_mask:0xf", v(r_), v(r_), v(r_))
    for r_ in (SA_, QA_, SB_, QB_):
        a("v_add_f32_dpp %s, %s, %s quad_perm:[2,3,0,1] row_mask:0xf bank_mask:0xf", v(r_), v(r_), v(r_))
    a("v_and_b32 %s, 15, %s\nv_lshlrev_b32 %s, 4, %s", v(t + 2), L, v(t + 2), v(t + 2))
    for k, r_ in enumerate((SA_, QA_, SB_, QB_)): a("ds_bpermute_b32 %s, %s, %s", v(t + 8 + k), v(t + 2), v(r_), tag="bp")
    cs_add(a, 0, ag(160), put=True)
    a("v_and_b32 %s, 16, %s\nv_cmp_eq_u32 vcc, 0, %s\ns_waitcnt lgkmcnt(0)\ns_barrier", v(t + 3), L, v(t + 3))
    a("v_cndmask_b32 %s, %s, %s, vcc\nv_cndmask_b32 %s, %s, %s, vcc", v(t), v(t + 10), v(t + 8), v(t + 1), v(t + 11), v(t + 9))
    return ONES, lq

def cs_add(a, which, tiles, t=TMP, put=False):
    L = v(vLane)
    a("v_bfe_u32 %s, %s, 2, 1\nv_lshlrev_b32 %s, 8, %s\nv_and_b32 %s, 3, %s\nv_lshl_add_u32 %s, %s, 2, %s", v(t), L, v(t), v(t), v(t + 1), L, v(t), v(t + 1), v(t))
    a("v_bfe_u32 %s, %s, 3, 2\nv_lshl_add_u32 %s, %s, 4, %s\nv_add_u32 %s, %d, %s", v(t + 1), L, v(t), v(t + 1), v(t), v(t), SP, v(t))
    if put:
        a("s_min_u32 s52, %s, 2\ns_lshl_b32 s52, s52, 6\nv_add_u32 %s, s52, %s\ns_mov_b64 exec, 0xffffffff", sW, v(t), v(t))
        a("ds_write_b32 %s, %s offset:%d\ns_mov_b64 exec, -1", v(t), tiles, CS[which])
        return
    a("s_mov_b64 exec, 0xffffffff")
    for k, r in tiles.items(): a("ds_add_f32 %s, %s offset:%d", v(t), r, CS[which] + 64 * k)
    a("s_mov_b64 exec, -1")
def cs_steps(a, s0, n, acc, ones, first, ring, t=TMP):
    a("s_lshl_b32 s52, %s, 10\nv_add_u32 %s, s52, %s\nv_add_u32 %s, 2048, %s\ns_cmp_lt_u32 %s, 2\ns_cselect_b64 vcc, -1, 0", sW, v(t), v(vWkv0), v(t + 1), v(vWm0), sW)
    a("v_cndmask_b32 %s, %s, %s, vcc\nv_add_u32 %s, %d, %s", v(t), v(t + 1), v(t), v(t), 2816 * s0, v(t))
    gemm(a, [dict(op=M32, acc=acc, n=16, rd=[(t, s * 2816)], B=ones, swap=True, **({"c": "0"} if s == 0 and first else {})) for s in range(n)], len(ring) - 1, ring=ring)

def stats_fin(a, S, Q, NM, RS):
    a("s_mov_b32 s56, 0x%08x" % f32bits(1.0 / 640))
    a("v_mul_f32 %s, s56, %s\nv_mul_f32 %s, s56, %s", v(NM), v(S), v(RS), v(Q))
    a("v_fma_f32 %s, -%s, %s, %s", v(RS), v(NM), v(NM), v(RS))
    a("v_max_f32 %s, 0, %s\nv_add_f32 %s, 0x%08x, %s" % (v(RS), v(RS), v(RS), f32bits(1e-5), v(RS)))
    a("v_rsq_f32 %s, %s\nv_sub_f32 %s, 0, %s", v(RS), v(RS), v(NM), v(NM))

import struct
def f32bits(x): return struct.unpack("<I", struct.pack("<f", x))[0]

def pairs(base_list):
    for b, n in base_list:
        for i in range(0, n, 2): yield b + i

def scale_regs(a, lst, RS):
    for r in pairs(lst): a("v_pk_mul_f32 %s, %s, %s op_sel_hi:[1,0]", v(r, 2), v(r, 2), v(RS, 2))
def pack20(a, dst, main, mix):
    src = [main + i for i in range(16)] + [mix + i for i in range(4)]
    for i in range(10): a("v_cvt_pk_bf16_f32 %s, %s, %s", v(dst + i), v(src[2 * i]), v(src[2 * i + 1]))

def prep_records(a, RS, hi):
    scale_regs(a, [(AK, 16), (AM + 4, 8), (AV, 16)], RS)
    pack20(a, AK, AK, AM + 4)
def write_records(a, hi):
    halo_store(a, hi, [v(AK, 4), v(AK + 4, 4), v(AK + 8, 4)] + [v(AV + 4 * i, 4) for i in range(4)] + [v(AM + 8, 4)])
    o = 14 * 48
    a("ds_write_b128 %s, %s offset:%d\nds_write_b128 %s, %s offset:%d\nds_write_b64 %s, %s offset:%d", v(vKrec), v(AK, 4), o, v(vKrec), v(AK + 4, 4), o + 16, v(vKrec), v(AK + 8, 2), o + 32)
    o = 14 * 80
    for i in range(4): a("ds_write_b128 %s, %s offset:%d", v(vVrec), v(AV + 4 * i, 4), o + 16 * i)
    a("ds_write_b128 %s, %s offset:%d", v(vVrec), v(AM + 8, 4), o + 64)

def attention(a, RS, oidx, retry):
    LG = TMP; t = TMP + 8
    KR = [RING, RING + 12, RING + 24]; VR = [24, 44, XT]
    def rdk(i, a=a):
        r = KR[i % 3]; o = (14 - 2 * i) * 48
        a("ds_read_b128 %s, %s offset:%d\nds_read_b128 %s, %s offset:%d\nds_read_b64 %s, %s offset:%d", v(r, 4), v(vKrec), o, v(r + 4, 4), v(vKrec), o + 16, v(r + 8, 2), v(vKrec), o + 32, tag=("k", i))
    def rdv(i):
        r = VR[i % 3]; o = (14 - 2 * i) * 80
        for j in range(5): a("ds_read_b128 %s, %s offset:%d", v(r + 4 * j, 4), v(vVrec), o + 16 * j, tag=("v", i))
    for i in (1, 2, 3): rdk(i)
    scale_regs(a, [(AQ, 16), (AM, 4)], RS)
    pack20(a, AQ, AQ, AM)
    for i in range(8): a("v_mov_b32 %s, 0", v(LG + i))
    for i in range(8):
        r = AK if i == 0 else KR[i % 3]
        if i == 1:
            z = a.a if isinstance(a, Mix) else a
            halo_consume(z, oidx // 2, retry, lambda: [rdk(k, z) for k in (1, 2, 3)])
        if i: a.wait(lg=("k", i))
        for j in range(10): a("v_dot2c_f32_bf16 %s, %s, %s", v(LG + i), v(AQ + j), v(r + j))
        if 1 <= i <= 4: rdk(i + 3)
        if i == 7: a.wait(vm="hl")
        if i in (5, 6, 7): rdv(i - 4)
    lb = a.newlabel("L_nomask")
    z = a.a if isinstance(a, Mix) else a
    z("s_cmp_lg_u32 %s, 0\ns_cbranch_scc1 %s", sT, lb)
    z("v_and_b32 %s, 31, %s\nv_mov_b32 %s, 0xff800000", v(t), v(vLane), v(t + 1))
    for i in range(1, 8):
        z("v_cmp_le_u32 vcc, %d, %s\nv_cndmask_b32 %s, %s, %s, vcc", 2 * i, v(t), v(LG + i), v(t + 1), v(LG + i))
    z("s_nop 2")
    a.label(lb)
    a("v_max3_f32 %s, %s, %s, %s\nv_max3_f32 %s, %s, %s, %s", v(t), v(LG), v(LG + 1), v(LG + 2), v(t + 1), v(LG + 3), v(LG + 4), v(LG + 5))
    a("v_max3_f32 %s, %s, %s, %s\nv_max_f32 %s, %s, %s", v(t), v(t), v(LG + 6), v(LG + 7), v(t), v(t), v(t + 1))
    import math
    a("s_mov_b32 s56, 0x%08x" % f32bits(20 ** -0.5 * math.log2(math.e)))
    a("v_mul_f32 %s, s56, %s", v(t), v(t))
    for i in range(8): a("v_fma_f32 %s, %s, s56, -%s", v(LG + i), v(LG + i), v(t))
    for i in range(8): a("v_exp_f32 %s, %s", v(LG + i), v(LG + i))
    a("v_pk_add_f32 %s, %s, %s\nv_pk_add_f32 %s, %s, %s", v(t, 2), v(LG, 2), v(LG + 2, 2), v(t + 2, 2), v(LG + 4, 2), v(LG + 6, 2))
    a("v_pk_add_f32 %s, %s, %s\nv_add_f32 %s, %s, %s\nv_rcp_f32 %s, %s", v(t, 2), v(t, 2), v(t + 2, 2), v(t), v(t), v(t + 1), v(t), v(t))
    O = list(pairs([(AV, 16), (AM + 8, 4)]))
    for i in range(8):
        sel = "op_sel:[0,%d,0] op_sel_hi:[1,%d,1]" % (i % 2, i % 2)
        P = v(LG + i - i % 2, 2)
        if i == 0:
            for r in O: a("v_pk_mul_f32 %s, %s, %s op_sel_hi:[1,0]", v(r, 2), v(r, 2), P)
        else:
            a.wait(lg=("v", i))
            for j, r in enumerate(O): a("v_pk_fma_f32 %s, %s, %s, %s %s", v(r, 2), v(VR[i % 3] + 2 * j, 2), P, v(r, 2), sel)
            if i + 3 <= 7: rdv(i + 3)
    scale_regs(a, [(AV, 16), (AM + 8, 4)], t)
    publish_o(a, oidx)

def publish_o(a, oidx, mix=AM + 8):
    pack20(a, AV, AV, mix)
    a("v_permlane32_swap_b32 %s, %s\nv_permlane32_swap_b32 %s, %s", v(AV + 8), v(AV + 10), v(AV + 9), v(AV + 11))
    o_store(a, oidx, v(AV, 4), v(AV + 4, 4), v(AV + 8, 4))
    stamp(a, "o%d pub" % (oidx + 1))


def layer1_qkv(a, chk, mid, phid, retry):
    ONES, lq = l1_startup(a, retry)
    stamp(a, "l1 cs")
    for k in range(3):
        for i in range(4): a("ds_read_b128 %s, %s offset:%d", v((RING, RING + 16, AQ)[k] + 4 * i, 4), v(vCs), CS[0] + 64 * k + 16 * i, tag=("cs", k))
    stats_fin(a, TMP, TMP + 1, NMR, RSR)
    for k in range(3):
        a.wait(lg=("cs", k))
        for i in range(0, 16, 2):
            a("v_pk_fma_f32 %s, %s, %s, %s op_sel_hi:[1,0,1]", v(AK + 16 * k + i, 2), v((RING, RING + 16, AQ)[k] + i, 2), v(NMR, 2), v(AK + 16 * k + i, 2))
    prep_records(a, RSR, 0)
    sd = Stream(a, lambda r: write_records(r, 0))
    sd.play(4)
    a.wait(vm="qd")
    a("s_barrier")
    stamp(a, "l1 q in")
    CA = 41
    a("s_mul_i32 s52, %s, 10240\nv_add_u32 %s, s52, %s", sW, v(CA), v(vWq))
    slots = []
    for s in range(40):
        slots.append(dict(op=M32, acc=AQ, n=16, rd=rd_q(s), B=ag(4 * s, 4), **({"c": "0"} if s == 0 else {})))
        if s % 4 == 3: slots.append(dict(op=M32, acc=ag(160, 16), n=16, rd=[(CA, (s // 4) * 1024 + u * 256) for u in (0, 1)], B=ONES, swap=True, **({"c": "0"} if s == 3 else {})))
    def hook(i):
        if i % 2 == 1: sd.play(1)
        if i == L1CFG["hld"] - L1CFG["ipd"]: init_probe(a, 0, TMP + 7)
        if i == L1CFG["hld"]: chk(a); halo_load(a, 0)
        elif i % 2 == 0 and not L1CFG["hld"] - 6 < i < L1CFG["hld"]: lq.play_vm(1, 4)
    gemm(a, slots, 6, hook=hook)
    sd.flush(); lq.flush()
    cs_add(a, 0, {3: ag(160)})
    frag_regs(a)
    stamp(a, "l1 pass2")
    a.wait(vm="late")
    bg = mid(a)
    arrive(a, 128)
    phid(a)
    for i in range(4): a("ds_read_b128 %s, %s offset:%d", v(44 + 4 * i, 4), v(vCs), CS[0] + 192 + 16 * i, tag="cq")
    a.wait(lg="cq")
    for i in range(0, 16, 2): a("v_pk_fma_f32 %s, %s, %s, %s op_sel_hi:[1,0,1]", v(AQ + i, 2), v(44 + i, 2), v(NMR, 2), v(AQ + i, 2))
    stamp(a, "l1 mid")
    attention(Mix(a, bg, 8), RSR, 0, retry)
    return bg
```

```python
import sys, gen1, gen2, gen3, gen
from gen import *
import json
import os
for e in ('.s', 'p.s', 'p.txt'):
    if os.path.exists(sys.argv[1] + e): os.remove(sys.argv[1] + e)
L1CFG.update(json.loads(sys.argv[2]) if len(sys.argv) > 2 else {})
CFG.update(json.loads(sys.argv[3]) if len(sys.argv) > 3 else {})
MAP[0] = CFG.get("map", 0)
t = build(); open(sys.argv[1] + ".s", "w").write(t)
PROF[0] = True
t = build(); open(sys.argv[1] + "p.s", "w").write(t)
open(sys.argv[1] + "p.txt", "w").write("\n".join(STAMPS))
```

```python
from gen2 import *
import math
CFG = dict(x_spec=6, x_pre1=6, h_ld=32, att_every=12, kv_probe=24, g_every=8, g_pre=6, gs_every=24, af_every=8, wo_pre=10, wo_every=4, p1_fast=0, p1_ev=2, x_pre=10, pk0=92, d_o=6, d_x=6, d_kv=6)
MAXRETRY = 200000

def parkreg(n): return ag(160 + 4 * n, 4) if n < 24 else v(PARKV + 4 * (n - 24), 4)

def bounded_retry(a, label, sleep=2):
    ok = a.newlabel("L_ok")
    a("s_cbranch_vccz %s", ok)
    a("s_add_u32 %s, %s, 1\ns_cmp_gt_u32 %s, %d\ns_cbranch_scc1 %s", sRETRY, sRETRY, sRETRY, MAXRETRY, ok)
    vm, lg = list(a.vm), list(a.lg)
    a("s_waitcnt vmcnt(0) lgkmcnt(0)\ns_sleep %d\ns_branch %s" % (sleep, label))
    a.vm, a.lg = vm, lg
    a.label(ok)

def init_check(a, reg, base, tag):
    ok, lp = a.newlabel("L_iok"), a.newlabel("L_iwp")
    a("s_cmp_lg_u32 %s, 0\ns_cbranch_scc1 %s", sW, ok)
    vm0, lg0 = list(a.vm), list(a.lg)
    a.wait(vm=tag)
    a("s_mov_b64 exec, 15\nv_cmp_gt_u32 vcc, 64, %s\ns_cbranch_vccz %s", v(reg), ok)
    vm, lg = list(a.vm), list(a.lg)
    a("v_lshlrev_b32 %s, 5, %s", v(TMP + 6), v(vLane))
    a.label(lp)
    a("buffer_load_dword %s, %s, %s, 0 offen offset:%d sc1\ns_waitcnt vmcnt(0)", v(reg), v(TMP + 6), srd(S_DBG), base)
    a("v_cmp_gt_u32 vcc, 64, %s", v(reg))
    bounded_retry(a, lp, 4)
    a.vm, a.lg = vm0, lg0
    a.label(ok)
    a("s_mov_b64 exec, -1")

def wo_base(a, which):
    a("s_mul_i32 s96, %s, 102400\ns_lshl_b32 s97, %s, 10\ns_add_u32 s96, s96, s97\ns_add_u32 s96, s96, %d", sC, sW, PO[which])
def wo_dma(a, ns):
    for n in ns:
        a("s_add_u32 s94, s97, %d\ns_mov_b32 m0, s94\ns_add_u32 s95, s96, %d", WOI + 4096 * n, 4096 * n)
        a("buffer_load_dwordx4 %s, %s, s95 offen lds", v(vL16), srd(S_WS), tag="wod")
WO1 = list(range(2, 15))
WO2 = [0, 1] + list(range(15, 25))

def park_base(a, which):
    a("s_mul_i32 s88, %s, 153600\ns_lshl_b32 s89, %s, 10\ns_add_u32 s88, s88, s89\ns_add_u32 s88, s88, %d", sHP, sW, PW[which])
def park_load(a, ns):
    for n in ns:
        a("s_add_u32 s95, s88, %d", 4096 * n)
        a("buffer_load_dwordx4 %s, %s, %s, s95 offen", parkreg(n), v(vL16), srd(S_WS), tag=("park", n))
def park_load27(a):
    a("s_add_u32 s95, s88, %d", 4096 * 27)
    a("buffer_load_dwordx4 %s, %s, %s, s95 offen", parkreg(27), v(vL16), srd(S_WS), tag=("park", 27))
def pack_store(a):
    for n in range(28):
        lb = a.newlabel("L_ps")
        a("s_cmp_eq_u32 %s, %d\ns_cbranch_scc0 %s\ns_add_u32 s95, s88, %d", sR, n % 16, lb, 4096 * n)
        a("buffer_store_dwordx4 %s, %s, %s, s95 offen sc1", parkreg(n), v(vL16), srd(S_WS))
        a.vm.pop()
        a.label(lb)
def park_write(a, ns, t, raw=False):
    a("v_add_u32 %s, s89, %s\nv_add_u32 %s, 0x10000, %s", v(t), v(vL16), v(t + 1), v(t))
    for n in ns:
        a.wait(vm=("park", n))
        if raw and n == 27: a("s_cmp_lt_u32 %s, 2\ns_cselect_b64 exec, -1, 0", sW)
        a("ds_write_b128 %s, %s offset:%d", v(t + n // 16), parkreg(n), 4096 * (n % 16))
        if raw and n == 27: a("s_mov_b64 exec, -1")
def q_base(a):
    a("s_mov_b32 s98, s88")
def q_dma(a):
    for n in range(28, 38):
        a("s_add_u32 s94, s89, %d", 4096 * n)
        if n == 37: a("s_cmp_lt_u32 %s, 2\ns_cselect_b32 s94, s94, 0x30000", sW)
        a("s_mov_b32 m0, s94\ns_add_u32 s95, s98, %d", 4096 * n)
        a("buffer_load_dwordx4 %s, %s, s95 offen lds", v(vL16), srd(S_WS), tag="qd")

def wo_phase(a, L, rest, after_bulk=None):
    WAC, PR, D = 64, 24, 40
    a.wait(vm="wod")
    a("s_barrier")
    a("s_mul_i32 s59, %s, 20480\ns_add_u32 s59, s59, %d\ns_add_u32 s60, s59, 16384", sU, OB[L])
    stamp(a, "wo%d bar" % (L + 1))
    if L == 0: a.wait(vm="res"); phi_frags(a)
    early = [n for n in range(12) if L < 3 and not rest.has(("park", n))]
    if early: park_write(a, early, TMP + 2)
    if L == 0:
        for i in range(4): a("v_mov_b32 %s, 0x3f803f80", v(CONE + i))
        CS1[0] = (len(early) * 4096 // 2816) // 4 * 4
        print('early', len(early), CS1)
        if CS1[0]:
            a("s_waitcnt lgkmcnt(0)\ns_barrier")
            cs_steps(a, 0, CS1[0], CACC[0], v(CONE, 4), True, CRING)
    if CFG["d_o"] and len(early) < 8: a("s_sleep %d", CFG["d_o"])
    a("v_add_u32 %s, 0x10000, %s", v(TMP + 11), v(vWo1))
    top = a.newlabel("L_wo")
    a.label(top)
    for i in range(4): a("buffer_load_dwordx4 %s, %s, %s, s60 offen offset:%d sc1", v(PR + 4 * i, 4), v(vL16), srd(S_WS), 1024 * i, tag="pr")
    for i in range(10):
        a("v_lshlrev_b32 %s, 16, %s\nv_and_b32 %s, 0xffff0000, %s", v(WAC + 2 * i), v(RES + i), v(WAC + 2 * i + 1), v(RES + i))
    a.wait(vm="pr")
    a("v_max3_u32 %s, %s, %s, %s", v(TMP), v(PR), v(PR + 1), v(PR + 2))
    for i in range(3, 15, 2): a("v_max3_u32 %s, %s, %s, %s", v(TMP), v(TMP), v(PR + i), v(PR + i + 1))
    a("v_max_u32 %s, %s, %s", v(TMP), v(TMP), v(PR + 15))
    a("v_cmp_eq_u32 vcc, -1, %s", v(TMP))
    bounded_retry(a, top)
    stamp(a, "wo%d probe ok" % (L + 1))
    def bulk(r):
        for s in range(16):
            if s % 4 == 0: r("s_add_u32 s61, s59, %d", 1024 * s)
            r("buffer_load_dwordx4 %s, %s, %s, s61 offen offset:%d sc1", ag(4 * s, 4), v(vL16), srd(S_WS), 1024 * (s % 4), tag=("o", s))
    bg = Stream(a, bulk)
    bg.q += rest.q; rest.q = []
    if after_bulk: bg.add(after_bulk)
    bg.play(CFG["wo_pre"])
    def hk(i):
        if i % CFG["wo_every"] == 0: bg.play(1)
    slots = []
    for s in [16, 17, 18, 19] + list(range(16)):
        for t5 in range(5):
            f = 5 * s + t5
            slots.append(dict(op=M16, acc=WAC + 4 * t5, n=4, rd=[(vWo1 if f < 64 else TMP + 11, 1024 * (f % 64))],
                              B=v(PR + 4 * (s - 16), 4) if s >= 16 else ag(4 * s, 4), vm=("o", s) if s < 16 else None))
    gemm(a, slots, 7, hook=hk, ring=84)
    bg.flush()
    a("v_cmp_u_f32 vcc, %s, %s", v(WAC + 16), v(WAC + 16))
    bounded_retry(a, top)
    stamp(a, "wo%d gemm" % (L + 1))
    for i in range(10): a("v_cvt_pk_bf16_f32 %s, %s, %s", v(D + i), v(WAC + 2 * i), v(WAC + 2 * i + 1))
    if L < 3:
        for i in range(10): a("v_mov_b32 %s, %s", v(RES + i), v(D + i))
    for q in (0, 4, 8):
        a("v_permlane16_swap_b32 %s, %s\nv_permlane16_swap_b32 %s, %s", v(D + q), v(D + q + 2), v(D + q + 1), v(D + q + 3))
    if L == 3:
        t = TMP; Ln = v(vLane)
        a("v_and_b32 %s, 15, %s\nv_mul_u32_u24 %s, 1280, %s\nv_lshrrev_b32 %s, 9, %s\nv_lshl_add_u32 %s, %s, 4, %s", v(t), Ln, v(t), v(t), v(t + 1), v(vXst), v(t), v(t + 1), v(t))
        a("s_mul_i32 s52, %s, 20480\ns_mul_i32 s53, %s, 160\ns_add_u32 s52, s52, s53", sU, sC)
        a("buffer_store_dwordx4 %s, %s, %s, s52 offen", v(D, 4), v(t), srd(S_OUT))
        a("buffer_store_dwordx4 %s, %s, %s, s52 offen offset:64", v(D + 4, 4), v(t), srd(S_OUT))
        a("s_mov_b32 exec_lo, 0xffff\ns_mov_b32 exec_hi, 0xffff")
        a("buffer_store_dwordx4 %s, %s, %s, s52 offen offset:128", v(D + 8, 4), v(t), srd(S_OUT))
        a("s_mov_b64 exec, -1")
        return
    x_store(a, L, v(D, 4), v(D + 4, 4), v(D + 8, 4), None)
    S, Q = TMP, TMP + 1
    a("v_mov_b32 %s, 0\nv_mov_b32 %s, 0", v(S), v(Q))
    for i in range(10): a("v_dot2c_f32_bf16 %s, %s, %s\nv_dot2c_f32_bf16 %s, %s, %s", v(S), v(RES + i), v(vONES), v(Q), v(RES + i), v(RES + i))
    for sw in ("v_permlane16_swap_b32", "v_permlane32_swap_b32"):
        a("v_mov_b32 %s, %s\nv_mov_b32 %s, %s", v(S + 2), v(S), v(S + 3), v(Q))
        a("%s %s, %s\n%s %s, %s", sw, v(S), v(S + 2), sw, v(Q), v(S + 3))
        a("v_pk_add_f32 %s, %s, %s", v(S, 2), v(S, 2), v(S + 2, 2))
    st_store(a, v(S, 2))
    stamp(a, "x%d pub" % (L + 2))
    return len(early)

def transition(a, L, lo=12):
    a("s_barrier")
    park_write(a, range(lo, 28), TMP + 8)
    q_base(a)
    if L < 3: park_base(a, (L + 1) % 2)

def cs_init(a, which, tiles):
    for k in tiles:
        for i in range(4): a("ds_read_b128 %s, %s offset:%d", v(AK + 16 * k + 4 * i, 4), v(vCs), CS[which] + 64 * k + 16 * i, tag=("ci", k))
def cs_mul(a, tiles):
    for k in tiles:
        a.wait(lg=("ci", k))
        scale_regs(a, [(AK + 16 * k, 16)], NMR)

def qkv_front(a, L):
    isA = L % 2 == 0; xi = L - 1; which = L % 2; t = TMP
    a("s_lshl_b32 s59, %s, 11\ns_add_u32 s59, s59, %d", sT, ST[xi])
    a("s_mul_i32 s60, %s, 40960\ns_add_u32 s60, s60, %d", sT, XB[xi])
    a("s_mov_b32 s99, 0")
    stamp(a, "q%d begin" % (L + 1))
    top = a.newlabel("L_qkv")
    a.label(top)
    for i in range(4): a("buffer_load_dwordx2 %s, %s, %s, s59 offen offset:%d sc1", v(t + 2 * i, 2), v(vStLd), srd(S_WS), 128 * i, tag="st")
    if L != 1: cs_init(a, which, (0, 1, 2, 3))
    def bulk(r):
        for s in range(40):
            if s % 4 == 0: r("s_add_u32 s61, s60, %d", 1024 * s)
            r("buffer_load_dwordx4 %s, %s, %s, s61 offen offset:%d sc1", ag(4 * s, 4), v(vL16), srd(S_WS), 1024 * (s % 4), tag=("x", s))
        q_dma(r)
        r.label("@q")
        if L < 3:
            for i in range(4): r("v_mov_b32 %s, -1", v(XT + 16 + i))
            fills(r, [("h", 1), ("x", 1), ("kv", 1), ("o", 2)] if L == 1 else [("x", 2), ("o", 3)], XT + 16)
        r.label("@f")
        if L < 3: park_load(r, range(28))
    bg = Stream(a, bulk)
    bg.play(CFG["x_spec"])
    a.wait(vm="st")
    a("v_pk_add_f32 %s, %s, %s\nv_pk_add_f32 %s, %s, %s\nv_pk_add_f32 %s, %s, %s", v(t, 2), v(t, 2), v(t + 2, 2), v(t + 4, 2), v(t + 4, 2), v(t + 6, 2), v(t, 2), v(t, 2), v(t + 4, 2))
    a("v_cmp_u_f32 vcc, %s, %s", v(t), v(t))
    bounded_retry(a, top)
    stamp(a, "q%d probe ok" % (L + 1))
    bg.play(CFG["x_pre"] - CFG["x_spec"] + (CFG["x_pre1"] if L == 1 else 0))
    def red(R, sws):
        for sw in sws:
            a("v_mov_b32 %s, %s\nv_mov_b32 %s, %s", v(R + 2), v(R), v(R + 3), v(R + 1))
            a("%s %s, %s\n%s %s, %s", sw, v(R), v(R + 2), sw, v(R + 1), v(R + 3))
            a("v_pk_add_f32 %s, %s, %s", v(R, 2), v(R, 2), v(R + 2, 2))
    red(t, ["v_permlane32_swap_b32"])
    stats_fin(a, t, t + 1, NMR, RSR)
    if L != 1: cs_mul(a, (0, 1, 2, 3))
    sk = a.newlabel("L_skb")
    a("s_waitcnt lgkmcnt(0)\ns_cmp_eq_u32 s99, 0\ns_cbranch_scc0 %s\ns_barrier\ns_mov_b32 s99, 1", sk)
    if L == 1:
        assert CS1[0] == 16
        cs_steps(a, 16, 24, CACC[0], v(CONE, 4), False, CRING, TMP + 4)
        cs_add(a, 1, v(CACC[0]), TMP + 4, put=True)
        a("s_waitcnt lgkmcnt(0)")
    a.label(sk)
    if L != 2: stamp(a, "p1 go")
    slots = []
    for s in range(40):
        for acc, win in ((AK, 0), (AV, 1), (AM, 2)):
            slots.append(dict(op=M32, acc=acc, n=16, rd=rf_kvm(s, win), B=ag(4 * s, 4), vm=("x", s), **({"c": "0"} if L == 1 and s == 0 else {})))
    def hook(i):
        s, k = divmod(i, 3)
        bg.play_vm(1 if (i < CFG["p1_fast"] or i % CFG["p1_ev"] == 1) else 0, 2)
    gemm(a, slots, 6, hook=hook, ringn=9)
    bg.upto("@f")
    a("v_cmp_u_f32 vcc, %s, %s", v(AM), v(AM))
    bounded_retry(a, top)
    stamp(a, "q%d pass1" % (L + 1))
    if isA: prep_records(a, RSR, 1)
    a.wait(vm="qd")
    a("s_waitcnt lgkmcnt(0)\ns_barrier")
    if L == 1:
        for k in range(3):
            for i in range(4): a("ds_read_b128 %s, %s offset:%d", v(CACC[k] + 4 * i, 4), v(vCs), CS[1] + 64 * k + 16 * i, tag=("cl", k))
        for k in range(3):
            a.wait(lg=("cl", k))
            for i in range(0, 16, 2):
                a("v_pk_fma_f32 %s, %s, %s, %s op_sel_hi:[1,0,1]", v(AK + 16 * k + i, 2), v(CACC[k] + i, 2), v(NMR, 2), v(AK + 16 * k + i, 2))
    return bg
CACC, CONE, CRING, CS1 = [120, 136, XT], XT + 16, [52, 56, 60, 152, 156, 160], [0]

def pass2(a, which, hook=None, zero=False):
    gemm(a, [dict(op=M32, acc=AQ, n=16, rd=rf_q(s), B=ag(4 * s, 4), **({"c": "0"} if zero and s == 0 else {})) for s in range(40)], 5, hook=hook, ringn=7)

def qkv_A(a, L):
    bg = qkv_front(a, L)
    wo_base(a, 0)
    sd = Stream(a, lambda r: write_records(r, 1)); bg.front(lambda r: wo_dma(r, WO1))
    sd.play(3)
    def hook(i):
        if i % 2 == 1 or i == 0: sd.play(1)
        if i == CFG["h_ld"]: halo_load(a, 1)
        elif i % 2 == 0 and i > 2 and not CFG["h_ld"] - 8 < i < CFG["h_ld"]: bg.play_vm(1, 0)
    pass2(a, 0, hook)
    sd.flush()
    stamp(a, "pass2")
    a.wait(vm="fill")
    a("s_waitcnt lgkmcnt(0)\ns_barrier")
    bg.front(lambda r: (wo_dma(r, WO2), r.label("@w")))
    attention(Mix(a, bg, CFG["att_every"]), RSR, L, bounded_retry)
    bg.upto("@w")
    return bg

PHL = SP + 8192; ZL = SP + 1024
def phi_dma(a):
    a("s_lshl_b32 s94, %s, 10\ns_mul_i32 s95, %s, 1600\ns_add_u32 s95, s95, s94\ns_add_u32 s94, s94, %d\ns_mov_b32 m0, s94", sW, sHP, PHL)
    a("buffer_load_dwordx4 %s, %s, s95 offen lds", v(vL16), srd(S_PHI), tag="phi")
    for i in range(4): a("v_mov_b32 %s, 0", v(TMP + i))
    a("v_add_u32 %s, %d, %s", v(TMP + 4), ZL, v(vL16))
    a("ds_write_b128 %s, %s", v(TMP + 4), v(TMP, 4))
def phi_frags(a):
    t = TMP; Ln = v(vLane)
    a("s_movk_i32 s57, 960\ns_movk_i32 s56, 160")
    a("v_bfe_u32 %s, %s, 2, 2\nv_mul_u32_u24 %s, 40, %s", v(t), Ln, v(t), v(t))
    a("v_bfe_u32 %s, %s, 4, 1\nv_bfe_u32 %s, %s, 1, 1\nv_lshl_add_u32 %s, %s, 1, %s", v(t + 1), Ln, v(t + 2), Ln, v(t + 1), v(t + 1), v(t + 2))
    a("v_lshl_add_u32 %s, %s, 3, %s\nv_add_u32 %s, %d, %s", v(t), v(t + 1), v(t), v(t), PHL, v(t))
    a("v_lshrrev_b32 %s, 5, %s\nv_and_b32 %s, 1, %s\nv_mov_b32 %s, %d", v(t + 2), Ln, v(t + 3), Ln, v(t + 8), ZL)
    a("v_mad_u32_u24 %s, %s, s57, %s", v(t + 4), v(t + 2), v(t))
    a("v_mad_u32_u24 %s, %s, s56, %s\nv_add_u32 %s, 640, %s", v(t + 5), v(t + 2), v(t), v(t + 5), v(t + 5))
    a("v_cmp_eq_u32 vcc, %s, %s", v(t + 2), v(t + 3))
    a("v_cndmask_b32 %s, %s, %s, vcc\nv_cndmask_b32 %s, %s, %s, vcc", v(t + 4), v(t + 8), v(t + 4), v(t + 5), v(t + 8), v(t + 5))
    a("v_cmp_eq_u32 vcc, 0, %s", v(t + 1))
    a("v_cndmask_b32 %s, %s, %s, vcc\nv_cndmask_b32 %s, %s, %s, vcc", v(t + 6), v(t + 8), v(t + 4), v(t + 7), v(t + 8), v(t + 5))
    for ft in range(2):
        for k in range(2):
            for u in range(2): a("ds_read_b64_tr_b16 %s, %s offset:%d", v(PHIF + 12 * ft + 4 * k + 2 * u, 2), v(t + 4 + 2 * ft), 320 * k + 160 * u + 32 * ft)
        a("ds_read_b64_tr_b16 %s, %s offset:%d", v(PHIF + 12 * ft + 8, 2), v(t + 5 + 2 * ft), 32 * ft)
        a("v_mov_b32 %s, 0\nv_mov_b32 %s, 0", v(PHIF + 12 * ft + 10), v(PHIF + 12 * ft + 11))
    a("s_waitcnt lgkmcnt(0)")

def feature_map(a, main, mix, order, EP=RING, EN=40, D0=XT, D1=24, out=RING, packed=False):
    t = TMP
    if not packed: pack20(a, main, main, mix)
    a("v_mov_b32 %s, 0\nv_mov_b32 %s, 0", v(main + 10), v(main + 11))
    slots = [dict(op=M32, acc=(D0, D1)[ft], n=16, A=v(PHIF + 12 * ft + 4 * k, 4), B=v(main + 4 * k, 4), **({"c": "0"} if k == 0 else {})) for k in range(3) for ft in range(2)]
    gemm(a, slots, 0)
    P = [D0 + i for i in range(16)] + [D1 + i for i in range(4)]
    for op, r in (("max", t), ("min", t + 2)):
        a("v_%s3_f32 %s, %s, %s, %s", op, v(r), v(P[0]), v(P[1]), v(P[2]))
        for i in range(3, 19, 2): a("v_%s3_f32 %s, %s, %s, %s", op, v(r), v(r), v(P[i]), v(P[i + 1]))
        a("v_%s_f32 %s, %s, %s", op, v(r), v(r), v(P[19]))
    a("s_mov_b32 s56, 0x%08x\ns_mov_b32 s57, 0x%08x" % (f32bits(math.log2(math.e)), f32bits(-math.log2(math.e))))
    a("v_mul_f32 %s, s57, %s\nv_mul_f32 %s, s56, %s\nv_mov_b32 %s, s56\nv_mov_b32 %s, s57", v(t), v(t), v(t + 2), v(t + 2), v(t + 4), v(t + 6))
    for E, c, m in ((EP, t + 4, t), (EN, t + 6, t + 2)):
        for i in range(0, 20, 2): a("v_pk_fma_f32 %s, %s, %s, %s op_sel_hi:[1,0,0]", v(E + i, 2), v(P[i], 2), v(c, 2), v(m, 2))
        for i in range(20): a("v_exp_f32 %s, %s", v(E + i), v(E + i))
    for E, s in ((EP, t), (EN, t + 2)):
        a("v_pk_add_f32 %s, %s, %s", v(s, 2), v(E, 2), v(E + 2, 2))
        for i in range(4, 20, 2): a("v_pk_add_f32 %s, %s, %s", v(s, 2), v(s, 2), v(E + i, 2))
        a("v_add_f32 %s, %s, %s\nv_rcp_f32 %s, %s", v(s), v(s), v(s + 1), v(s), v(s))
    scale_regs(a, [(EP, 20)], t); scale_regs(a, [(EN, 20)], t + 2)
    F = [EP + i for i in range(20)] + [EN + i for i in range(20)]
    for i in range(20): a("v_cvt_pk_bf16_f32 %s, %s, %s", v(out + i), v(F[order[2 * i]]), v(F[order[2 * i + 1]]))

def qkv_B(a, L):
    t = TMP; Ln = v(vLane); ki = L // 2
    bg = qkv_front(a, L)
    wo_base(a, 1)
    bg.front(lambda r: (wo_dma(r, WO1), r.label('@w')))
    m = Mix(a, bg, 16)
    scale_regs(m, [(AK, 16), (AM + 4, 8), (AV, 16)], RSR)
    pack20(m, AV, AV, AM + 8)
    a("v_mov_b32 %s, 0x3f80\nv_mov_b32 %s, 0", v(AV + 10), v(AV + 11))
    a("v_lshrrev_b32 %s, 5, %s\nv_lshlrev_b32 %s, 7, %s\nv_and_b32 %s, 31, %s\nv_add_u32 %s, %s, %s", v(t + 8), Ln, v(t + 8), v(t + 8), v(t + 9), Ln, v(t + 8), v(t + 8), v(t + 9))
    a("s_lshl_b32 s52, %s, 5\nv_add_u32 %s, s52, %s\nv_mul_u32_u24 %s, 160, %s", sW, v(t + 8), v(t + 8), v(t + 8), v(t + 8))
    for i in range(3): a("ds_write_b128 %s, %s offset:%d", v(t + 8), v(AV + 4 * i, 4), PHIR + 80 + 16 * i)
    def p2(r, hook):
        slots = []
        if L == 1:
            for i in range(4): r("v_mov_b32 %s, 0x3f803f80", v(60 + i))
            r("s_mul_i32 s56, %s, 10240\nv_add_u32 %s, s56, %s", sW, v(XT + 16), v(vWq))
        for s in range(40):
            slots.append(dict(op=M32, acc=AQ, n=16, rd=rf_q(s), B=ag(4 * s, 4), **({"c": "0"} if L == 1 and s == 0 else {})))
            if L == 1 and s % 4 == 3: slots.append(dict(op=M32, acc=AV, n=16, rd=[(XT + 16, (s // 4) * 1024)], B=v(60, 4), swap=True, **({"c": "0"} if s == 3 else {})))
        gemm(r, slots, 5, hook=hook, ringn=7)
    feature_map(m, AK, AM + 4, list(range(40)))
    for i in range(5): a("ds_write_b128 %s, %s offset:%d", v(t + 8), v(RING + 4 * i, 4), PHIR + 16 * i)
    a("s_lshr_b32 s52, %s, 1\ns_mul_i32 s52, s52, 20480\ns_sub_u32 s52, s52, %d\ns_and_b32 s53, %s, 1\ns_lshl_b32 s53, s53, 5", sW, WOI, sW)
    a("v_add_u32 %s, s52, %s\nv_add_u32 %s, s53, %s", v(t + 2), v(vWo0), v(t + 3), v(t + 2))
    a.wait(vm="fill")
    a("s_waitcnt lgkmcnt(0)\ns_barrier")
    stamp(a, "phi k")
    VB, KA = 24, 40
    for ks in range(4):
        for u in (0, 1): a("ds_read_b64_tr_b16 %s, %s offset:%d", v(VB + 4 * ks + 2 * u, 2), v(t + 3), ks * 5120 + u * 2560 + 80, tag="vb")
    slots = [dict(op=M16, acc=KA + 4 * ft, n=4, rd=[(t + 2, ks * 5120 + u * 2560 + 32 * ft) for u in (0, 1)], B=v(VB + 4 * ks, 4), **({"c": "0"} if ks == 0 else {})) for ks in range(4) for ft in range(3)]
    gemm(a, slots, 3, ringn=7)
    for i in range(6): a("v_cvt_pk_bf16_f32 %s, %s, %s", v(KA + 12 + i), v(KA + 2 * i), v(KA + 2 * i + 1))
    a("v_permlane16_swap_b32 %s, %s\nv_permlane16_swap_b32 %s, %s", v(KA + 16), v(KA + 18), v(KA + 17), v(KA + 19))
    kv_store(a, ki, v(KA + 12, 4), v(KA + 16, 4))
    stamp(a, "kv pub")
    PB, SA, C0 = XT + 24, XT + 16, XT + 26
    a("s_lshl_b32 s59, %s, 16\ns_lshl_b32 s52, %s, 10\ns_add_u32 s59, s59, s52\ns_add_u32 s59, s59, %d", sHP, sW, KVB[ki])
    a("v_lshlrev_b32 %s, 12, %s\nv_mov_b32 %s, 0x3f80\nv_mov_b32 %s, 1.0", v(PB), Ln, v(C0), v(C0 + 1))
    a("v_cmp_gt_u32 vcc, 16, %s\nv_mov_b32 %s, 0x80000000\nv_cndmask_b32 %s, %s, %s, vcc", Ln, v(PB + 1), v(PB), v(PB + 1), v(PB))
    a("s_lshl_b32 s52, %s, 6\nv_add_u32 %s, s52, %s\nv_cmp_gt_u32 vcc, 240, %s\nv_cndmask_b32 %s, %s, %s, vcc", sW, v(t + 10), Ln, v(t + 10), v(t + 11), v(PB + 1), v(vL16))
    GO = t + 11
    probe = lambda r: r("buffer_load_dword %s, %s, %s, s59 offen offset:752 sc1", v(PB + 1), v(PB), srd(S_WS), tag="kp")
    KP = CFG["kv_probe"] + (10 if L == 1 else 0)
    def hook(i):
        if i % 2 == 0 and i < KP - 8: bg.play_vm(1, 2)
        if i == KP: probe(a)
    p2(a, hook)
    bg.upto('@w')
    if L == 1: cs_add(a, 1, {3: v(AV)}, TMP)
    stamp(a, "pass2")
    a("s_waitcnt lgkmcnt(0)\ns_barrier")
    if L == 1:
        for i in range(4): a("ds_read_b128 %s, %s offset:%d", v(24 + 4 * i, 4), v(vCs), CS[1] + 192 + 16 * i, tag="cq")
        a.wait(lg="cq")
        for i in range(0, 16, 2): a("v_pk_fma_f32 %s, %s, %s, %s op_sel_hi:[1,0,1]", v(AQ + i, 2), v(24 + i, 2), v(NMR, 2), v(AQ + i, 2))
    scale_regs(a, [(AQ, 16), (AM, 4)], RSR)
    pack20(a, AQ, AQ, AM)
    lp = a.newlabel("L_kvp"); ok = a.newlabel("L_kvok")
    a.wait(vm="kp")
    a("v_cmp_eq_u32 vcc, -1, %s\ns_cbranch_vccz %s", v(PB + 1), ok)
    vm, lg = list(a.vm), list(a.lg)
    a.label(lp)
    probe(a); a("s_waitcnt vmcnt(0)\nv_cmp_eq_u32 vcc, -1, %s", v(PB + 1))
    bounded_retry(a, lp, 1)
    a.vm, a.lg = vm, lg
    a.label(ok)
    stamp(a, "kv probe")
    G = [AK + 4 * i for i in range(8)] + [148, 152, 156, 160, 60, AM, AM + 4, AQ + 12]
    def ld(r, p):
        r("s_add_u32 s95, s59, %d", 4096 * p)
        r("buffer_load_dwordx4 %s, %s, %s, s95 offen sc1", v(G[p], 4), v(GO), srd(S_WS), tag=("kv", p))
    def gsum(r):
        for i in range(8): r("v_mov_b32 %s, 0", v(SA + i))
        for p in range(16):
            r.wait(vm=("kv", p))
            for i in range(4): r("v_dot2c_f32_bf16 %s, %s, %s\nv_dot2c_f32_bf16 %s, %s, %s", v(SA + 2 * i), v(G[p] + i), v(C0), v(SA + 2 * i + 1), v(G[p] + i), v(C0 + 1))
    def gather(r):
        for p in range(16): ld(r, p)
        gsum(r)
    gs = Stream(a, lambda r: ([ld(r, p) for p in range(16)], r.label('@g'), wo_dma(r, WO2), r.label('@w')))
    gs.q += bg.q; bg = gs
    gs.play(CFG["g_pre"])
    m = Mix(a, gs, CFG["g_every"])
    order = []
    for g in range(4): order += [4 * g + i for i in range(4)] + [16 + 4 * g + i for i in range(4)]
    order += list(range(32, 40))
    FQ = AQ - 8
    feature_map(m, AQ, AM, order, out=FQ, packed=True)
    stamp(a, "phi q")
    gs.upto('@g')
    gsum(Mix(a, gs, CFG["gs_every"]))
    def check(lab):
        a("v_mul_u32_u24 %s, 2731, %s\nv_lshrrev_b32 %s, 16, %s", v(t + 3), v(t + 10), v(t + 3), v(t + 3))
        a("v_mul_u32_u24 %s, 24, %s\nv_sub_u32 %s, %s, %s", v(t + 3), v(t + 3), v(t + 3), v(t + 10), v(t + 3))
        a("v_add_f32 %s, %s, %s\nv_add_f32 %s, %s, %s\nv_add_f32 %s, %s, %s", v(t + 4), v(SA), v(SA + 2), v(t + 5), v(SA + 4), v(SA + 6), v(t + 4), v(t + 4), v(t + 5))
        a("v_cmp_gt_u32 s[90:91], 21, %s\nv_cmp_u_f32 vcc, %s, %s\ns_and_b64 vcc, vcc, s[90:91]", v(t + 3), v(t + 4), v(t + 4))
    check(None)
    ok = a.newlabel("L_gok"); lp = a.newlabel("L_glp")
    a("s_cbranch_vccz %s", ok)
    vm, lg = list(a.vm), list(a.lg)
    a.label(lp)
    a("s_waitcnt vmcnt(0)")
    gather(a); check(None)
    bounded_retry(a, lp, 1)
    a.vm, a.lg = vm, lg
    a.label(ok)
    stamp(a, "kv gathered")
    for i in range(4): a("v_cvt_pk_bf16_f32 %s, %s, %s", v(SA + 8 + i), v(SA + 2 * i), v(SA + 2 * i + 1))
    a("v_lshlrev_b32 %s, 4, %s\nv_add_u32 %s, %d, %s", v(t + 2), v(t + 10), v(t + 2), KVT, v(t + 2))
    a("ds_write_b128 %s, %s", v(t + 2), v(SA + 8, 4))
    AF = [24, 32, 40, 48, RING]
    m = Mix(a, bg, CFG["af_every"])
    for k in range(5):
        for i in range(8): m("v_mov_b32 %s, 0", v(AF[k] + i))
    a("v_bfe_u32 %s, %s, 3, 2\nv_and_b32 %s, 3, %s\nv_lshl_add_u32 %s, %s, 2, %s\nv_lshlrev_b32 %s, 4, %s", v(t), Ln, v(t + 1), Ln, v(t), v(t), v(t + 1), v(t), v(t))
    a("v_lshrrev_b32 %s, 5, %s\nv_mul_u32_u24 %s, 1920, %s\nv_add3_u32 %s, %s, %s, %s", v(t + 1), Ln, v(t + 1), v(t + 1), v(t), v(t), v(t + 1), v(t + 1))
    a("v_sub_u32 %s, %s, %s\nv_add_u32 %s, %d, %s", v(t), v(t), v(t + 1), v(t), KVT, v(t))
    a("s_waitcnt lgkmcnt(0)\ns_barrier")
    a("s_mov_b32 exec_lo, 0x0f0f0f0f\ns_mov_b32 exec_hi, 0xf0f0f0f0")
    for k in range(5):
        for tl in range(2): a("ds_read_b128 %s, %s offset:%d", v(AF[k] + 4 * tl, 4), v(t), 384 * k + 256 * tl, tag=("af", k))
    a("s_mov_b64 exec, -1")
    N1 = AK
    slots = [dict(op=M32, acc=(AV, N1)[tl], n=16, A=v(AF[k] + 4 * tl, 4), B=v(FQ + 4 * k, 4), lg=("af", k), **({"c": "0"} if k == 0 else {})) for k in range(5) for tl in range(2)]
    gemm(a, slots, 0)
    a("v_add_f32 %s, 0x%08x, %s\nv_rcp_f32 %s, %s" % (v(t), f32bits(1e-6), v(N1 + 4), v(t), v(t)))
    scale_regs(a, [(AV, 16), (N1, 4)], t)
    publish_o(a, L, N1)
    bg.upto('@w')
    return bg
```

```python
from gen1 import *
import re
PARKV = 240
NMR, RSR = 210, 0
XT = 212
M32 = "v_mfma_f32_32x32x16_bf16"
M16 = "v_mfma_f32_16x16x32_bf16"
_uid = [0]
def uid():
    _uid[0] += 1
    return _uid[0]

def gemm(a, slots, depth, hook=None, ring=RING, ringn=9):
    u = uid()
    rl = ring if isinstance(ring, list) else [ring + 4 * i for i in range(ringn)]
    ringn = len(rl)
    rs = [i for i, s in enumerate(slots) if "rd" in s]
    pos = {i: k for k, i in enumerate(rs)}
    def issue(k):
        if k >= len(rs): return
        s = slots[rs[k]]; r = rl[k % ringn]
        if len(s["rd"]) == 1:
            a("ds_read_b128 %s, %s offset:%d", v(r, 4), v(s["rd"][0][0]), s["rd"][0][1], tag=("g", u, k))
            return
        for h, (ad, off) in enumerate(s["rd"]):
            a("ds_read_b64_tr_b16 %s, %s offset:%d", v(r + 2 * h, 2), v(ad), off, tag=("g", u, k))
    for k in range(depth): issue(k)
    for i, s in enumerate(slots):
        if s.get("pre"): s["pre"]()
        if "rd" in s:
            k = pos[i]; A = v(rl[k % ringn], 4)
            a.wait(vm=s.get("vm"), lg=("g", u, k))
        else:
            A = s["A"]; a.wait(vm=s.get("vm"), lg=s.get("lg"))
        D = s["acc"] if isinstance(s["acc"], str) else v(s["acc"], s["n"])
        if s.get("swap"): a("%s %s, %s, %s, %s", s["op"], D, s["B"], A, s.get("c", D))
        else: a("%s %s, %s, %s, %s", s["op"], D, A, s["B"], s.get("c", D))
        if "rd" in s: issue(pos[i] + depth)
        if hook: hook(i)

def rd_kvm(s, win):
    hi = s >= 20; s2 = s - 20 * hi
    ad = (vWm1 if hi else vWm0) if win == 128 else (vWkv1 if hi else vWkv0)
    return [(ad, s2 * 2816 + u * 176 + win) for u in (0, 1)]
def rf_kvm(s, k):
    hi = s >= 20
    return [(((vWm1 if hi else vWm0) if k == 2 else (vWkv1 if hi else vWkv0)), (s - 20 * hi) * 2816 + 1024 * k)]
def rf_q(s): return [(vWq, s * 1024)]
def frag_regs(a):
    t = TMP; L = v(vLane)
    a("v_mov_b32 %s, %s\nv_add_u32 %s, %d, %s\nv_add_u32 %s, %d, %s", v(vWkv0), v(vL16), v(vWkv1), 20 * 2816, v(vL16), v(vWq), QI, v(vL16))
    a("v_and_b32 %s, 31, %s\nv_min_u32 %s, 23, %s\nv_lshrrev_b32 %s, 5, %s\nv_mul_u32_u24 %s, 384, %s\nv_lshl_add_u32 %s, %s, 4, %s\nv_add_u32 %s, %d, %s", v(t), L, v(t), v(t), v(t + 1), L, v(t + 1), v(t + 1), v(vWm0), v(t), v(t + 1), v(vWm1), 20 * 2816, v(vWm0))
def rd_q(s): return [(vWq, s * 1024 + u * 256) for u in (0, 1)]

def re_sg(x, sg):
    for i in range(4): x = re.sub(r"\bs%d\b" % (52 + i), "s#%d" % i, x)
    for i in range(4): x = x.replace("s#%d" % i, "s%d" % sg[i])
    return x
def fills(a, which, F0=XT):
    F = v(F0, 4)
    _a = a
    def a(x, *ar, **k): _a(x % ar if ar else x, tag="fill")
    for kind, i in which:
        if kind == "o": o_store(a, i, F, F, F, (70, 71, 72, 73))
        elif kind == "x": x_store(a, i, F, F, F, v(F0, 2), (70, 71, 72, 73))
        elif kind == "kv": kv_store(a, i, F, F, (70, 71, 72, 73), TMP + 8)
        elif kind == "h": halo_store(_a, i, [F] * 8, (70, 71, 72, 73), TMP + 8)

def o_store(a, i, d0, d1, d2, sg=(52, 53, 54, 55)):
    _a = a
    def a(x, *ar, **k): _a(re_sg(x % ar if ar else x, sg), **k)
    a("s_mul_i32 s52, %s, 40960\ns_lshl_b32 s53, %s, 10\ns_add_u32 s52, s52, %d\ns_add_u32 s53, s53, s52", sT, sHP, OB[i])
    a("s_lshl_b32 s54, %s, 8\ns_add_u32 s54, s54, s52\ns_add_u32 s54, s54, 16384", sHP)
    a("buffer_store_dwordx4 %s, %s, %s, s53 offen sc1", d0, v(vOst), srd(S_WS))
    a("buffer_store_dwordx4 %s, %s, %s, s53 offen offset:256 sc1", d1, v(vOst), srd(S_WS))
    a("s_mov_b64 exec, 0xffffffff")
    a("buffer_store_dwordx4 %s, %s, %s, s54 offen sc1", d2, v(vOst), srd(S_WS))
    a("s_mov_b64 exec, -1")

def x_store(a, i, d0, d1, d2, dst, sg=(52, 53, 54, 55)):
    _a = a
    def a(x, *ar, **k): _a(re_sg(x % ar if ar else x, sg), **k)
    a("s_lshr_b32 s52, %s, 1\ns_mul_i32 s52, s52, 40960\ns_mul_i32 s53, %s, 5120\ns_add_u32 s52, s52, s53\ns_add_u32 s52, s52, %d\ns_add_u32 s53, s52, 4096", sU, sC, XB[i])
    a("s_lshl_b32 s54, %s, 10\ns_lshl_b32 s55, %s, 7\ns_add_u32 s54, s54, s55\ns_add_u32 s54, s54, %d", sU, sC, ST[i])
    a("buffer_store_dwordx4 %s, %s, %s, s52 offen sc1", d0, v(vXst), srd(S_WS))
    a("buffer_store_dwordx4 %s, %s, %s, s52 offen offset:2048 sc1", d1, v(vXst), srd(S_WS))
    a("s_mov_b32 exec_lo, 0xffff\ns_mov_b32 exec_hi, 0xffff")
    a("buffer_store_dwordx4 %s, %s, %s, s53 offen sc1", d2, v(vXst), srd(S_WS))
    if dst is not None: st_store(a, dst)
    else: a("s_mov_b64 exec, -1")
def st_store(a, dst):
    a("s_mov_b64 exec, 0xffff")
    a("buffer_store_dwordx2 %s, %s, %s, s54 offen sc1", dst, v(vStSt), srd(S_WS))
    a("s_mov_b64 exec, -1")

def kv_store(a, i, d0, d1, sg=(52, 53, 54, 55), t=TMP):
    _a = a
    def a(x, *ar, **k): _a(re_sg(x % ar if ar else x, sg), **k)
    a("v_lshrrev_b32 %s, 4, %s\nv_mul_u32_u24 %s, 384, %s\nv_and_b32 %s, 15, %s\nv_lshl_add_u32 %s, %s, 4, %s", v(t), v(vLane), v(t), v(t), v(t + 1), v(vLane), v(t), v(t + 1), v(t))
    a("s_lshl_b32 s52, %s, 4\ns_add_u32 s52, s52, %s\ns_lshl_b32 s52, s52, 12\ns_add_u32 s52, s52, %d", sHP, sR, KVB[i])
    a("s_lshr_b32 s53, %s, 1\ns_mul_i32 s53, s53, 1920\ns_add_u32 s52, s52, s53\ns_and_b32 s53, %s, 1\ns_lshl_b32 s54, s53, 8\ns_add_u32 s52, s52, s54", sW, sW)
    a("s_cmp_eq_u32 s53, 0\ns_cselect_b32 s54, -1, 0x00ff00ff\ns_and_b32 s55, s54, 0xffff")
    a("s_mov_b32 exec_lo, s54\ns_mov_b32 exec_hi, s54")
    a("buffer_store_dwordx4 %s, %s, %s, s52 offen sc1", d0, v(t), srd(S_WS))
    a("s_mov_b32 exec_lo, s55\ns_mov_b32 exec_hi, 0")
    a("buffer_store_dwordx4 %s, %s, %s, s52 offen offset:1536 sc1", d1, v(t), srd(S_WS))
    a("s_mov_b64 exec, -1")

def halo_store(a, i, d, sg=(52, 53, 54, 55), t=TMP):
    _a = a
    def a(x, *ar, **k): _a(re_sg(x % ar if ar else x, sg), tag="nocount")
    a("v_lshrrev_b32 %s, 5, %s\nv_lshlrev_b32 %s, 1, %s\nv_lshl_add_u32 %s, %s, 8, %s", v(t), v(vLane), v(t + 1), v(vStSt), v(t), v(t), v(t + 1))
    a("s_lshl_b32 s52, %s, 4\ns_add_u32 s52, s52, %s\ns_lshl_b32 s52, s52, 12\ns_add_u32 s52, s52, %d", sR, sHP, HB[i])
    a("s_cmp_eq_u32 %s, 3\ns_cselect_b32 s54, 0xffff0000, 0\ns_mov_b32 exec_lo, s54\ns_mov_b32 exec_hi, s54", sW)
    lb = _a.newlabel("L_hs")
    a("s_cbranch_scc0 %s", lb)
    for k in range(8): a("buffer_store_dwordx4 %s, %s, %s, s52 offen offset:%d sc1", d[k], v(t), srd(S_WS), 512 * k)
    _a.label(lb)
    a("s_mov_b64 exec, -1")
HLD = 24
def halo_load(a, i):
    a("s_lshl_b32 s94, %s, 4\ns_add_u32 s94, s94, %s\ns_lshl_b32 s94, s94, 12\ns_add_u32 s94, s94, %d", sR, sHP, HB[i] - 65536)
    for k in range(4): a("buffer_load_dwordx4 %s, %s, %s, s94 offen offset:%d sc1", v(HLD + 4 * k, 4), v(vHx), srd(S_WS), 1024 * k, tag="hl")
def halo_consume(a, i, retry, redo):
    t = HLD + 16
    sk, chk, lp = a.newlabel("L_hk"), a.newlabel("L_hc"), a.newlabel("L_hl")
    a("s_cmp_lg_u32 %s, 0\ns_cbranch_scc1 %s", sW, sk)
    vm, lg = list(a.vm), list(a.lg)
    a.wait(vm="hl")
    a("s_branch %s", chk)
    a.label(lp)
    halo_load(a, i)
    a("s_waitcnt vmcnt(0)")
    a.label(chk)
    a("v_max3_u32 %s, %s, %s, %s", v(t), v(HLD), v(HLD + 1), v(HLD + 2))
    for k in range(3, 15, 2): a("v_max3_u32 %s, %s, %s, %s", v(t), v(t), v(HLD + k), v(HLD + k + 1))
    a("v_max_u32 %s, %s, %s\nv_cmp_eq_u32 vcc, -1, %s", v(t), v(t), v(HLD + 15), v(t))
    retry(a, lp, 1)
    for k in range(4): a("ds_write_b128 %s, %s", v(vHD[k]), v(HLD + 4 * k, 4))
    a("s_waitcnt lgkmcnt(0)")
    redo()
    a("s_waitcnt lgkmcnt(0)")
    a.vm, a.lg = vm, lg
    a.label(sk)

TKV = 28
def token_load(a, tag=None):
    a("s_lshl_b32 s94, %s, 12\nv_mov_b32 %s, s94\ns_mov_b64 exec, 1", sW, v(TKV + 2))
    a("buffer_load_dwordx2 %s, %s, %s, 0 offen sc1\ns_mov_b64 exec, -1", v(TKV, 2), v(TKV + 2), srd(S_DBG), tag=tag)
def arrive(a, base, retry=None):
    t = TMP
    sk = a.newlabel("L_ar")
    a("s_cmp_lg_u32 %s, 0\ns_cbranch_scc1 %s", sW, sk)
    vm0, lg0 = list(a.vm), list(a.lg)
    if retry:
        ok, lp = a.newlabel("L_tkk"), a.newlabel("L_tkp")
        a("s_mov_b64 exec, 1\nv_cmp_eq_u32 vcc, 0, %s\ns_cbranch_vccz %s", v(TKV), ok)
        a.label(lp)
        token_load(a)
        a("s_waitcnt vmcnt(0)\ns_mov_b64 exec, 1\nv_cmp_eq_u32 vcc, 0, %s", v(TKV))
        retry(a, lp, 4)
        a.label(ok)
        a("v_readfirstlane_b32 s100, %s\nv_readfirstlane_b32 s101, %s", v(TKV), v(TKV + 1))
    a("s_lshl_b32 s56, %s, 4\ns_add_u32 s56, s56, %s\ns_lshl_b32 s56, s56, 6\ns_add_u32 s56, s56, %d\ns_mov_b64 exec, 1", sR, sHP, FLG + base)
    a("v_mov_b32 %s, s100\nv_mov_b32 %s, s101\nv_mov_b32 %s, 0", v(t + 10), v(t + 11), v(t + 7))
    a("buffer_store_dwordx2 %s, %s, %s, s56 offen sc1\ns_mov_b64 exec, -1", v(t + 10, 2), v(t + 7), srd(S_WS))
    a.vm, a.lg = vm0, lg0
    a.label(sk)

def init_probe(r, base, ta=TMP + 8):
    L = v(vLane); A_, B_ = v(ta), v(XT + 24)
    r("v_lshlrev_b32 %s, 9, %s\ns_lshl_b32 s94, %s, 6\nv_add_u32 %s, s94, %s", A_, L, sC, A_, A_)
    r("v_lshlrev_b32 %s, 6, %s\ns_lshl_b32 s94, %s, 10\ns_sub_u32 s94, s94, 2048\nv_add_u32 %s, s94, %s", B_, L, sR, B_, B_)
    r("v_cmp_gt_u32 vcc, 32, %s\nv_cndmask_b32 %s, %s, %s, vcc", L, A_, B_, A_)
    r("s_lshl_b32 s94, %s, 29\nv_or_b32 %s, s94, %s", sW, A_, A_)
    r("s_mov_b32 s94, %d\ns_mov_b32 exec_hi, 0xffff", FLG)
    r("buffer_load_dwordx2 %s, %s, %s, s94 offen offset:%d sc1\ns_mov_b64 exec, -1", v(XT + 24, 2), A_, srd(S_WS), base, tag="ip")
L1CFG = dict(aq=1, ipd=20, ph=(0, 2, 4, 6), rot=3, every=2, la=0, pre=4, sld=5, sst=8, st=(), hld=44, gates={'0': [3], '3': [6], '6': [8], '7': [9, 'early']})
PK = list(range(176, 187)); PQ, PX = 187, 188
PKS = {'pk': PK, 'pq': PQ}
def raw_dma(r, n, srdw, tag, dst=None):
    r("s_add_u32 s95, s62, %d", (n // 11) * 256 * 3840)
    if dst is None:
        r("s_lshl_b32 s94, %s, 10\ns_add_u32 s94, s94, %d", sW, 4096 * n)
        if n == 27: r("s_cmp_lt_u32 %s, 2\ns_cselect_b32 s94, s94, 0x30000", sW)
        r("s_mov_b32 m0, s94")
        r("buffer_load_dwordx4 %s, %s, s95 offen lds", v(PKS['pk'][n % 11]), srd(srdw), tag=tag)
    else:
        r("buffer_load_dwordx4 %s, %s, %s, s95 offen", dst, v(PKS['pk'][n % 11]), srd(srdw), tag=tag)
def raw_q(r, p, srdw, tag):
    r("s_lshl_b32 s94, %s, 10\ns_add_u32 s94, s94, %d\ns_mov_b32 m0, s94", sW, QI + 4096 * p)
    r("s_mul_i32 s95, %s, %d\ns_add_u32 s95, s95, s62\ns_add_u32 s95, s95, %d", sW, 16 * 3840, p * 64 * 3840)
    r("buffer_load_dwordx4 %s, %s, s95 offen lds", v(PKS['pq']), srd(srdw), tag=tag)

def l1_startup(a, retry):
    WS_, WD_ = 59, 63
    XR = [224, 232, 240, 248]
    SA_, QA_, SB_, QB_ = 189, 190, 191, XT + 7
    t = TMP; L = v(vLane)
    RPS, RPD, RTA, RDAT = 56, 57, 58, [192, 196, 44]
    def rp_pat(r):
        A_, B_, C_ = v(t + 4), v(t + 5), v(t + 6)
        r("s_add_u32 s56, %s, 1\ns_and_b32 s56, s56, 3\ns_mul_i32 s56, s56, 1280\nv_add_u32 %s, s56, %s", sW, v(RPS), v(PQ))
        r("v_and_b32 %s, 3, %s\nv_min_u32 %s, 2, %s\nv_mul_u32_u24 %s, 1280, %s\nv_lshrrev_b32 %s, 2, %s\nv_mul_u32_u24 %s, 3840, %s\nv_add3_u32 %s, %s, %s, 32", A_, L, A_, A_, A_, A_, B_, L, B_, B_, A_, A_, B_)
        r("s_cmp_eq_u32 %s, 2\ns_cselect_b64 vcc, -1, 0\nv_cndmask_b32 %s, %s, %s, vcc", sW, v(RPS), v(RPS), A_)
        r("v_sub_u32 %s, %s, %s\nv_add_u32 %s, %s, %s\nv_subrev_u32 %s, %d, %s", A_, v(SW), v(vL16), v(RTA), v(vWq), A_, v(RTA), QI, v(RTA))
        r("v_bfe_u32 %s, %s, 4, 1\nv_bfe_u32 %s, %s, 1, 1\nv_lshl_add_u32 %s, %s, 1, %s\nv_and_b32 %s, 1, %s\nv_mul_u32_u24 %s, 3, %s\nv_sub_u32 %s, %s, %s\nv_lshlrev_b32 %s, 3, %s\nv_add_u32 %s, %s, %s", A_, L, B_, L, A_, A_, B_, B_, L, B_, B_, A_, A_, B_, A_, A_, A_, A_, v(RTA))
        r("s_cmp_eq_u32 %s, 2\ns_cselect_b64 vcc, -1, 0\nv_cndmask_b32 %s, %s, %s, vcc", sW, v(RTA), v(RTA), A_)
        r("v_lshrrev_b32 %s, 5, %s\nv_lshlrev_b32 %s, 7, %s\nv_sub_u32 %s, %s, %s\nv_and_b32 %s, 31, %s\nv_mov_b32 %s, 0x80000000", A_, L, A_, A_, A_, v(vL16), A_, B_, L, C_)
        r("v_cmp_gt_u32 vcc, 24, %s\nv_cndmask_b32 %s, %s, %s, vcc", B_, A_, C_, A_)
        r("s_cmp_eq_u32 %s, 2\ns_cselect_b64 vcc, -1, 0\nv_cndmask_b32 %s, %s, %s, vcc", sW, v(RPD), v(vL16), A_)
    def rp_step(r, i):
        if i < 2: r("s_add_u32 s95, %s, %d", sR, 16 * i)
        else: r("s_cmp_lt_u32 %s, 8\ns_cselect_b32 s95, 32, 0\ns_add_u32 s95, s95, %s", sR, sR)
    def rp_load(r, srdw, tag):
        for i in range(3):
            rp_step(r, i)
            r("s_mul_i32 s95, s95, %d\ns_add_u32 s95, s95, s62", 16 * 3840)
            r("buffer_load_dwordx4 %s, %s, %s, s95 offen", v(RDAT[i], 4), v(RPS), srd(srdw), tag=tag)
    def rp_tr(r, tagw):
        r.wait(vm=tagw)
        r("s_mov_b32 exec_hi, -1")
        for i in range(3):
            r("ds_write_b128 %s, %s", v(SW), v(RDAT[i], 4))
            for u in range(2): r("ds_read_b64_tr_b16 %s, %s offset:%d", v(RDAT[i] + 2 * u, 2), v(RTA), 256 * u, tag="wt")
        r("s_mov_b64 exec, -1")
    def rp_store(r, which, tag):
        r.wait(lg="wt")
        for i in range(3):
            rp_step(r, i)
            r("s_cmp_eq_u32 %s, 3\ns_movk_i32 s94, 2816\ns_cselect_b32 s94, 1024, s94\ns_mul_i32 s95, s95, s94\ns_cselect_b32 s94, %d, s97\ns_add_u32 s95, s95, s94", sW, QI)
            r("s_mul_i32 s94, %s, 153600\ns_add_u32 s94, s94, s95\ns_add_u32 s94, s94, %d", sHP, PW[which])
            r("buffer_store_dwordx4 %s, %s, %s, s94 offen sc1", v(RDAT[i], 4), v(RPD), srd(S_WS), tag=tag)
    lb = a.newlabel("L_tok")
    a("s_or_b32 s52, s2, %s\ns_cmp_lg_u32 s52, 0\ns_cbranch_scc1 %s", sW, lb)
    a("s_memrealtime s[92:93]\nv_mov_b32 %s, 0\ns_waitcnt lgkmcnt(0)\ns_or_b32 s92, s92, 1\nv_mov_b32 %s, s92\nv_mov_b32 %s, s93\ns_mov_b64 exec, 1", v(TKV + 2), v(TKV), v(TKV + 1))
    a("buffer_store_dwordx2 %s, %s, %s, 0 offen sc1\ns_mov_b64 exec, -1", v(TKV, 2), v(TKV + 2), srd(S_DBG), tag="nocount")
    a.label(lb)
    a("v_lshrrev_b32 %s, 2, %s\nv_mul_u32_u24 %s, 1280, %s", v(t), L, v(t), v(t))
    a("v_lshrrev_b32 %s, 4, %s\nv_xor_b32 %s, %s, %s\nv_and_b32 %s, 3, %s", v(t + 1), L, v(t + 1), v(t + 1), L, v(t + 1), v(t + 1))
    a("v_lshl_add_u32 %s, %s, 4, %s", v(PX), v(t + 1), v(t))
    a("s_mul_i32 s86, %s, 40960\ns_add_u32 s87, s86, 20480\ns_mul_i32 s63, %s, 160\ns_mul_i32 s62, %s, 80\ns_lshl_b32 s97, %s, 10", sT, sC, sHP, sW)
    stamp(a, "start")
    a("s_and_b32 s96, %s, 3\ns_mul_i32 s96, s96, 3\ns_add_u32 s96, s96, %s", sR, sC)
    if not L1CFG["rot"]: a("s_mov_b32 s96, 0")
    if L1CFG["rot"] == 2: a("s_sub_u32 s96, s96, %s", sC)
    if L1CFG["rot"] == 3: a("s_lshr_b32 s91, %s, 1\ns_sub_u32 s96, s96, s91", sC)
    if L1CFG["rot"] == 4: a("s_mov_b32 s96, %s", sC)
    def ptab(p): a("s_add_u32 s%d, s96, %d\ns_cmp_ge_u32 s%d, 10\ns_cselect_b32 s91, 10, 0\ns_sub_u32 s%d, s%d, s91\ns_mov_b32 s96, s%d" % (74 + p, min(p, 1), 74 + p, 74 + p, 74 + p, 74 + p))
    def xld(r, un):
        for h in range(2):
            r("s_lshl_b32 s90, s%d, 7\ns_add_u32 s90, s90, s%d", 74 + un // 2, 86 + h)
            r("buffer_load_dwordx4 %s, %s, %s, s90 offen offset:%d", ag(8 * un + 4 * h, 4), v(PX), srd(S_X), 64 * (un % 2), tag=("u", un))
    def wld(r, p):
        lo = 0 if p == 0 else (11 * (p - 1) + 10) // 4 + 1
        hi = min((11 * p + 10) // 4, 27)
        for n in range(lo, hi + 1):
            if n < 11:
                r("s_add_u32 s58, %s, %d\ns_cmp_ge_u32 s58, 11\ns_cselect_b32 s57, 11, 0\ns_sub_u32 s58, s58, s57", sW, 4 * n % 11)
                pat_kvm(r, PK[n], "s58", t)
            p0, p1 = 4 * n // 11, min((4 * n + 3) // 11, 9)
            r("s_add_u32 s94, s97, %d", 4096 * n)
            if n == 27: r("s_cmp_lt_u32 %s, 2\ns_cselect_b32 s94, s94, 0x30000", sW)
            r("s_mov_b32 m0, s94")
            if p1 != p0: r("s_cmp_ge_u32 %s, %d\ns_cselect_b32 s95, s%d, s%d\ns_mul_i32 s95, s95, %d", sW, 11 * p1 - 4 * n, 74 + p1, 74 + p0, 64 * 3840)
            else: r("s_mul_i32 s95, s%d, %d", 74 + p0, 64 * 3840)
            r("s_add_u32 s95, s95, s62")
            r("buffer_load_dwordx4 %s, %s, s95 offen lds", v(PK[n % 11]), srd(S_WA), tag=("p", p))
    def qld(r, p):
        r("s_add_u32 s94, s97, %d\ns_mov_b32 m0, s94", QI + 4096 * p)
        r("s_lshl_b32 s95, s%d, 2\ns_add_u32 s95, s95, %s\ns_mul_i32 s95, s95, %d\ns_add_u32 s95, s95, s62", 74 + p, sW, 16 * 3840)
        r("buffer_load_dwordx4 %s, %s, s95 offen lds", v(PQ), srd(S_WA), tag="qd")
    ptab(0); ptab(1)
    xld(a, 0); xld(a, 1); wld(a, 0)
    for p in range(2, 10): ptab(p)
    a("s_lshr_b32 s52, s2, 3\ns_lshl_b32 s52, s52, 2\ns_add_u32 s52, s52, %s\ns_lshl_b32 s52, s52, 10", sW)
    a("s_min_u32 s52, s52, (L_end-L_start-1024)&0xfffffff0")
    a("v_add_u32 %s, s52, %s", v(t + 8), v(vL16))
    a("global_load_dwordx4 %s, %s, s[84:85]", ag(252, 4), v(t + 8), tag="pf")
    xld(a, 2); xld(a, 3); wld(a, 1)
    addr_regs(a)
    pat_q(a, PQ, t)
    SW, SR0, SR1 = XT + 4, XT + 5, XT + 6
    a("s_lshl_b32 s52, %s, 11\ns_add_u32 s52, s52, %d", sW, STG)
    a("v_add_u32 %s, s52, %s", v(SW), v(vL16))
    a("v_and_b32 %s, 31, %s\nv_lshlrev_b32 %s, 6, %s\nv_add_u32 %s, s52, %s", v(t), L, v(t), v(t), v(t), v(t))
    a("v_bfe_u32 %s, %s, 2, 2\nv_lshrrev_b32 %s, 5, %s\nv_xor_b32 %s, %s, %s", v(t + 1), L, v(t + 2), L, v(t + 1), v(t + 1), v(t + 2))
    a("v_lshl_add_u32 %s, %s, 4, %s", v(SR0), v(t + 1), v(t))
    a("v_xor_b32 %s, 32, %s", v(SR1), v(SR0))
    for i in range(4): a("v_mov_b32 %s, -1\nv_mov_b32 %s, 0x3f803f80", v(XT + i), v(XT + 8 + i))
    for r_ in (SA_, QA_, SB_, QB_): a("v_mov_b32 %s, 0", v(r_))
    a("v_add_u32 %s, %d, %s", v(t), SP, v(vL16))
    for i in range(4): a("v_mov_b32 %s, 0", v(t + 4 + i))
    a("ds_write_b128 %s, %s", v(t), v(t + 4, 4))
    a("s_lshl_b32 s52, %s, 6\nv_add_u32 %s, s52, %s\nv_add_u32 %s, 128, %s\ns_cmp_lt_u32 %s, 2\ns_cselect_b64 vcc, -1, 0", sW, v(60), v(vWkv0), v(61), v(vWm0), sW)
    a("v_cndmask_b32 %s, %s, %s, vcc\nv_add_u32 %s, %d, %s", v(60), v(61), v(60), v(61), 20 * 2816, v(60))
    ONES = v(XT + 8, 4)
    PRE = L1CFG["pre"]
    for p in range(2, PRE): xld(a, 2 * p); xld(a, 2 * p + 1); wld(a, p)
    stamp(a, "l1 issued")
    def pats(r):
        r("s_lshl_b32 s58, %s, 1\ns_add_u32 s58, s58, %s\ns_lshl_b32 s58, s58, 2\ns_add_u32 s58, s58, %s", sR, sH64, sW)
        pat_wo(r, WS_, "s58", t)
        r("s_cmp_lt_u32 s58, 100\ns_cselect_b32 s53, 0, 0x80000000\ns_lshl_b32 s58, s58, 10\ns_or_b32 s58, s58, s53")
        r("v_or_b32 %s, s53, %s\nv_add_u32 %s, s58, %s", v(WS_), v(WS_), v(WD_), v(vL16))
        rp_pat(r)
    def wo_ld(r, k, tag): r("buffer_load_dwordx4 %s, %s, %s, s63 offen", v(48 + 4 * k, 4), v(WS_), srd(S_WOB if k else S_WOA), tag=tag)
    def wo_tr(r, k):
        r("v_sub_u32 %s, %s, %s\nv_lshl_add_u32 %s, %s, 3, %s", v(43), v(SW), v(vL16), v(43), L, v(43))
        r("s_mov_b32 exec_hi, -1")
        r("ds_write_b128 %s, %s", v(SW), v(48 + 4 * k, 4))
        for u in range(2): r("ds_read_b64_tr_b16 %s, %s offset:%d", v(48 + 4 * k + 2 * u, 2), v(43), 512 * u, tag="wt")
        r("s_mov_b64 exec, -1")
    def wo_st(r, k, tag):
        r.wait(lg="wt")
        r("s_mul_i32 s94, %s, 102400\ns_add_u32 s94, s94, %d", sC, PO[k])
        r("buffer_store_dwordx4 %s, %s, %s, s94 offen sc1", v(48 + 4 * k, 4), v(WD_), srd(S_WS), tag=tag)
    def res_ld(r):
        r("v_and_b32 %s, 15, %s\nv_mul_u32_u24 %s, 1280, %s\nv_lshrrev_b32 %s, 4, %s\nv_lshl_add_u32 %s, %s, 3, %s", v(42), L, v(42), v(42), v(40), L, v(42), v(40), v(42))
        r("s_mul_i32 s98, %s, 20480\ns_add_u32 s98, s98, s63", sU)
        for i in range(5): r("buffer_load_dwordx2 %s, %s, %s, s98 offen offset:%d", v(RES + 2 * i, 2), v(42), srd(S_X), 32 * i, tag="res")
    vq = Stream(a); lq = Stream(a); eq = Stream(a, pats)
    def loads(r):
        for p in range(PRE, 10):
            xld(r, 2 * p); xld(r, 2 * p + 1); r.label("@x%d" % p); wld(r, p); r.label("@w%d" % p)
            if p == L1CFG["sld"]: r.label("@sl"); token_load(r); rp_load(r, S_WB, "sl"); wo_ld(r, 0, "sl"); fills(r, [("h", 0), ("o", 0)])
            if p == L1CFG["sst"]: r.label("@t"); rp_store(r, 1, "early"); wo_st(r, 0, "early"); r.label("@s")
        for p in range(10): qld(r, p)
        r.label("@q")
        rp_load(r, S_WA, "sl2"); wo_ld(r, 1, "sl2"); res_ld(r)
        fills(r, [("kv", 0), ("x", 0)])
        rp_tr(r, "sl2"); wo_tr(r, 1); rp_store(r, 0, "late"); wo_st(r, 1, "late")
        fills(r, [("o", 1)])
    lq.add(loads)
    sops = []
    play0 = lq.play
    def play(k=1):
        for _ in range(k):
            if lq.q and any(it[0] == "l" and it[1] == "@sl" for it in lq.q[0]): eq.flush()
            if lq.q and any(it[0] == "l" and it[1] == "@t" for it in lq.q[0]):
                while len(sops) % 5 in (1, 2): sops.pop(0)()
                rp_tr(a, "sl"); wo_tr(a, 0)
            play0(1)
    lq.play = play
    def gate(upto, extra=None):
        lq.upto("@w%d" % min(upto + L1CFG["la"], 9))
        if extra: lq.upto("@q" if L1CFG["aq"] else "@s")
        a.wait(vm=[("p", upto), extra])
        a("s_barrier")
        if upto in L1CFG["st"]: stamp(a, "l1 g%d" % upto)
        if extra: arrive(a, 0, retry)
    def stage_ops(un):
        b = XR[un % 4]
        def o0():
            lq.upto("@x%d" % (un // 2)); a.wait(vm=("u", un))
            for i in range(4): a("v_accvgpr_read_b32 %s, %s", v(b + i), ag(8 * un + i))
        def o1():
            for i in range(4, 8): a("v_accvgpr_read_b32 %s, %s", v(b + i), ag(8 * un + i))
            def st(r):
                for i in range(8):
                    S_, Q_ = (SA_, QA_) if i < 4 else (SB_, QB_)
                    r("v_dot2c_f32_bf16 %s, %s, %s\nv_dot2c_f32_bf16 %s, %s, %s", v(S_), v(b + i), v(vONES), v(Q_), v(b + i), v(b + i))
            vq.add(st)
        return [o0, o1, lambda: (a("ds_write_b128 %s, %s", v(SW), ag(8 * un, 4)), a("ds_write_b128 %s, %s offset:1024", v(SW), ag(8 * un + 4, 4))),
                lambda: a("ds_read_b128 %s, %s", ag(8 * un, 4), v(SR0), tag=("xf", un)), lambda: a("ds_read_b128 %s, %s", ag(8 * un + 4, 4), v(SR1), tag=("xf", un))]
    for un in (0, 1):
        for o in stage_ops(un): o()
    gate(0)
    slots = []; DEP = 6
    for s in range(40):
        B = ag(4 * s, 4); c = {"c": "0"} if s == 0 else {}
        first = {"pre": (lambda un=s // 2: a.wait(lg=("xf", un)))}
        slots += [dict(op=M32, acc=AK, n=16, rd=rd_kvm(s, 0), B=B, **first, **c), dict(op=M32, acc=AV, n=16, rd=rd_kvm(s, 64), B=B, **c),
                  dict(op=M32, acc=AM, n=16, rd=rd_kvm(s, 128), B=B, **c),
                  dict(op=M32, acc=ag(160, 16), n=16, rd=[(60 + (s >= 20), (s % 20) * 2816 + u * 176) for u in (0, 1)], B=ONES, swap=True, **c)]
    GATES = L1CFG["gates"]
    def hook(i):
        p, j = divmod(i, 16)
        if j == 0 and p < 9: sops.extend(stage_ops(2 * p + 2) + stage_ops(2 * p + 3))
        if sops: sops.pop(0)()
        if j == 9 and str(p) in GATES: gate(*GATES[str(p)])
        vq.play(3); eq.play(3)
        if (i % 8) in L1CFG["ph"] and not any(it[:2] == ("l", "@q") for it in lq.q[0]): lq.play(1)
    gemm(a, slots, DEP, hook=hook)
    assert not len(eq)
    vq.flush(); lq.upto("@q")
    stamp(a, "l1 mfma end")
    for r_ in (SA_, QA_, SB_, QB_):
        a("v_add_f32_dpp %s, %s, %s quad_perm:[1,0,3,2] row_mask:0xf bank_mask:0xf", v(r_), v(r_), v(r_))
    for r_ in (SA_, QA_, SB_, QB_):
        a("v_add_f32_dpp %s, %s, %s quad_perm:[2,3,0,1] row_mask:0xf bank_mask:0xf", v(r_), v(r_), v(r_))
    a("v_and_b32 %s, 15, %s\nv_lshlrev_b32 %s, 4, %s", v(t + 2), L, v(t + 2), v(t + 2))
    for k, r_ in enumerate((SA_, QA_, SB_, QB_)): a("ds_bpermute_b32 %s, %s, %s", v(t + 8 + k), v(t + 2), v(r_), tag="bp")
    cs_add(a, 0, ag(160), put=True)
    a("v_and_b32 %s, 16, %s\nv_cmp_eq_u32 vcc, 0, %s\ns_waitcnt lgkmcnt(0)\ns_barrier", v(t + 3), L, v(t + 3))
    a("v_cndmask_b32 %s, %s, %s, vcc\nv_cndmask_b32 %s, %s, %s, vcc", v(t), v(t + 10), v(t + 8), v(t + 1), v(t + 11), v(t + 9))
    return ONES, lq

def cs_add(a, which, tiles, t=TMP, put=False):
    L = v(vLane)
    a("v_bfe_u32 %s, %s, 2, 1\nv_lshlrev_b32 %s, 8, %s\nv_and_b32 %s, 3, %s\nv_lshl_add_u32 %s, %s, 2, %s", v(t), L, v(t), v(t), v(t + 1), L, v(t), v(t + 1), v(t))
    a("v_bfe_u32 %s, %s, 3, 2\nv_lshl_add_u32 %s, %s, 4, %s\nv_add_u32 %s, %d, %s", v(t + 1), L, v(t), v(t + 1), v(t), v(t), SP, v(t))
    if put:
        a("s_min_u32 s52, %s, 2\ns_lshl_b32 s52, s52, 6\nv_add_u32 %s, s52, %s\ns_mov_b64 exec, 0xffffffff", sW, v(t), v(t))
        a("ds_write_b32 %s, %s offset:%d\ns_mov_b64 exec, -1", v(t), tiles, CS[which])
        return
    a("s_mov_b64 exec, 0xffffffff")
    for k, r in tiles.items(): a("ds_add_f32 %s, %s offset:%d", v(t), r, CS[which] + 64 * k)
    a("s_mov_b64 exec, -1")
def cs_steps(a, s0, n, acc, ones, first, ring, t=TMP):
    a("s_lshl_b32 s52, %s, 10\nv_add_u32 %s, s52, %s\nv_add_u32 %s, 2048, %s\ns_cmp_lt_u32 %s, 2\ns_cselect_b64 vcc, -1, 0", sW, v(t), v(vWkv0), v(t + 1), v(vWm0), sW)
    a("v_cndmask_b32 %s, %s, %s, vcc\nv_add_u32 %s, %d, %s", v(t), v(t + 1), v(t), v(t), 2816 * s0, v(t))
    gemm(a, [dict(op=M32, acc=acc, n=16, rd=[(t, s * 2816)], B=ones, swap=True, **({"c": "0"} if s == 0 and first else {})) for s in range(n)], len(ring) - 1, ring=ring)

def stats_fin(a, S, Q, NM, RS):
    a("s_mov_b32 s56, 0x%08x" % f32bits(1.0 / 640))
    a("v_mul_f32 %s, s56, %s\nv_mul_f32 %s, s56, %s", v(NM), v(S), v(RS), v(Q))
    a("v_fma_f32 %s, -%s, %s, %s", v(RS), v(NM), v(NM), v(RS))
    a("v_max_f32 %s, 0, %s\nv_add_f32 %s, 0x%08x, %s" % (v(RS), v(RS), v(RS), f32bits(1e-5), v(RS)))
    a("v_rsq_f32 %s, %s\nv_sub_f32 %s, 0, %s", v(RS), v(RS), v(NM), v(NM))

import struct
def f32bits(x): return struct.unpack("<I", struct.pack("<f", x))[0]

def pairs(base_list):
    for b, n in base_list:
        for i in range(0, n, 2): yield b + i

def scale_regs(a, lst, RS):
    for r in pairs(lst): a("v_pk_mul_f32 %s, %s, %s op_sel_hi:[1,0]", v(r, 2), v(r, 2), v(RS, 2))
def pack20(a, dst, main, mix):
    src = [main + i for i in range(16)] + [mix + i for i in range(4)]
    for i in range(10): a("v_cvt_pk_bf16_f32 %s, %s, %s", v(dst + i), v(src[2 * i]), v(src[2 * i + 1]))

def prep_records(a, RS, hi):
    scale_regs(a, [(AK, 16), (AM + 4, 8), (AV, 16)], RS)
    pack20(a, AK, AK, AM + 4)
def write_records(a, hi):
    halo_store(a, hi, [v(AK, 4), v(AK + 4, 4), v(AK + 8, 4)] + [v(AV + 4 * i, 4) for i in range(4)] + [v(AM + 8, 4)])
    o = 14 * 48
    a("ds_write_b128 %s, %s offset:%d\nds_write_b128 %s, %s offset:%d\nds_write_b64 %s, %s offset:%d", v(vKrec), v(AK, 4), o, v(vKrec), v(AK + 4, 4), o + 16, v(vKrec), v(AK + 8, 2), o + 32)
    o = 14 * 80
    for i in range(4): a("ds_write_b128 %s, %s offset:%d", v(vVrec), v(AV + 4 * i, 4), o + 16 * i)
    a("ds_write_b128 %s, %s offset:%d", v(vVrec), v(AM + 8, 4), o + 64)

def attention(a, RS, oidx, retry):
    LG = TMP; t = TMP + 8
    KR = [RING, RING + 12, RING + 24]; VR = [24, 44, XT]
    def rdk(i, a=a):
        r = KR[i % 3]; o = (14 - 2 * i) * 48
        a("ds_read_b128 %s, %s offset:%d\nds_read_b128 %s, %s offset:%d\nds_read_b64 %s, %s offset:%d", v(r, 4), v(vKrec), o, v(r + 4, 4), v(vKrec), o + 16, v(r + 8, 2), v(vKrec), o + 32, tag=("k", i))
    def rdv(i):
        r = VR[i % 3]; o = (14 - 2 * i) * 80
        for j in range(5): a("ds_read_b128 %s, %s offset:%d", v(r + 4 * j, 4), v(vVrec), o + 16 * j, tag=("v", i))
    for i in (1, 2, 3): rdk(i)
    scale_regs(a, [(AQ, 16), (AM, 4)], RS)
    pack20(a, AQ, AQ, AM)
    for i in range(8): a("v_mov_b32 %s, 0", v(LG + i))
    for i in range(8):
        r = AK if i == 0 else KR[i % 3]
        if i == 1:
            z = a.a if isinstance(a, Mix) else a
            halo_consume(z, oidx // 2, retry, lambda: [rdk(k, z) for k in (1, 2, 3)])
        if i: a.wait(lg=("k", i))
        for j in range(10): a("v_dot2c_f32_bf16 %s, %s, %s", v(LG + i), v(AQ + j), v(r + j))
        if 1 <= i <= 4: rdk(i + 3)
        if i == 7: a.wait(vm="hl")
        if i in (5, 6, 7): rdv(i - 4)
    lb = a.newlabel("L_nomask")
    z = a.a if isinstance(a, Mix) else a
    z("s_cmp_lg_u32 %s, 0\ns_cbranch_scc1 %s", sT, lb)
    z("v_and_b32 %s, 31, %s\nv_mov_b32 %s, 0xff800000", v(t), v(vLane), v(t + 1))
    for i in range(1, 8):
        z("v_cmp_le_u32 vcc, %d, %s\nv_cndmask_b32 %s, %s, %s, vcc", 2 * i, v(t), v(LG + i), v(t + 1), v(LG + i))
    z("s_nop 2")
    a.label(lb)
    a("v_max3_f32 %s, %s, %s, %s\nv_max3_f32 %s, %s, %s, %s", v(t), v(LG), v(LG + 1), v(LG + 2), v(t + 1), v(LG + 3), v(LG + 4), v(LG + 5))
    a("v_max3_f32 %s, %s, %s, %s\nv_max_f32 %s, %s, %s", v(t), v(t), v(LG + 6), v(LG + 7), v(t), v(t), v(t + 1))
    import math
    a("s_mov_b32 s56, 0x%08x" % f32bits(20 ** -0.5 * math.log2(math.e)))
    a("v_mul_f32 %s, s56, %s", v(t), v(t))
    for i in range(8): a("v_fma_f32 %s, %s, s56, -%s", v(LG + i), v(LG + i), v(t))
    for i in range(8): a("v_exp_f32 %s, %s", v(LG + i), v(LG + i))
    a("v_pk_add_f32 %s, %s, %s\nv_pk_add_f32 %s, %s, %s", v(t, 2), v(LG, 2), v(LG + 2, 2), v(t + 2, 2), v(LG + 4, 2), v(LG + 6, 2))
    a("v_pk_add_f32 %s, %s, %s\nv_add_f32 %s, %s, %s\nv_rcp_f32 %s, %s", v(t, 2), v(t, 2), v(t + 2, 2), v(t), v(t), v(t + 1), v(t), v(t))
    O = list(pairs([(AV, 16), (AM + 8, 4)]))
    for i in range(8):
        sel = "op_sel:[0,%d,0] op_sel_hi:[1,%d,1]" % (i % 2, i % 2)
        P = v(LG + i - i % 2, 2)
        if i == 0:
            for r in O: a("v_pk_mul_f32 %s, %s, %s op_sel_hi:[1,0]", v(r, 2), v(r, 2), P)
        else:
            a.wait(lg=("v", i))
            for j, r in enumerate(O): a("v_pk_fma_f32 %s, %s, %s, %s %s", v(r, 2), v(VR[i % 3] + 2 * j, 2), P, v(r, 2), sel)
            if i + 3 <= 7: rdv(i + 3)
    scale_regs(a, [(AV, 16), (AM + 8, 4)], t)
    publish_o(a, oidx)

def publish_o(a, oidx, mix=AM + 8):
    pack20(a, AV, AV, mix)
    a("v_permlane32_swap_b32 %s, %s\nv_permlane32_swap_b32 %s, %s", v(AV + 8), v(AV + 10), v(AV + 9), v(AV + 11))
    o_store(a, oidx, v(AV, 4), v(AV + 4, 4), v(AV + 8, 4))
    stamp(a, "o%d pub" % (oidx + 1))


def layer1_qkv(a, chk, mid, phid, retry):
    ONES, lq = l1_startup(a, retry)
    stamp(a, "l1 cs")
    for k in range(3):
        for i in range(4): a("ds_read_b128 %s, %s offset:%d", v((RING, RING + 16, AQ)[k] + 4 * i, 4), v(vCs), CS[0] + 64 * k + 16 * i, tag=("cs", k))
    stats_fin(a, TMP, TMP + 1, NMR, RSR)
    for k in range(3):
        a.wait(lg=("cs", k))
        for i in range(0, 16, 2):
            a("v_pk_fma_f32 %s, %s, %s, %s op_sel_hi:[1,0,1]", v(AK + 16 * k + i, 2), v((RING, RING + 16, AQ)[k] + i, 2), v(NMR, 2), v(AK + 16 * k + i, 2))
    prep_records(a, RSR, 0)
    sd = Stream(a, lambda r: write_records(r, 0))
    sd.play(4)
    a.wait(vm="qd")
    a("s_barrier")
    stamp(a, "l1 q in")
    CA = 41
    a("s_mul_i32 s52, %s, 10240\nv_add_u32 %s, s52, %s", sW, v(CA), v(vWq))
    slots = []
    for s in range(40):
        slots.append(dict(op=M32, acc=AQ, n=16, rd=rd_q(s), B=ag(4 * s, 4), **({"c": "0"} if s == 0 else {})))
        if s % 4 == 3: slots.append(dict(op=M32, acc=ag(160, 16), n=16, rd=[(CA, (s // 4) * 1024 + u * 256) for u in (0, 1)], B=ONES, swap=True, **({"c": "0"} if s == 3 else {})))
    def hook(i):
        if i % 2 == 1: sd.play(1)
        if i == L1CFG["hld"] - L1CFG["ipd"]: init_probe(a, 0, TMP + 7)
        if i == L1CFG["hld"]: chk(a); halo_load(a, 0)
        elif i % 2 == 0 and not L1CFG["hld"] - 6 < i < L1CFG["hld"]: lq.play_vm(1, 4)
    gemm(a, slots, 6, hook=hook)
    sd.flush(); lq.flush()
    cs_add(a, 0, {3: ag(160)})
    frag_regs(a)
    stamp(a, "l1 pass2")
    a.wait(vm="late")
    bg = mid(a)
    arrive(a, 8)
    phid(a)
    for i in range(4): a("ds_read_b128 %s, %s offset:%d", v(44 + 4 * i, 4), v(vCs), CS[0] + 192 + 16 * i, tag="cq")
    a.wait(lg="cq")
    for i in range(0, 16, 2): a("v_pk_fma_f32 %s, %s, %s, %s op_sel_hi:[1,0,1]", v(AQ + i, 2), v(44 + i, 2), v(NMR, 2), v(AQ + i, 2))
    stamp(a, "l1 mid")
    attention(Mix(a, bg, 8), RSR, 0, retry)
    return bg
```

```python
from gen2 import *
import math
CFG = dict(x_spec=6, x_pre1=6, h_ld=32, att_every=12, kv_probe=28, g_every=10, g_pre=6, gs_every=24, af_every=10, wo_pre=10, wo_every=4, p1_fast=0, p1_ev=2, x_pre=10, pk0=92, d_o=6, d_x=6, d_kv=6)
MAXRETRY = 200000

def parkreg(n): return ag(160 + 4 * n, 4) if n < 24 else v(PARKV + 4 * (n - 24), 4)

def bounded_retry(a, label, sleep=2):
    ok = a.newlabel("L_ok")
    a("s_cbranch_vccz %s", ok)
    a("s_add_u32 %s, %s, 1\ns_cmp_gt_u32 %s, %d\ns_cbranch_scc1 %s", sRETRY, sRETRY, sRETRY, MAXRETRY, ok)
    vm, lg = list(a.vm), list(a.lg)
    a("s_waitcnt vmcnt(0) lgkmcnt(0)\ns_sleep %d\ns_branch %s" % (sleep, label))
    a.vm, a.lg = vm, lg
    a.label(ok)

def init_check(a, reg, base, tag):
    ok, lp = a.newlabel("L_iok"), a.newlabel("L_iwp")
    a("s_cmp_lg_u32 %s, 0\ns_cbranch_scc1 %s", sW, ok)
    vm0, lg0 = list(a.vm), list(a.lg)
    a.wait(vm=tag)
    a("s_mov_b32 exec_hi, 0xffff\nv_cmp_ne_u64 vcc, s[100:101], %s\ns_cbranch_vccz %s", v(reg, 2), ok)
    a.label(lp)
    a("s_mov_b64 exec, -1")
    init_probe(a, base, TMP + 6)
    a("s_waitcnt vmcnt(0)\ns_mov_b32 exec_hi, 0xffff\nv_cmp_ne_u64 vcc, s[100:101], %s", v(reg, 2))
    bounded_retry(a, lp, 4)
    a.vm, a.lg = vm0, lg0
    a.label(ok)
    a("s_mov_b64 exec, -1")

def wo_base(a, which):
    a("s_mul_i32 s96, %s, 102400\ns_lshl_b32 s97, %s, 10\ns_add_u32 s96, s96, s97\ns_add_u32 s96, s96, %d", sC, sW, PO[which])
def wo_dma(a, ns):
    for n in ns:
        a("s_add_u32 s94, s97, %d\ns_mov_b32 m0, s94\ns_add_u32 s95, s96, %d", WOI + 4096 * n, 4096 * n)
        a("buffer_load_dwordx4 %s, %s, s95 offen lds", v(vL16), srd(S_WS), tag="wod")
WO1 = list(range(2, 15))
WO2 = [0, 1] + list(range(15, 25))

def park_base(a, which):
    a("s_mul_i32 s88, %s, 153600\ns_lshl_b32 s89, %s, 10\ns_add_u32 s88, s88, s89\ns_add_u32 s88, s88, %d", sHP, sW, PW[which])
def park_load(a, ns):
    for n in ns:
        a("s_add_u32 s95, s88, %d", 4096 * n)
        a("buffer_load_dwordx4 %s, %s, %s, s95 offen", parkreg(n), v(vL16), srd(S_WS), tag=("park", n))
def park_load27(a):
    a("s_add_u32 s95, s88, %d", 4096 * 27)
    a("buffer_load_dwordx4 %s, %s, %s, s95 offen", parkreg(27), v(vL16), srd(S_WS), tag=("park", 27))
def pack_store(a):
    for n in range(28):
        lb = a.newlabel("L_ps")
        a("s_cmp_eq_u32 %s, %d\ns_cbranch_scc0 %s\ns_add_u32 s95, s88, %d", sR, n % 16, lb, 4096 * n)
        a("buffer_store_dwordx4 %s, %s, %s, s95 offen sc1", parkreg(n), v(vL16), srd(S_WS))
        a.vm.pop()
        a.label(lb)
def park_write(a, ns, t, raw=False):
    a("v_add_u32 %s, s89, %s\nv_add_u32 %s, 0x10000, %s", v(t), v(vL16), v(t + 1), v(t))
    for n in ns:
        a.wait(vm=("park", n))
        if raw and n == 27: a("s_cmp_lt_u32 %s, 2\ns_cselect_b64 exec, -1, 0", sW)
        a("ds_write_b128 %s, %s offset:%d", v(t + n // 16), parkreg(n), 4096 * (n % 16))
        if raw and n == 27: a("s_mov_b64 exec, -1")
def q_base(a):
    a("s_mov_b32 s98, s88")
def q_dma(a):
    for n in range(28, 38):
        a("s_add_u32 s94, s89, %d", 4096 * n)
        if n == 37: a("s_cmp_lt_u32 %s, 2\ns_cselect_b32 s94, s94, 0x30000", sW)
        a("s_mov_b32 m0, s94\ns_add_u32 s95, s98, %d", 4096 * n)
        a("buffer_load_dwordx4 %s, %s, s95 offen lds", v(vL16), srd(S_WS), tag="qd")

def wo_phase(a, L, rest, after_bulk=None):
    WAC, PR, D = 64, 24, 40
    a.wait(vm="wod")
    a("s_barrier")
    a("s_mul_i32 s59, %s, 20480\ns_add_u32 s59, s59, %d\ns_add_u32 s60, s59, 16384", sU, OB[L])
    stamp(a, "wo%d bar" % (L + 1))
    if L == 0: a.wait(vm="res"); phi_frags(a)
    early = [n for n in range(12) if L < 3 and not rest.has(("park", n))]
    if early: park_write(a, early, TMP + 2)
    if L == 0:
        for i in range(4): a("v_mov_b32 %s, 0x3f803f80", v(CONE + i))
        CS1[0] = (len(early) * 4096 // 2816) // 4 * 4
        print('early', len(early), CS1)
        if CS1[0]:
            a("s_waitcnt lgkmcnt(0)\ns_barrier")
            cs_steps(a, 0, CS1[0], CACC[0], v(CONE, 4), True, CRING)
    if CFG["d_o"] and len(early) < 8: a("s_sleep %d", CFG["d_o"])
    a("v_add_u32 %s, 0x10000, %s", v(TMP + 11), v(vWo1))
    top = a.newlabel("L_wo")
    a.label(top)
    for i in range(4): a("buffer_load_dwordx4 %s, %s, %s, s60 offen offset:%d sc1", v(PR + 4 * i, 4), v(vL16), srd(S_WS), 1024 * i, tag="pr")
    for i in range(10):
        a("v_lshlrev_b32 %s, 16, %s\nv_and_b32 %s, 0xffff0000, %s", v(WAC + 2 * i), v(RES + i), v(WAC + 2 * i + 1), v(RES + i))
    a.wait(vm="pr")
    a("v_max3_u32 %s, %s, %s, %s", v(TMP), v(PR), v(PR + 1), v(PR + 2))
    for i in range(3, 15, 2): a("v_max3_u32 %s, %s, %s, %s", v(TMP), v(TMP), v(PR + i), v(PR + i + 1))
    a("v_max_u32 %s, %s, %s", v(TMP), v(TMP), v(PR + 15))
    a("v_cmp_eq_u32 vcc, -1, %s", v(TMP))
    bounded_retry(a, top)
    stamp(a, "wo%d probe ok" % (L + 1))
    def bulk(r):
        for s in range(16):
            if s % 4 == 0: r("s_add_u32 s61, s59, %d", 1024 * s)
            r("buffer_load_dwordx4 %s, %s, %s, s61 offen offset:%d sc1", ag(4 * s, 4), v(vL16), srd(S_WS), 1024 * (s % 4), tag=("o", s))
    bg = Stream(a, bulk)
    bg.q += rest.q; rest.q = []
    if after_bulk: bg.add(after_bulk)
    bg.play(CFG["wo_pre"])
    def hk(i):
        if i % CFG["wo_every"] == 0: bg.play(1)
    slots = []
    for s in [16, 17, 18, 19] + list(range(16)):
        for t5 in range(5):
            f = 5 * s + t5
            slots.append(dict(op=M16, acc=WAC + 4 * t5, n=4, rd=[(vWo1 if f < 64 else TMP + 11, 1024 * (f % 64))],
                              B=v(PR + 4 * (s - 16), 4) if s >= 16 else ag(4 * s, 4), vm=("o", s) if s < 16 else None))
    gemm(a, slots, 7, hook=hk, ring=84)
    bg.flush()
    a("v_cmp_u_f32 vcc, %s, %s", v(WAC + 16), v(WAC + 16))
    bounded_retry(a, top)
    stamp(a, "wo%d gemm" % (L + 1))
    for i in range(10): a("v_cvt_pk_bf16_f32 %s, %s, %s", v(D + i), v(WAC + 2 * i), v(WAC + 2 * i + 1))
    if L < 3:
        for i in range(10): a("v_mov_b32 %s, %s", v(RES + i), v(D + i))
    for q in (0, 4, 8):
        a("v_permlane16_swap_b32 %s, %s\nv_permlane16_swap_b32 %s, %s", v(D + q), v(D + q + 2), v(D + q + 1), v(D + q + 3))
    if L == 3:
        t = TMP; Ln = v(vLane)
        a("v_and_b32 %s, 15, %s\nv_mul_u32_u24 %s, 1280, %s\nv_lshrrev_b32 %s, 9, %s\nv_lshl_add_u32 %s, %s, 4, %s", v(t), Ln, v(t), v(t), v(t + 1), v(vXst), v(t), v(t + 1), v(t))
        a("s_mul_i32 s52, %s, 20480\ns_mul_i32 s53, %s, 160\ns_add_u32 s52, s52, s53", sU, sC)
        a("buffer_store_dwordx4 %s, %s, %s, s52 offen", v(D, 4), v(t), srd(S_OUT))
        a("buffer_store_dwordx4 %s, %s, %s, s52 offen offset:64", v(D + 4, 4), v(t), srd(S_OUT))
        a("s_mov_b32 exec_lo, 0xffff\ns_mov_b32 exec_hi, 0xffff")
        a("buffer_store_dwordx4 %s, %s, %s, s52 offen offset:128", v(D + 8, 4), v(t), srd(S_OUT))
        a("s_mov_b64 exec, -1")
        return
    x_store(a, L, v(D, 4), v(D + 4, 4), v(D + 8, 4), None)
    S, Q = TMP, TMP + 1
    a("v_mov_b32 %s, 0\nv_mov_b32 %s, 0", v(S), v(Q))
    for i in range(10): a("v_dot2c_f32_bf16 %s, %s, %s\nv_dot2c_f32_bf16 %s, %s, %s", v(S), v(RES + i), v(vONES), v(Q), v(RES + i), v(RES + i))
    for sw in ("v_permlane16_swap_b32", "v_permlane32_swap_b32"):
        a("v_mov_b32 %s, %s\nv_mov_b32 %s, %s", v(S + 2), v(S), v(S + 3), v(Q))
        a("%s %s, %s\n%s %s, %s", sw, v(S), v(S + 2), sw, v(Q), v(S + 3))
        a("v_pk_add_f32 %s, %s, %s", v(S, 2), v(S, 2), v(S + 2, 2))
    st_store(a, v(S, 2))
    stamp(a, "x%d pub" % (L + 2))
    return len(early)

def transition(a, L, lo=12):
    a("s_barrier")
    park_write(a, range(lo, 28), TMP + 8)
    q_base(a)
    if L < 3: park_base(a, (L + 1) % 2)

def cs_init(a, which, tiles):
    for k in tiles:
        for i in range(4): a("ds_read_b128 %s, %s offset:%d", v(AK + 16 * k + 4 * i, 4), v(vCs), CS[which] + 64 * k + 16 * i, tag=("ci", k))
def cs_mul(a, tiles):
    for k in tiles:
        a.wait(lg=("ci", k))
        scale_regs(a, [(AK + 16 * k, 16)], NMR)

def qkv_front(a, L):
    isA = L % 2 == 0; xi = L - 1; which = L % 2; t = TMP
    a("s_lshl_b32 s59, %s, 11\ns_add_u32 s59, s59, %d", sT, ST[xi])
    a("s_mul_i32 s60, %s, 40960\ns_add_u32 s60, s60, %d", sT, XB[xi])
    a("s_mov_b32 s99, 0")
    stamp(a, "q%d begin" % (L + 1))
    top = a.newlabel("L_qkv")
    a.label(top)
    for i in range(4): a("buffer_load_dwordx2 %s, %s, %s, s59 offen offset:%d sc1", v(t + 2 * i, 2), v(vStLd), srd(S_WS), 128 * i, tag="st")
    if L != 1: cs_init(a, which, (0, 1, 2, 3))
    def bulk(r):
        for s in range(40):
            if s % 4 == 0: r("s_add_u32 s61, s60, %d", 1024 * s)
            r("buffer_load_dwordx4 %s, %s, %s, s61 offen offset:%d sc1", ag(4 * s, 4), v(vL16), srd(S_WS), 1024 * (s % 4), tag=("x", s))
        q_dma(r)
        r.label("@q")
        if L < 3:
            for i in range(4): r("v_mov_b32 %s, -1", v(XT + 16 + i))
            fills(r, [("h", 1), ("x", 1), ("kv", 1), ("o", 2)] if L == 1 else [("x", 2), ("o", 3)], XT + 16)
        r.label("@f")
        if L < 3: park_load(r, range(28))
    bg = Stream(a, bulk)
    bg.play(CFG["x_spec"])
    a.wait(vm="st")
    a("v_pk_add_f32 %s, %s, %s\nv_pk_add_f32 %s, %s, %s\nv_pk_add_f32 %s, %s, %s", v(t, 2), v(t, 2), v(t + 2, 2), v(t + 4, 2), v(t + 4, 2), v(t + 6, 2), v(t, 2), v(t, 2), v(t + 4, 2))
    a("v_cmp_u_f32 vcc, %s, %s", v(t), v(t))
    bounded_retry(a, top)
    stamp(a, "q%d probe ok" % (L + 1))
    bg.play(CFG["x_pre"] - CFG["x_spec"] + (CFG["x_pre1"] if L == 1 else 0))
    def red(R, sws):
        for sw in sws:
            a("v_mov_b32 %s, %s\nv_mov_b32 %s, %s", v(R + 2), v(R), v(R + 3), v(R + 1))
            a("%s %s, %s\n%s %s, %s", sw, v(R), v(R + 2), sw, v(R + 1), v(R + 3))
            a("v_pk_add_f32 %s, %s, %s", v(R, 2), v(R, 2), v(R + 2, 2))
    red(t, ["v_permlane32_swap_b32"])
    stats_fin(a, t, t + 1, NMR, RSR)
    if L != 1: cs_mul(a, (0, 1, 2, 3))
    sk = a.newlabel("L_skb")
    a("s_waitcnt lgkmcnt(0)\ns_cmp_eq_u32 s99, 0\ns_cbranch_scc0 %s\ns_barrier\ns_mov_b32 s99, 1", sk)
    if L == 1:
        assert CS1[0] == 16
        cs_steps(a, 16, 24, CACC[0], v(CONE, 4), False, CRING, TMP + 4)
        cs_add(a, 1, v(CACC[0]), TMP + 4, put=True)
        a("s_waitcnt lgkmcnt(0)")
    a.label(sk)
    if L != 2: stamp(a, "p1 go")
    slots = []
    for s in range(40):
        for acc, win in ((AK, 0), (AV, 1), (AM, 2)):
            slots.append(dict(op=M32, acc=acc, n=16, rd=rf_kvm(s, win), B=ag(4 * s, 4), vm=("x", s), **({"c": "0"} if L == 1 and s == 0 else {})))
    def hook(i):
        s, k = divmod(i, 3)
        bg.play_vm(1 if (i < CFG["p1_fast"] or i % CFG["p1_ev"] == 1) else 0, 2)
    gemm(a, slots, 6, hook=hook, ringn=9)
    bg.upto("@f")
    a("v_cmp_u_f32 vcc, %s, %s", v(AM), v(AM))
    bounded_retry(a, top)
    stamp(a, "q%d pass1" % (L + 1))
    if isA: prep_records(a, RSR, 1)
    a.wait(vm="qd")
    a("s_waitcnt lgkmcnt(0)\ns_barrier")
    if L == 1:
        for k in range(3):
            for i in range(4): a("ds_read_b128 %s, %s offset:%d", v(CACC[k] + 4 * i, 4), v(vCs), CS[1] + 64 * k + 16 * i, tag=("cl", k))
        for k in range(3):
            a.wait(lg=("cl", k))
            for i in range(0, 16, 2):
                a("v_pk_fma_f32 %s, %s, %s, %s op_sel_hi:[1,0,1]", v(AK + 16 * k + i, 2), v(CACC[k] + i, 2), v(NMR, 2), v(AK + 16 * k + i, 2))
    return bg
CACC, CONE, CRING, CS1 = [120, 136, XT], XT + 16, [52, 56, 60, 152, 156, 160], [0]

def pass2(a, which, hook=None, zero=False):
    gemm(a, [dict(op=M32, acc=AQ, n=16, rd=rf_q(s), B=ag(4 * s, 4), **({"c": "0"} if zero and s == 0 else {})) for s in range(40)], 5, hook=hook, ringn=7)

def qkv_A(a, L):
    bg = qkv_front(a, L)
    wo_base(a, 0)
    sd = Stream(a, lambda r: write_records(r, 1)); bg.front(lambda r: wo_dma(r, WO1))
    sd.play(3)
    def hook(i):
        if i % 2 == 1 or i == 0: sd.play(1)
        if i == CFG["h_ld"]: halo_load(a, 1)
        elif i % 2 == 0 and i > 2 and not CFG["h_ld"] - 8 < i < CFG["h_ld"]: bg.play_vm(1, 0)
    pass2(a, 0, hook)
    sd.flush()
    stamp(a, "pass2")
    a.wait(vm="fill")
    a("s_waitcnt lgkmcnt(0)\ns_barrier")
    bg.front(lambda r: (wo_dma(r, WO2), r.label("@w")))
    attention(Mix(a, bg, CFG["att_every"]), RSR, L, bounded_retry)
    bg.upto("@w")
    return bg

PHL = SP + 8192; ZL = SP + 1024
def phi_dma(a):
    a("s_lshl_b32 s94, %s, 10\ns_mul_i32 s95, %s, 1600\ns_add_u32 s95, s95, s94\ns_add_u32 s94, s94, %d\ns_mov_b32 m0, s94", sW, sHP, PHL)
    a("buffer_load_dwordx4 %s, %s, s95 offen lds", v(vL16), srd(S_PHI), tag="phi")
    for i in range(4): a("v_mov_b32 %s, 0", v(TMP + i))
    a("v_add_u32 %s, %d, %s", v(TMP + 4), ZL, v(vL16))
    a("ds_write_b128 %s, %s", v(TMP + 4), v(TMP, 4))
def phi_frags(a):
    t = TMP; Ln = v(vLane)
    a("s_movk_i32 s57, 960\ns_movk_i32 s56, 160")
    a("v_bfe_u32 %s, %s, 2, 2\nv_mul_u32_u24 %s, 40, %s", v(t), Ln, v(t), v(t))
    a("v_bfe_u32 %s, %s, 4, 1\nv_bfe_u32 %s, %s, 1, 1\nv_lshl_add_u32 %s, %s, 1, %s", v(t + 1), Ln, v(t + 2), Ln, v(t + 1), v(t + 1), v(t + 2))
    a("v_lshl_add_u32 %s, %s, 3, %s\nv_add_u32 %s, %d, %s", v(t), v(t + 1), v(t), v(t), PHL, v(t))
    a("v_lshrrev_b32 %s, 5, %s\nv_and_b32 %s, 1, %s\nv_mov_b32 %s, %d", v(t + 2), Ln, v(t + 3), Ln, v(t + 8), ZL)
    a("v_mad_u32_u24 %s, %s, s57, %s", v(t + 4), v(t + 2), v(t))
    a("v_mad_u32_u24 %s, %s, s56, %s\nv_add_u32 %s, 640, %s", v(t + 5), v(t + 2), v(t), v(t + 5), v(t + 5))
    a("v_cmp_eq_u32 vcc, %s, %s", v(t + 2), v(t + 3))
    a("v_cndmask_b32 %s, %s, %s, vcc\nv_cndmask_b32 %s, %s, %s, vcc", v(t + 4), v(t + 8), v(t + 4), v(t + 5), v(t + 8), v(t + 5))
    a("v_cmp_eq_u32 vcc, 0, %s", v(t + 1))
    a("v_cndmask_b32 %s, %s, %s, vcc\nv_cndmask_b32 %s, %s, %s, vcc", v(t + 6), v(t + 8), v(t + 4), v(t + 7), v(t + 8), v(t + 5))
    for ft in range(2):
        for k in range(2):
            for u in range(2): a("ds_read_b64_tr_b16 %s, %s offset:%d", v(PHIF + 12 * ft + 4 * k + 2 * u, 2), v(t + 4 + 2 * ft), 320 * k + 160 * u + 32 * ft)
        a("ds_read_b64_tr_b16 %s, %s offset:%d", v(PHIF + 12 * ft + 8, 2), v(t + 5 + 2 * ft), 32 * ft)
        a("v_mov_b32 %s, 0\nv_mov_b32 %s, 0", v(PHIF + 12 * ft + 10), v(PHIF + 12 * ft + 11))
    a("s_waitcnt lgkmcnt(0)")

def feature_map(a, main, mix, order, EP=RING, EN=40, D0=XT, D1=24, out=RING, packed=False):
    t = TMP
    if not packed: pack20(a, main, main, mix)
    a("v_mov_b32 %s, 0\nv_mov_b32 %s, 0", v(main + 10), v(main + 11))
    slots = [dict(op=M32, acc=(D0, D1)[ft], n=16, A=v(PHIF + 12 * ft + 4 * k, 4), B=v(main + 4 * k, 4), **({"c": "0"} if k == 0 else {})) for k in range(3) for ft in range(2)]
    gemm(a, slots, 0)
    P = [D0 + i for i in range(16)] + [D1 + i for i in range(4)]
    for op, r in (("max", t), ("min", t + 2)):
        a("v_%s3_f32 %s, %s, %s, %s", op, v(r), v(P[0]), v(P[1]), v(P[2]))
        for i in range(3, 19, 2): a("v_%s3_f32 %s, %s, %s, %s", op, v(r), v(r), v(P[i]), v(P[i + 1]))
        a("v_%s_f32 %s, %s, %s", op, v(r), v(r), v(P[19]))
    a("s_mov_b32 s56, 0x%08x\ns_mov_b32 s57, 0x%08x" % (f32bits(math.log2(math.e)), f32bits(-math.log2(math.e))))
    a("v_mul_f32 %s, s57, %s\nv_mul_f32 %s, s56, %s\nv_mov_b32 %s, s56\nv_mov_b32 %s, s57", v(t), v(t), v(t + 2), v(t + 2), v(t + 4), v(t + 6))
    for E, c, m in ((EP, t + 4, t), (EN, t + 6, t + 2)):
        for i in range(0, 20, 2): a("v_pk_fma_f32 %s, %s, %s, %s op_sel_hi:[1,0,0]", v(E + i, 2), v(P[i], 2), v(c, 2), v(m, 2))
        for i in range(20): a("v_exp_f32 %s, %s", v(E + i), v(E + i))
    for E, s in ((EP, t), (EN, t + 2)):
        a("v_pk_add_f32 %s, %s, %s", v(s, 2), v(E, 2), v(E + 2, 2))
        for i in range(4, 20, 2): a("v_pk_add_f32 %s, %s, %s", v(s, 2), v(s, 2), v(E + i, 2))
        a("v_add_f32 %s, %s, %s\nv_rcp_f32 %s, %s", v(s), v(s), v(s + 1), v(s), v(s))
    scale_regs(a, [(EP, 20)], t); scale_regs(a, [(EN, 20)], t + 2)
    F = [EP + i for i in range(20)] + [EN + i for i in range(20)]
    for i in range(20): a("v_cvt_pk_bf16_f32 %s, %s, %s", v(out + i), v(F[order[2 * i]]), v(F[order[2 * i + 1]]))

def qkv_B(a, L):
    t = TMP; Ln = v(vLane); ki = L // 2
    bg = qkv_front(a, L)
    wo_base(a, 1)
    bg.front(lambda r: (wo_dma(r, WO1), r.label('@w')))
    m = Mix(a, bg, 16)
    scale_regs(m, [(AK, 16), (AM + 4, 8), (AV, 16)], RSR)
    pack20(m, AV, AV, AM + 8)
    a("v_mov_b32 %s, 0x3f80\nv_mov_b32 %s, 0", v(AV + 10), v(AV + 11))
    a("v_lshrrev_b32 %s, 5, %s\nv_lshlrev_b32 %s, 7, %s\nv_and_b32 %s, 31, %s\nv_add_u32 %s, %s, %s", v(t + 8), Ln, v(t + 8), v(t + 8), v(t + 9), Ln, v(t + 8), v(t + 8), v(t + 9))
    a("s_lshl_b32 s52, %s, 5\nv_add_u32 %s, s52, %s\nv_mul_u32_u24 %s, 160, %s", sW, v(t + 8), v(t + 8), v(t + 8), v(t + 8))
    for i in range(3): a("ds_write_b128 %s, %s offset:%d", v(t + 8), v(AV + 4 * i, 4), PHIR + 80 + 16 * i)
    def p2(r, hook):
        slots = []
        if L == 1:
            for i in range(4): r("v_mov_b32 %s, 0x3f803f80", v(60 + i))
            r("s_mul_i32 s56, %s, 10240\nv_add_u32 %s, s56, %s", sW, v(XT + 16), v(vWq))
        for s in range(40):
            slots.append(dict(op=M32, acc=AQ, n=16, rd=rf_q(s), B=ag(4 * s, 4), **({"c": "0"} if L == 1 and s == 0 else {})))
            if L == 1 and s % 4 == 3: slots.append(dict(op=M32, acc=AV, n=16, rd=[(XT + 16, (s // 4) * 1024)], B=v(60, 4), swap=True, **({"c": "0"} if s == 3 else {})))
        gemm(r, slots, 5, hook=hook, ringn=7)
    feature_map(m, AK, AM + 4, list(range(40)))
    for i in range(5): a("ds_write_b128 %s, %s offset:%d", v(t + 8), v(RING + 4 * i, 4), PHIR + 16 * i)
    a("s_lshr_b32 s52, %s, 1\ns_mul_i32 s52, s52, 20480\ns_sub_u32 s52, s52, %d\ns_and_b32 s53, %s, 1\ns_lshl_b32 s53, s53, 5", sW, WOI, sW)
    a("v_add_u32 %s, s52, %s\nv_add_u32 %s, s53, %s", v(t + 2), v(vWo0), v(t + 3), v(t + 2))
    a.wait(vm="fill")
    a("s_waitcnt lgkmcnt(0)\ns_barrier")
    stamp(a, "phi k")
    VB, KA = 24, 40
    for ks in range(4):
        for u in (0, 1): a("ds_read_b64_tr_b16 %s, %s offset:%d", v(VB + 4 * ks + 2 * u, 2), v(t + 3), ks * 5120 + u * 2560 + 80, tag="vb")
    slots = [dict(op=M16, acc=KA + 4 * ft, n=4, rd=[(t + 2, ks * 5120 + u * 2560 + 32 * ft) for u in (0, 1)], B=v(VB + 4 * ks, 4), **({"c": "0"} if ks == 0 else {})) for ks in range(4) for ft in range(3)]
    gemm(a, slots, 3, ringn=7)
    for i in range(6): a("v_cvt_pk_bf16_f32 %s, %s, %s", v(KA + 12 + i), v(KA + 2 * i), v(KA + 2 * i + 1))
    a("v_permlane16_swap_b32 %s, %s\nv_permlane16_swap_b32 %s, %s", v(KA + 16), v(KA + 18), v(KA + 17), v(KA + 19))
    kv_store(a, ki, v(KA + 12, 4), v(KA + 16, 4))
    stamp(a, "kv pub")
    PB, SA, C0 = XT + 24, XT + 16, XT + 26
    a("s_lshl_b32 s59, %s, 16\ns_lshl_b32 s52, %s, 10\ns_add_u32 s59, s59, s52\ns_add_u32 s59, s59, %d", sHP, sW, KVB[ki])
    a("v_lshlrev_b32 %s, 12, %s\nv_mov_b32 %s, 0x3f80\nv_mov_b32 %s, 1.0", v(PB), Ln, v(C0), v(C0 + 1))
    a("v_cmp_gt_u32 vcc, 16, %s\nv_mov_b32 %s, 0x80000000\nv_cndmask_b32 %s, %s, %s, vcc", Ln, v(PB + 1), v(PB), v(PB + 1), v(PB))
    a("s_lshl_b32 s52, %s, 6\nv_add_u32 %s, s52, %s\nv_cmp_gt_u32 vcc, 240, %s\nv_cndmask_b32 %s, %s, %s, vcc", sW, v(t + 10), Ln, v(t + 10), v(t + 11), v(PB + 1), v(vL16))
    GO = t + 11
    probe = lambda r: r("buffer_load_dword %s, %s, %s, s59 offen offset:752 sc1", v(PB + 1), v(PB), srd(S_WS), tag="kp")
    KP = CFG["kv_probe"] + (10 if L == 1 else 0)
    def hook(i):
        if i % 2 == 0 and i < KP - 8: bg.play_vm(1, 2)
        if i == KP: probe(a)
    p2(a, hook)
    bg.upto('@w')
    if L == 1: cs_add(a, 1, {3: v(AV)}, TMP)
    stamp(a, "pass2")
    a("s_waitcnt lgkmcnt(0)\ns_barrier")
    if L == 1:
        for i in range(4): a("ds_read_b128 %s, %s offset:%d", v(24 + 4 * i, 4), v(vCs), CS[1] + 192 + 16 * i, tag="cq")
        a.wait(lg="cq")
        for i in range(0, 16, 2): a("v_pk_fma_f32 %s, %s, %s, %s op_sel_hi:[1,0,1]", v(AQ + i, 2), v(24 + i, 2), v(NMR, 2), v(AQ + i, 2))
    scale_regs(a, [(AQ, 16), (AM, 4)], RSR)
    pack20(a, AQ, AQ, AM)
    lp = a.newlabel("L_kvp"); ok = a.newlabel("L_kvok")
    a.wait(vm="kp")
    a("v_cmp_eq_u32 vcc, -1, %s\ns_cbranch_vccz %s", v(PB + 1), ok)
    vm, lg = list(a.vm), list(a.lg)
    a.label(lp)
    probe(a); a("s_waitcnt vmcnt(0)\nv_cmp_eq_u32 vcc, -1, %s", v(PB + 1))
    bounded_retry(a, lp, 1)
    a.vm, a.lg = vm, lg
    a.label(ok)
    stamp(a, "kv probe")
    G = [AK + 4 * i for i in range(8)] + [148, 152, 156, 160, 60, AM, AM + 4, AQ + 12]
    def ld(r, p):
        r("s_add_u32 s95, s59, %d", 4096 * p)
        r("buffer_load_dwordx4 %s, %s, %s, s95 offen sc1", v(G[p], 4), v(GO), srd(S_WS), tag=("kv", p))
    def gsum(r):
        for i in range(8): r("v_mov_b32 %s, 0", v(SA + i))
        for p in range(16):
            r.wait(vm=("kv", p))
            for i in range(4): r("v_dot2c_f32_bf16 %s, %s, %s\nv_dot2c_f32_bf16 %s, %s, %s", v(SA + 2 * i), v(G[p] + i), v(C0), v(SA + 2 * i + 1), v(G[p] + i), v(C0 + 1))
    def gather(r):
        for p in range(16): ld(r, p)
        gsum(r)
    gs = Stream(a, lambda r: ([ld(r, p) for p in range(16)], r.label('@g'), wo_dma(r, WO2), r.label('@w')))
    gs.q += bg.q; bg = gs
    gs.play(CFG["g_pre"])
    m = Mix(a, gs, CFG["g_every"])
    order = []
    for g in range(4): order += [4 * g + i for i in range(4)] + [16 + 4 * g + i for i in range(4)]
    order += list(range(32, 40))
    FQ = AQ - 8
    feature_map(m, AQ, AM, order, out=FQ, packed=True)
    stamp(a, "phi q")
    gs.upto('@g')
    gsum(Mix(a, gs, CFG["gs_every"]))
    def check(lab):
        a("v_mul_u32_u24 %s, 2731, %s\nv_lshrrev_b32 %s, 16, %s", v(t + 3), v(t + 10), v(t + 3), v(t + 3))
        a("v_mul_u32_u24 %s, 24, %s\nv_sub_u32 %s, %s, %s", v(t + 3), v(t + 3), v(t + 3), v(t + 10), v(t + 3))
        a("v_add_f32 %s, %s, %s\nv_add_f32 %s, %s, %s\nv_add_f32 %s, %s, %s", v(t + 4), v(SA), v(SA + 2), v(t + 5), v(SA + 4), v(SA + 6), v(t + 4), v(t + 4), v(t + 5))
        a("v_cmp_gt_u32 s[90:91], 21, %s\nv_cmp_u_f32 vcc, %s, %s\ns_and_b64 vcc, vcc, s[90:91]", v(t + 3), v(t + 4), v(t + 4))
    check(None)
    ok = a.newlabel("L_gok"); lp = a.newlabel("L_glp")
    a("s_cbranch_vccz %s", ok)
    vm, lg = list(a.vm), list(a.lg)
    a.label(lp)
    a("s_waitcnt vmcnt(0)")
    gather(a); check(None)
    bounded_retry(a, lp, 1)
    a.vm, a.lg = vm, lg
    a.label(ok)
    stamp(a, "kv gathered")
    for i in range(4): a("v_cvt_pk_bf16_f32 %s, %s, %s", v(SA + 8 + i), v(SA + 2 * i), v(SA + 2 * i + 1))
    a("v_lshlrev_b32 %s, 4, %s\nv_add_u32 %s, %d, %s", v(t + 2), v(t + 10), v(t + 2), KVT, v(t + 2))
    a("ds_write_b128 %s, %s", v(t + 2), v(SA + 8, 4))
    AF = [24, 32, 40, 48, RING]
    m = Mix(a, bg, CFG["af_every"])
    for k in range(5):
        for i in range(8): m("v_mov_b32 %s, 0", v(AF[k] + i))
    a("v_bfe_u32 %s, %s, 3, 2\nv_and_b32 %s, 3, %s\nv_lshl_add_u32 %s, %s, 2, %s\nv_lshlrev_b32 %s, 4, %s", v(t), Ln, v(t + 1), Ln, v(t), v(t), v(t + 1), v(t), v(t))
    a("v_lshrrev_b32 %s, 5, %s\nv_mul_u32_u24 %s, 1920, %s\nv_add3_u32 %s, %s, %s, %s", v(t + 1), Ln, v(t + 1), v(t + 1), v(t), v(t), v(t + 1), v(t + 1))
    a("v_sub_u32 %s, %s, %s\nv_add_u32 %s, %d, %s", v(t), v(t), v(t + 1), v(t), KVT, v(t))
    a("s_waitcnt lgkmcnt(0)\ns_barrier")
    a("s_mov_b32 exec_lo, 0x0f0f0f0f\ns_mov_b32 exec_hi, 0xf0f0f0f0")
    for k in range(5):
        for tl in range(2): a("ds_read_b128 %s, %s offset:%d", v(AF[k] + 4 * tl, 4), v(t), 384 * k + 256 * tl, tag=("af", k))
    a("s_mov_b64 exec, -1")
    N1 = AK
    slots = [dict(op=M32, acc=(AV, N1)[tl], n=16, A=v(AF[k] + 4 * tl, 4), B=v(FQ + 4 * k, 4), lg=("af", k), **({"c": "0"} if k == 0 else {})) for k in range(5) for tl in range(2)]
    gemm(a, slots, 0)
    a("v_add_f32 %s, 0x%08x, %s\nv_rcp_f32 %s, %s" % (v(t), f32bits(1e-6), v(N1 + 4), v(t), v(t)))
    scale_regs(a, [(AV, 16), (N1, 4)], t)
    publish_o(a, L, N1)
    bg.upto('@w')
    return bg
```
